```python
import torch

def _softmax(x, axis=-1):
    return torch.softmax(x, dim=axis)
def _gelu(x):
    return torch.nn.functional.gelu(x, approximate="tanh")
def _silu(x):
    return torch.nn.functional.silu(x)
def _sigmoid(x):
    return torch.sigmoid(x)
def _layernorm(x, axis=-1, eps=1e-5):
    m = x.mean(dim=axis, keepdim=True)
    v = x.var(dim=axis, keepdim=True, unbiased=False)
    return (x - m) / torch.sqrt(v + eps)
def _scatter_add(tgt, idx, src, axis=0):
    return tgt.clone().index_add_(axis, idx, src)
def _segment_sum(src, seg, n):
    out = torch.zeros((n,) + src.shape[1:], dtype=src.dtype)
    return out.index_add_(0, seg, src)
def _pad(x, pw):
    flat = tuple(v for pair in reversed(pw) for v in pair)
    return torch.nn.functional.pad(x, flat)

kernel_name = 'gated_mix__grouped_kv_mqa__grouped_kv_mqa__prompt'

def setup_inputs():

    _w = (lambda a: (lambda t: t.to(torch.bfloat16) if t.is_floating_point() else t)(torch.as_tensor(a)))
    def _A_setup():
        B, S, D, H = 1, 2048, 1024, 32
        Dh = D // H
        return {
            "x": _w((lambda *s: torch.randn(*s, dtype=torch.bfloat16) * 0.05)(B, S, D)),
            "wq": _w((lambda *s: torch.randn(*s, dtype=torch.bfloat16) * 0.8)(D, H * Dh)),
            "wk": _w((lambda *s: torch.randn(*s, dtype=torch.bfloat16) * 0.8)(D, Dh)),
            "wv": _w((lambda *s: torch.randn(*s, dtype=torch.bfloat16) * 0.05)(D, Dh)),
            "wo": _w((lambda *s: torch.randn(*s, dtype=torch.bfloat16) * 0.05)(H * Dh, D)),
        }
    _A_in = _A_setup()

    def _B_setup():
        B, S, D, H = 1, 2048, 1024, 32
        Dh = D // H
        return {
            "x": _w((lambda *s: torch.randn(*s, dtype=torch.bfloat16) * 0.05)(B, S, D)),
            "wq": _w((lambda *s: torch.randn(*s, dtype=torch.bfloat16) * 0.8)(D, H * Dh)),
            "wk": _w((lambda *s: torch.randn(*s, dtype=torch.bfloat16) * 0.8)(D, Dh)),
            "wv": _w((lambda *s: torch.randn(*s, dtype=torch.bfloat16) * 0.05)(D, Dh)),
            "wo": _w((lambda *s: torch.randn(*s, dtype=torch.bfloat16) * 0.05)(H * Dh, D)),
        }
    _B_in = _B_setup()

    return {
        "A_x": _A_in["x"],
        "A_wq": _A_in["wq"],
        "A_wk": _A_in["wk"],
        "A_wv": _A_in["wv"],
        "A_wo": _A_in["wo"],
        "B_x": _B_in["x"],
        "B_wq": _B_in["wq"],
        "B_wk": _B_in["wk"],
        "B_wv": _B_in["wv"],
        "B_wo": _B_in["wo"],
        "gate_w": _w((lambda *s: torch.randn(*s, dtype=torch.bfloat16) * 0.05)(1024) * 16.0),
    }

def reference(A_x, A_wq, A_wk, A_wv, A_wo, B_x, B_wq, B_wk, B_wv, B_wo, gate_w):
    def _A_ref(x, wq, wk, wv, wo):
        B, S, D = x.shape
        H = 32
        Dh = D // H
        q = (lambda x, *d: x.permute(*d))((x @ wq).reshape(B, S, H, Dh), 0, 2, 1, 3)
        k = x @ wk
        v = x @ wv
        scores = torch.einsum("bhqd,bkd->bhqk", q, k) * (Dh ** -0.5)
        p = _softmax(scores, axis=-1)
        o = torch.einsum("bhqk,bkd->bhqd", p, v)
        return (lambda x, *d: x.permute(*d))(o, 0, 2, 1, 3).reshape(B, S, H * Dh) @ wo

    def _B_ref(x, wq, wk, wv, wo):
        B, S, D = x.shape
        H = 32
        Dh = D // H
        q = (lambda x, *d: x.permute(*d))((x @ wq).reshape(B, S, H, Dh), 0, 2, 1, 3)
        k = x @ wk
        v = x @ wv
        scores = torch.einsum("bhqd,bkd->bhqk", q, k) * (Dh ** -0.5)
        p = _softmax(scores, axis=-1)
        o = torch.einsum("bhqk,bkd->bhqd", p, v)
        return (lambda x, *d: x.permute(*d))(o, 0, 2, 1, 3).reshape(B, S, H * Dh) @ wo

    x = A_x
    g = _sigmoid((x * gate_w).sum(-1, keepdims=True))
    a = _A_ref(x, A_wq, A_wk, A_wv, A_wo)
    b = _B_ref(x, B_wq, B_wk, B_wv, B_wo)
    return g * a + (1 - g) * b
```

```python
import struct

def f32bits(x):
    return struct.unpack('<I', struct.pack('<f', x))[0]

class Asm:
    def __init__(self):
        self.lines = []
    def __call__(self, s):
        for l in s.split('\n'):
            l = l.strip()
            if not l:
                continue
            if l.endswith(':') or l.startswith('.'):
                self.lines.append(l)
            else:
                self.lines.append('    ' + l)
    def c(self, s):
        self.lines.append('    ; ' + s)
    def text(self):
        return '\n'.join(self.lines) + '\n'

def v(i, n=1):
    return f'v{i}' if n == 1 else f'v[{i}:{i+n-1}]'
def a(i, n=1):
    return f'a{i}' if n == 1 else f'a[{i}:{i+n-1}]'
def s(i, n=1):
    return f's{i}' if n == 1 else f's[{i}:{i+n-1}]'

def kd(name, nvgpr, accum, nsgpr=96):
    return f""".p2align 6
.amdhsa_kernel {name}
  .amdhsa_next_free_vgpr {nvgpr}
  .amdhsa_next_free_sgpr {nsgpr}
  .amdhsa_accum_offset {accum}
  .amdhsa_group_segment_fixed_size 0
  .amdhsa_kernarg_size 112
  .amdhsa_user_sgpr_count 2
  .amdhsa_user_sgpr_kernarg_segment_ptr 1
  .amdhsa_system_sgpr_workgroup_id_x 1
.end_amdhsa_kernel
"""
```

```python
import math, sys
from asmlib import *

NAME = 'gated_mix__grouped_kv_mqa__grouped_kv_mqa__prompt'
WS_QF = 0
WS_KV = 8 << 20
WS_G = (8 << 20) + (512 << 10)
WS_OF = 16 << 20
WS_BYTES = 24 << 20
QK_SCALE = math.log2(math.e) / math.sqrt(32.0)
LOG2E = math.log2(math.e)

def srd(A, d, lo, hi, nbytes):
    A(f's_mov_b32 s{d}, s{lo}')
    A(f's_and_b32 s{d+1}, s{hi}, 0xffff')
    A(f's_mov_b32 s{d+2}, {nbytes:#x}')
    A(f's_mov_b32 s{d+3}, 0x20000')

def header(A, name):
    A(f'.globl {name}\n.p2align 8\n.type {name},@function\n{name}:')

K1_LDS = 147456 + 2048
def k1(A):
    name = 'qkv_kernel'
    header(A, name)
    SX, SW, SKV, SWS, SG = 4, 8, 12, 16, 20
    A('s_cmp_ge_u32 s2, 256')
    A('s_cbranch_scc1 K1_END')
    A('s_load_dwordx4 s[40:43], s[0:1], 0')
    A('s_load_dwordx4 s[44:47], s[0:1], 16')
    A('s_load_dwordx4 s[48:51], s[0:1], 48')
    A('s_load_dwordx2 s[52:53], s[0:1], 64')
    A('s_load_dwordx2 s[54:55], s[0:1], 80')
    A('s_load_dwordx2 s[56:57], s[0:1], 104')
    A('v_lshrrev_b32 v21, 6, v0')
    A('v_and_b32 v1, 63, v0')
    A('v_readfirstlane_b32 s24, v21')
    A('s_and_b32 s29, s2, 1')
    A('s_lshl_b32 s29, s29, 3')
    A('s_bfe_u32 s30, s2, 0x30003')
    A('s_add_u32 s25, s29, s30')
    A('s_bfe_u32 s29, s2, 0x20001')
    A('s_lshl_b32 s31, s29, 2')
    A('s_lshr_b32 s32, s2, 6')
    A('s_add_u32 s26, s31, s32')
    A('s_lshl_b32 s30, s30, 1')
    A('s_and_b32 s33, s2, 1')
    A('s_add_u32 s30, s30, s33')
    A('s_lshl_b32 s32, s32, 2')
    A('s_add_u32 s30, s30, s32')
    A('s_add_u32 s30, s30, s29')
    A('s_and_b32 s27, s30, 15')
    A('s_mov_b32 s28, s27')
    A('v_lshrrev_b32 v21, 3, v1')
    A('v_lshlrev_b32 v21, 11, v21')
    A('v_lshrrev_b32 v22, 4, v1')
    A('v_and_b32 v23, 7, v1')
    A('v_xor_b32 v23, v23, v22')
    A('v_lshl_add_u32 v2, v23, 4, v21')
    A('v_xor_b32 v23, 4, v23')
    A('v_lshl_add_u32 v3, v23, 4, v21')
    A('v_add_u32 v3, 15360, v3')
    A('v_add_u32 v4, 30720, v2')
    A('v_add_u32 v5, 30720, v3')
    A('v_bfe_u32 v23, v1, 2, 2')
    A('v_xor_b32 v23, v23, v22')
    A('v_lshlrev_b32 v23, 6, v23')
    A('v_lshl_add_u32 v23, v22, 11, v23')
    A('v_and_b32 v21, 3, v1')
    A('v_lshl_add_u32 v6, v21, 4, v23')
    A('v_add_u32 v7, 7168, v6')
    A('v_add_u32 v8, 14336, v6')
    A('v_add_u32 v9, 21504, v6')
    A('v_lshlrev_b32 v10, 4, v1')
    A('s_waitcnt lgkmcnt(0)')
    srd(A, SX, 40, 41, 4 << 20)
    A('s_cmp_ge_u32 s26, 8')
    A('s_cselect_b32 s42, s48, s42')
    A('s_cselect_b32 s43, s49, s43')
    A('s_cselect_b32 s44, s50, s44')
    A('s_cselect_b32 s45, s51, s45')
    A('s_cselect_b32 s46, s52, s46')
    A('s_cselect_b32 s47, s53, s47')
    srd(A, SW, 42, 43, 2 << 20)
    A('s_bitcmp1_b32 s26, 2')
    A('s_cselect_b32 s44, s46, s44')
    A('s_cselect_b32 s45, s47, s45')
    srd(A, SKV, 44, 45, 65536)
    srd(A, SG, 54, 55, 2048)
    A('s_lshl_b32 s34, s25, 18')
    A('s_lshl_b32 s29, s24, 16')
    A('s_add_u32 s34, s34, s29')
    A('s_and_b32 s35, s26, 7')
    A('s_lshl_b32 s35, s35, 8')
    A('s_lshl_b32 s29, s24, 15')
    A('s_add_u32 s35, s35, s29')
    A('s_lshl_b32 s36, s24, 10')
    A('s_lshl_b32 s37, s24, 12')

    def dma(slot):
        A('s_lshl_b32 s29, s27, 7')
        A('s_add_u32 s29, s29, s34')
        A(f's_add_u32 m0, s37, {slot*16384}')
        A('s_lshl_b32 s30, s27, 17')
        for i in range(4):
            A(f'buffer_load_dwordx4 v{2+i}, s[{SX}:{SX+3}], s29 offen offset:{i*1024} lds')
        A(f's_add_u32 m0, s37, {65536+slot*16384}')
        A('s_add_u32 s30, s30, s35')
        A('s_lshl_b32 s31, s27, 12')
        for i in range(4):
            A(f'buffer_load_dwordx4 v{6+i}, s[{SW}:{SW+3}], s30 offen offset:{i*1024} lds')
        A(f's_add_u32 m0, s36, {131072+slot*4096}')
        A('s_add_u32 s31, s31, s36')
        A(f'buffer_load_dwordx4 v10, s[{SKV}:{SKV+3}], s31 offen lds')
        A('s_add_u32 s27, s27, 1')
        A('s_and_b32 s27, s27, 15')

    A('s_mov_b32 m0, 147456')
    A('s_nop 0')
    A(f'buffer_load_dwordx4 v10, s[{SG}:{SG+3}], 0 offen lds')
    A(f'buffer_load_dwordx4 v10, s[{SG}:{SG+3}], 0 offen offset:1024 lds')
    for sl in range(3):
        dma(sl)
    srd(A, SWS, 56, 57, WS_BYTES)
    A('v_and_b32 v21, 31, v1')
    A('v_lshrrev_b32 v22, 5, v1')
    A('v_bfe_u32 v23, v1, 1, 3')
    A('v_xor_b32 v23, v23, v22')
    A('v_lshlrev_b32 v21, 7, v21')
    A('s_and_b32 s29, s24, 1')
    A('s_lshl_b32 s29, s29, 13')
    for st in range(4):
        A(f'v_xor_b32 v176, {2*st}, v23')
        A(f'v_lshl_add_u32 v{11+st}, v176, 4, v21')
    A('s_lshl_b32 s30, s24, 1')
    A('v_xor_b32 v176, s30, v23')
    A('v_lshl_add_u32 v18, v176, 4, v21')
    A('s_and_b32 s30, s26, 3')
    A('s_lshl_b32 s30, s30, 12')
    A('v_add_u32 v18, s30, v18')
    for st in range(4):
        A(f'v_add_u32 v{11+st}, s29, v{11+st}')
    A('v_bfe_u32 v176, v1, 2, 2')
    A('v_lshl_add_u32 v177, v22, 3, v176')
    A('v_bfe_u32 v178, v1, 4, 1')
    A('v_lshlrev_b32 v178, 5, v178')
    A('v_and_b32 v179, 3, v1')
    A('v_lshl_add_u32 v178, v179, 3, v178')
    A('s_and_b32 s30, s24, 2')
    A('v_xor_b32 v179, s30, v176')
    A('v_lshl_add_u32 v15, v179, 6, v178')
    A('v_xor_b32 v179, 1, v179')
    A('v_lshl_add_u32 v16, v179, 6, v178')
    A('v_lshlrev_b32 v179, 8, v177')
    A('v_add_u32 v179, 65536, v179')
    A('v_add_u32 v15, v15, v179')
    A('v_add_u32 v16, v16, v179')
    A('v_lshl_add_u32 v17, v177, 6, v178')
    A('s_add_u32 s30, s36, 131072')
    A('v_add_u32 v17, s30, v17')
    A('s_lshl_b32 s30, s24, 5')
    A('s_add_u32 s30, s30, 147456')
    A('v_lshlrev_b32 v19, 4, v22')
    A('v_add_u32 v19, s30, v19')
    for r in range(80, 176):
        A(f'v_mov_b32 v{r}, 0')
    A('s_mov_b32 s38, 0')

    def reads(slot, st, setb):
        for aa in range(2):
            for rho in range(2):
                A(f'ds_read_b64_tr_b16 {v(setb+4*aa+2*rho,2)}, v{15+aa} offset:{slot*16384+st*4096+rho*1024}')
        for b in range(2):
            A(f'ds_read_b128 {v(setb+8+4*b,4)}, v{11+st} offset:{slot*16384+b*4096}')
    def mf(setb):
        for aa in range(2):
            for b in range(2):
                acc = 80 + 16*(aa*2+b)
                A(f'v_mfma_f32_32x32x16_bf16 {v(acc,16)}, {v(setb+4*aa,4)}, {v(setb+8+4*b,4)}, {v(acc,16)}')

    A('K1_LOOP:')
    for slot in range(4):
        A('s_waitcnt vmcnt(18)')
        A('s_barrier')
        reads(slot, 0, 24)
        reads(slot, 1, 40)
        A('s_lshl_b32 s29, s28, 7')
        A('v_add_u32 v20, s29, v19')
        A('s_add_u32 s28, s28, 1')
        A('s_and_b32 s28, s28, 15')
        if slot == 1:
            A('s_cmp_eq_u32 s38, 3')
            A(f's_cselect_b32 s{SX+2}, 0, s{SX+2}')
            A(f's_cselect_b32 s{SW+2}, 0, s{SW+2}')
            A(f's_cselect_b32 s{SKV+2}, 0, s{SKV+2}')
        dma((slot+3) % 4)
        A('s_waitcnt lgkmcnt(6)')
        mf(24)
        reads(slot, 2, 24)
        A('s_waitcnt lgkmcnt(6)')
        mf(40)
        reads(slot, 3, 40)
        A('s_waitcnt lgkmcnt(6)')
        mf(24)
        for rho in range(2):
            A(f'ds_read_b64_tr_b16 {v(56+2*rho,2)}, v17 offset:{slot*4096+rho*256}')
        A(f'ds_read_b128 v[60:63], v18 offset:{slot*16384}')
        A('ds_read_b128 v[64:67], v20')
        A('s_waitcnt lgkmcnt(4)')
        mf(40)
        A('s_waitcnt lgkmcnt(0)')
        A('v_mfma_f32_32x32x16_bf16 v[144:159], v[56:59], v[60:63], v[144:159]')
        A('v_mfma_f32_32x32x16_bf16 v[160:175], v[64:67], v[60:63], v[160:175]')
    A('s_add_u32 s38, s38, 1')
    A('s_cmp_lt_u32 s38, 4')
    A('s_cbranch_scc1 K1_LOOP')

    A('s_lshl_b32 s29, s26, 2')
    A('s_and_b32 s30, s24, 2')
    A('s_add_u32 s29, s29, s30')
    A('s_lshl_b32 s29, s29, 6')
    A('s_lshl_b32 s30, s25, 2')
    A('s_add_u32 s29, s29, s30')
    A('s_and_b32 s30, s24, 1')
    A('s_lshl_b32 s30, s30, 1')
    A('s_add_u32 s29, s29, s30')
    A('s_lshl_b32 s29, s29, 11')
    A('s_add_u32 s30, s29, 0x20000')
    A('s_waitcnt vmcnt(0)')
    A('s_barrier')
    A('v_lshlrev_b32 v21, 4, v0')
    A('v_lshlrev_b32 v22, 2, v0')
    A('s_nop 7')
    for g4 in range(4):
        A(f'ds_write_b128 v21, {v(144+4*g4,4)} offset:{g4*4096}')
    A('ds_write_b32 v22, v160 offset:16384')
    for aa in range(2):
        for b in range(2):
            acc = 80 + 16*(aa*2+b)
            dst = 24 + 8*(aa*2+b)
            for i in range(8):
                A(f'v_cvt_pk_bf16_f32 v{dst+i}, v{acc+2*i}, v{acc+2*i+1}')
            for f in range(2):
                A(f'buffer_store_dwordx4 {v(dst+4*f,4)}, v10, s[{SWS}:{SWS+3}], s{29+aa} offen offset:{b*2048+f*1024}')
    A('s_waitcnt lgkmcnt(0)')
    A('s_barrier')
    A('s_cmp_ge_u32 s24, 3')
    A('s_cbranch_scc1 K1_END')
    A('s_cmp_eq_u32 s24, 2')
    A('s_cbranch_scc1 K1_GATE')
    A('s_lshr_b32 s29, s26, 3')
    A('s_lshl_b32 s29, s29, 18')
    A('s_lshl_b32 s30, s25, 2')
    A('s_and_b32 s31, s26, 3')
    A('s_add_u32 s30, s30, s31')
    A('s_lshl_b32 s30, s30, 12')
    A('s_add_u32 s29, s29, s30')
    A('s_bfe_u32 s30, s26, 0x10002')
    A('s_lshl_b32 s30, s30, 11')
    A('s_add_u32 s29, s29, s30')
    A('s_add_u32 s29, s29, s36')
    A(f's_add_u32 s29, s29, {WS_KV}')
    A('s_bitcmp1_b32 s26, 2')
    A('s_cbranch_scc1 K1_VT')
    A('s_lshl_b32 s30, s24, 13')
    A('v_add_u32 v21, s30, v10')
    for w in range(4):
        for q in range(2):
            A(f'ds_read_b128 {v(80+8*w+4*q,4)}, v21 offset:{q*4096+w*1024}')
    A(f's_mov_b32 s31, {f32bits(QK_SCALE):#x}')
    A('s_branch K1_KVSUM')
    A('K1_VT:')
    A('v_bfe_u32 v21, v1, 3, 2')
    A('v_lshlrev_b32 v21, 12, v21')
    A('v_bfe_u32 v22, v1, 2, 1')
    A('v_lshl_add_u32 v21, v22, 9, v21')
    A('v_and_b32 v22, 3, v1')
    A('v_lshl_add_u32 v21, v22, 2, v21')
    A('v_lshrrev_b32 v22, 5, v1')
    A('v_lshl_add_u32 v21, v22, 7, v21')
    A('s_lshl_b32 s30, s24, 8')
    A('v_add_u32 v21, s30, v21')
    for w in range(4):
        for i in range(8):
            A(f'ds_read_b32 v{80+8*w+i}, v21 offset:{w*1024+i*16}')
        A('s_waitcnt lgkmcnt(0)')
    A('s_mov_b32 s31, 1.0')
    A('K1_KVSUM:')
    A('s_waitcnt lgkmcnt(0)')
    for i in range(8):
        A(f'v_add_f32 v{80+i}, v{80+i}, v{88+i}')
        A(f'v_add_f32 v{96+i}, v{96+i}, v{104+i}')
    for i in range(8):
        A(f'v_add_f32 v{80+i}, v{80+i}, v{96+i}')
    for i in range(8):
        A(f'v_mul_f32 v{80+i}, s31, v{80+i}')
    for i in range(4):
        A(f'v_cvt_pk_bf16_f32 v{112+i}, v{80+2*i}, v{81+2*i}')
    A(f'buffer_store_dwordx4 v[112:115], v10, s[{SWS}:{SWS+3}], s29 offen')
    A('s_branch K1_END')
    A('K1_GATE:')
    A('s_cmp_ge_u32 s26, 4')
    A('s_cbranch_scc1 K1_END')
    A('v_lshlrev_b32 v21, 2, v1')
    for w in range(4):
        A(f'ds_read_b32 v{80+w}, v21 offset:{16384+w*256}')
    A('s_lshl_b32 s29, s25, 2')
    A('s_add_u32 s29, s29, s26')
    A('s_lshl_b32 s29, s29, 7')
    A(f's_add_u32 s29, s29, {WS_G}')
    A('s_waitcnt lgkmcnt(0)')
    A('v_add_f32 v80, v80, v81')
    A('v_add_f32 v82, v82, v83')
    A('v_add_f32 v80, v80, v82')
    A(f'v_mul_f32 v80, {f32bits(-LOG2E):#x}, v80')
    A('v_exp_f32 v80, v80')
    A('s_nop 0')
    A('v_add_f32 v80, 1.0, v80')
    A('v_rcp_f32 v80, v80')
    A('v_cmp_gt_u32 vcc, 32, v1')
    A('s_and_saveexec_b64 s[40:41], vcc')
    A(f'buffer_store_dword v80, v21, s[{SWS}:{SWS+3}], s29 offen')
    A('K1_END:')
    A('s_endpgm')
    return kd(name, 184, 184)

def k2(A):
    name = 'attn_kernel'
    header(A, name)
    SWS = 4
    SB = 16
    AO, AL, AQ, AK, AV = 0, 64, 80, 112, 144
    A('s_cmp_ge_u32 s2, 256')
    A('s_cbranch_scc1 K2_END')
    A('s_load_dwordx2 s[40:41], s[0:1], 104')
    A('v_lshrrev_b32 v8, 6, v0')
    A('v_and_b32 v1, 63, v0')
    A('v_readfirstlane_b32 s24, v8')
    A('v_lshlrev_b32 v2, 4, v1')
    A('s_and_b32 s25, s2, 1')
    A('s_bfe_u32 s26, s2, 0x20001')
    A('s_lshr_b32 s27, s2, 3')
    A('s_lshl_b32 s28, s25, 5')
    A('s_add_u32 s28, s28, s27')
    A('s_lshl_b32 s29, s26, 4')
    A('s_lshl_b32 s30, s24, 2')
    A('s_add_u32 s29, s29, s30')
    A('s_lshl_b32 s30, s28, 6')
    A('s_add_u32 s30, s30, s29')
    A('s_lshl_b32 s30, s30, 11')
    A('s_add_u32 s31, s30, 4096')
    A('s_lshl_b32 s32, s25, 18')
    A(f's_add_u32 s32, s32, {WS_KV}')
    A('s_lshl_b32 s33, s27, 13')
    A('s_waitcnt lgkmcnt(0)')
    srd(A, SWS, 40, 41, WS_BYTES)
    W = f's[{SWS}:{SWS+3}]'
    def adv():
        return ['s_add_u32 s33, s33, 4096', 's_and_b32 s33, s33, 0x3ffff', 's_add_u32 s34, s32, s33']
    A('s_add_u32 s34, s32, s33')
    A(f'buffer_load_dwordx4 {a(AK,4)}, v2, {W}, s34 offen')
    A(f'buffer_load_dwordx4 {a(AK+4,4)}, v2, {W}, s34 offen offset:1024')
    for t in range(4):
        for f in range(2):
            so = 30 if t < 2 else 31
            A(f'buffer_load_dwordx4 {a(AQ+8*t+4*f,4)}, v2, {W}, s{so} offen offset:{(t%2)*2048+f*1024}')
    A(f'buffer_load_dwordx4 {a(AV,4)}, v2, {W}, s34 offen offset:2048')
    A(f'buffer_load_dwordx4 {a(AV+4,4)}, v2, {W}, s34 offen offset:3072')
    for b in (1, 2):
        for l in adv(): A(l)
        A(f'buffer_load_dwordx4 {a(AK+8*b,4)}, v2, {W}, s34 offen')
        A(f'buffer_load_dwordx4 {a(AK+8*b+4,4)}, v2, {W}, s34 offen offset:1024')
        A(f'buffer_load_dwordx4 {a(AV+8*b,4)}, v2, {W}, s34 offen offset:2048')
        A(f'buffer_load_dwordx4 {a(AV+8*b+4,4)}, v2, {W}, s34 offen offset:3072')
    for l in adv(): A(l)
    A('v_and_b32 v8, 31, v1')
    A('v_lshlrev_b32 v8, 2, v8')
    A('s_lshl_b32 s35, s29, 7')
    A(f's_add_u32 s35, s35, {WS_G}')
    for t in range(4):
        A(f'buffer_load_dword v{12+t}, v8, {W}, s35 offen offset:{t*128}')
    A('v_mov_b32 v3, 0xdddddddd')
    A('v_mov_b32 v9, 0x3f803f80')
    A('v_bfe_u32 v10, v1, 2, 1')
    A('v_cmp_eq_u32 vcc, 0, v10')
    A('s_nop 1')
    A('v_cndmask_b32 v4, 0, v9, vcc')
    A('v_cndmask_b32 v5, 0, v9, vcc')
    A('v_cndmask_b32 v6, v9, 0, vcc')
    A('v_cndmask_b32 v7, v9, 0, vcc')
    for r in range(80):
        A(f'v_accvgpr_write_b32 a{r}, 0')
    for r in range(4):
        A(f'v_accvgpr_write_b32 a{AV+28+r}, 0')
    for r in range(8):
        A(f'v_mov_b32 v{SB+48+8+r}, 0')
    A('s_mov_b32 s36, 16')
    def qk(t, kb, half):
        c = '0' if half == 0 else v(SB+16*t, 16)
        return f'v_mfma_f32_32x32x16_bf16 {v(SB+16*t,16)}, {a(AK+8*kb+4*half,4)}, {a(AQ+8*t+4*half,4)}, {c}'
    def pv(t, vb, half):
        return f'v_smfmac_f32_32x32x32_bf16 {a(AO+16*t,16)}, {a(AV+8*vb+4*half,4)}, {v(SB+16*t+8*half,8)}, v3'
    def sm(t, half):
        return f'v_smfmac_f32_16x16x64_bf16 {a(AL+4*t,4)}, v[4:7], {v(SB+16*t+8*half,8)}, v3'
    def ex(t, i):
        return f'v_exp_f32 v{SB+16*t+i}, v{SB+16*t+i}'
    A('s_waitcnt vmcnt(12)')
    A(qk(0, 0, 0))
    A(qk(0, 0, 1))
    A('s_nop 7')
    A('s_nop 3')
    A('.p2align 6')
    A('K2_LOOP:')
    for i in range(4):
        for t in range(4):
            nt, nb = (t+1) % 4, (i if t < 3 else (i+1) % 4)
            pt, pb = (t-1) % 4, (i if t > 0 else (i-1) % 4)
            lb = (i+3) % 4
            ld = [f'buffer_load_dwordx4 {a(AK+8*lb,4)}, v2, {W}, s34 offen',
                  f'buffer_load_dwordx4 {a(AK+8*lb+4,4)}, v2, {W}, s34 offen offset:1024',
                  f'buffer_load_dwordx4 {a(AV+8*lb,4)}, v2, {W}, s34 offen offset:2048',
                  f'buffer_load_dwordx4 {a(AV+8*lb+4,4)}, v2, {W}, s34 offen offset:3072'][t]
            A(qk(nt, nb, 0))
            for e in (0, 1, 2): A(ex(t, e))
            A(qk(nt, nb, 1))
            for e in (3, 4, 5): A(ex(t, e))
            A(pv(pt, pb, 1))
            A(ld)
            for e in (6, 7, 8): A(ex(t, e))
            A(sm(pt, 1))
            if t == 3: A(adv()[0])
            for e in (9, 10): A(ex(t, e))
            A(pv(t, i, 0))
            if t == 3: A(adv()[1])
            if t == 2 and i == 3: A('s_sub_u32 s36, s36, 1')
            for e in (11, 12, 13): A(ex(t, e))
            A(sm(t, 0))
            if t == 3: A(adv()[2])
            if t == 2: A('s_waitcnt vmcnt(7)')
            if t == 3 and i == 3: A('s_cmp_lg_u32 s36, 0')
            for e in (14, 15): A(ex(t, e))
    A('s_cbranch_scc1 K2_LOOP')
    A('s_nop 1')
    A(pv(3, 3, 1))
    A(sm(3, 1))
    A('s_nop 15')
    A('K2_FIN:')
    A('s_waitcnt vmcnt(0)')
    A('s_cmp_eq_u32 s25, 0')
    A('s_cbranch_scc1 K2_G0')
    for t in range(4):
        A(f'v_sub_f32 v{12+t}, 1.0, v{12+t}')
    A('K2_G0:')
    A('s_lshl_b32 s30, s29, 17')
    A('s_lshl_b32 s31, s28, 11')
    A('s_add_u32 s30, s30, s31')
    A(f's_add_u32 s30, s30, {WS_OF}')
    for t in range(4):
        A(f'v_accvgpr_read_b32 v8, a{AL+4*t}')
        for r in range(16):
            A(f'v_accvgpr_read_b32 v{SB+16*t+r}, a{AO+16*t+r}')
        A('v_rcp_f32 v8, v8')
        A('s_nop 0')
        A(f'v_mul_f32 v8, v8, v{12+t}')
        for r in range(16):
            A(f'v_mul_f32 v{SB+16*t+r}, v{SB+16*t+r}, v8')
        for r in range(8):
            A(f'v_cvt_pk_bf16_f32 v{SB+16*t+r}, v{SB+16*t+2*r}, v{SB+16*t+2*r+1}')
        A(f'buffer_store_dwordx4 {v(SB+16*t,4)}, v2, {W}, s30 offen')
        A(f'buffer_store_dwordx4 {v(SB+16*t+4,4)}, v2, {W}, s30 offen offset:1024')
        A('s_add_u32 s30, s30, 0x20000')
    A('K2_END:')
    A('s_endpgm')
    return kd(name, 256, 80)

K3_LDS = 4*8192
def k3(A):
    name = 'oproj_kernel'
    header(A, name)
    SWS, SWO, SOUT = 4, 8, 12
    A('s_cmp_ge_u32 s2, 256')
    A('s_cbranch_scc1 K3_END')
    A('s_load_dwordx2 s[40:41], s[0:1], 32')
    A('s_load_dwordx2 s[42:43], s[0:1], 72')
    A('s_load_dwordx2 s[44:45], s[0:1], 88')
    A('s_load_dwordx2 s[46:47], s[0:1], 104')
    A('v_lshrrev_b32 v8, 6, v0')
    A('v_and_b32 v1, 63, v0')
    A('v_readfirstlane_b32 s24, v8')
    A('v_lshlrev_b32 v2, 4, v1')
    A('s_bfe_u32 s29, s2, 0x20001')
    A('s_lshl_b32 s29, s29, 2')
    A('s_bfe_u32 s30, s2, 0x20003')
    A('s_add_u32 s25, s29, s30')
    A('s_and_b32 s29, s2, 1')
    A('s_lshl_b32 s31, s29, 3')
    A('s_lshr_b32 s32, s2, 5')
    A('s_add_u32 s26, s31, s32')
    A('s_lshl_b32 s27, s29, 4')
    A('s_lshl_b32 s32, s32, 2')
    A('s_add_u32 s27, s27, s32')
    A('s_add_u32 s27, s27, s30')
    A('s_and_b32 s27, s27, 31')
    A('v_lshrrev_b32 v8, 3, v1')
    A('v_lshlrev_b32 v8, 11, v8')
    A('v_lshrrev_b32 v9, 2, v1')
    A('v_lshrrev_b32 v10, 4, v1')
    A('v_xor_b32 v9, v9, v10')
    A('v_and_b32 v9, 1, v9')
    A('v_lshl_add_u32 v8, v9, 6, v8')
    A('v_and_b32 v9, 3, v1')
    A('v_lshl_add_u32 v3, v9, 4, v8')
    A('v_add_u32 v4, 15360, v3')
    A('s_lshl_b32 s34, s26, 7')
    A('s_lshl_b32 s29, s24, 15')
    A('s_add_u32 s34, s34, s29')
    A('s_lshl_b32 s35, s25, 2')
    A('s_add_u32 s35, s35, s24')
    A('s_lshl_b32 s36, s35, 17')
    A(f's_add_u32 s36, s36, {WS_OF}')
    A('s_lshl_b32 s37, s24, 11')
    A('s_waitcnt lgkmcnt(0)')
    srd(A, SWS, 46, 47, WS_BYTES)
    A('s_and_b32 s41, s41, 0xffff')
    A('s_and_b32 s43, s43, 0xffff')
    A(f's_mov_b32 s{SWO+2}, 0x200000')
    A(f's_mov_b32 s{SWO+3}, 0x20000')
    OB = 32
    def loads(slot):
        A('s_cmp_ge_u32 s27, 16')
        A(f's_cselect_b32 s{SWO}, s42, s40')
        A(f's_cselect_b32 s{SWO+1}, s43, s41')
        A('s_and_b32 s29, s27, 15')
        A('s_lshl_b32 s29, s29, 17')
        A('s_add_u32 s29, s29, s34')
        A(f's_add_u32 m0, s37, {slot*8192}')
        A('s_lshl_b32 s30, s27, 12')
        A(f'buffer_load_dwordx4 v3, s[{SWO}:{SWO+3}], s29 offen lds')
        A(f'buffer_load_dwordx4 v4, s[{SWO}:{SWO+3}], s29 offen offset:1024 lds')
        A('s_add_u32 s30, s30, s36')
        for st in range(4):
            A(f'buffer_load_dwordx4 {v(OB+16*slot+4*st,4)}, v2, s[{SWS}:{SWS+3}], s30 offen offset:{st*1024}')
        A('s_add_u32 s27, s27, 1')
        A('s_and_b32 s27, s27, 31')
    for sl in range(3):
        loads(sl)
    srd(A, SOUT, 44, 45, 4 << 20)
    A('v_bfe_u32 v8, v1, 2, 2')
    A('v_lshrrev_b32 v9, 5, v1')
    A('v_lshl_add_u32 v9, v9, 2, v8')
    A('v_lshlrev_b32 v9, 7, v9')
    A('v_bfe_u32 v10, v1, 4, 1')
    A('v_lshl_add_u32 v9, v10, 5, v9')
    A('v_and_b32 v10, 3, v1')
    A('v_lshl_add_u32 v9, v10, 3, v9')
    A('v_lshrrev_b32 v8, 1, v8')
    A('v_lshl_add_u32 v5, v8, 6, v9')
    A('v_xor_b32 v8, 1, v8')
    A('v_lshl_add_u32 v6, v8, 6, v9')
    ACC = 96
    for r in range(32):
        A(f'v_mov_b32 v{ACC+r}, 0')
    A('s_mov_b32 s38, 0')
    WB = 128
    A('K3_LOOP:')
    for slot in range(4):
        A('s_waitcnt vmcnt(12)')
        A('s_barrier')
        for st in range(4):
            for ct in range(2):
                for rho in range(2):
                    A(f'ds_read_b64_tr_b16 {v(WB+8*st+4*ct+2*rho,2)}, v{5+ct} offset:{slot*8192+st*2048+rho*1024}')
            if st == 2:
                if slot == 1:
                    A('s_cmp_eq_u32 s38, 7')
                    A(f's_cselect_b32 s{SWO+2}, 0, s{SWO+2}')
                    A(f's_cselect_b32 s{SWS+2}, 0, s{SWS+2}')
                loads((slot+3) % 4)
                A('s_waitcnt lgkmcnt(8)')
                for ct in range(2):
                    A(f'v_mfma_f32_32x32x16_bf16 {v(ACC+16*ct,16)}, {v(WB+4*ct,4)}, {v(OB+16*slot,4)}, {v(ACC+16*ct,16)}')
        for st in range(1, 4):
            A(f's_waitcnt lgkmcnt({4*(3-st)})')
            for ct in range(2):
                A(f'v_mfma_f32_32x32x16_bf16 {v(ACC+16*ct,16)}, {v(WB+8*st+4*ct,4)}, {v(OB+16*slot+4*st,4)}, {v(ACC+16*ct,16)}')
    A('s_add_u32 s38, s38, 1')
    A('s_cmp_lt_u32 s38, 8')
    A('s_cbranch_scc1 K3_LOOP')
    A('v_and_b32 v8, 31, v1')
    A('v_lshlrev_b32 v8, 11, v8')
    A('v_lshrrev_b32 v9, 5, v1')
    A('v_lshl_add_u32 v8, v9, 3, v8')
    A('s_lshl_b32 s29, s35, 16')
    A('s_lshl_b32 s30, s26, 7')
    A('s_add_u32 s29, s29, s30')
    A('s_nop 7')
    for ct in range(2):
        for g in range(4):
            b = ACC+16*ct+4*g
            d = WB+8*ct+2*g
            A(f'v_cvt_pk_bf16_f32 v{d}, v{b}, v{b+1}')
            A(f'v_cvt_pk_bf16_f32 v{d+1}, v{b+2}, v{b+3}')
            A(f'buffer_store_dwordx2 {v(d,2)}, v8, s[{SOUT}:{SOUT+3}], s29 offen offset:{ct*64+g*16}')
    A('K3_END:')
    A('s_endpgm')
    return kd(name, 160, 160)

def build():
    ref = open(f'cdna_kernels/{NAME}.s.ref').read().split('\n')
    head = [l for l in ref if l.startswith(';') and '@launch' not in l and 'Override' not in l and 'grid=ceil' not in l]
    out = '\n'.join(head) + '\n'
    out += f'; @launch kernel=qkv_kernel grid=(256,1,1) block=(256,1,1) lds={K1_LDS}\n'
    out += f'; @launch kernel=attn_kernel grid=(256,1,1) block=(256,1,1) lds=0\n'
    out += f'; @launch kernel=oproj_kernel grid=(256,1,1) block=(256,1,1) lds={K3_LDS}\n'
    out += '.amdgcn_target "amdgcn-amd-amdhsa--gfx950"\n.text\n'
    A = Asm()
    kds = [k1(A), k2(A), k3(A)]
    out += A.text()
    out += '.section .rodata,"a"\n' + ''.join(kds)
    return out

if __name__ == '__main__':
    dst = sys.argv[1] if len(sys.argv) > 1 else f'cdna_kernels/{NAME}.s'
    open(dst, 'w').write(build())
```

```python
import struct

def f32bits(x):
    return struct.unpack('<I', struct.pack('<f', x))[0]

class Asm:
    def __init__(self):
        self.lines = []
    def __call__(self, s):
        for l in s.split('\n'):
            l = l.strip()
            if not l:
                continue
            if l.endswith(':') or l.startswith('.'):
                self.lines.append(l)
            else:
                self.lines.append('    ' + l)
    def c(self, s):
        self.lines.append('    ; ' + s)
    def text(self):
        return '\n'.join(self.lines) + '\n'

def v(i, n=1):
    return f'v{i}' if n == 1 else f'v[{i}:{i+n-1}]'
def a(i, n=1):
    return f'a{i}' if n == 1 else f'a[{i}:{i+n-1}]'
def s(i, n=1):
    return f's{i}' if n == 1 else f's[{i}:{i+n-1}]'

def kd(name, nvgpr, accum, nsgpr=96):
    return f""".p2align 6
.amdhsa_kernel {name}
  .amdhsa_next_free_vgpr {nvgpr}
  .amdhsa_next_free_sgpr {nsgpr}
  .amdhsa_accum_offset {accum}
  .amdhsa_group_segment_fixed_size 0
  .amdhsa_kernarg_size 112
  .amdhsa_user_sgpr_count 2
  .amdhsa_user_sgpr_kernarg_segment_ptr 1
  .amdhsa_system_sgpr_workgroup_id_x 1
.end_amdhsa_kernel
"""

class Cnt:
    def __init__(self, A, name, maxv):
        self.A, self.name, self.maxv = A, name, maxv
        self.q = []
    def issue(self, text, tag):
        self.A(text)
        self.q.append(tag)
    def need(self, *tags):
        last = -1
        for i, t in enumerate(self.q):
            if t in tags:
                last = i
        if last < 0:
            return
        n = len(self.q) - 1 - last
        n = min(n, self.maxv)
        self.A(f's_waitcnt {self.name}({n})')
        self.q = self.q[len(self.q) - n:] if n else []
    def drain(self):
        self.A(f's_waitcnt {self.name}(0)')
        self.q = []
```

```python
import math, sys
from asmlib import *

NAME = 'gated_mix__grouped_kv_mqa__grouped_kv_mqa__prompt'
WS_QF = 0
WS_KV = 8 << 20
WS_G = (8 << 20) + (512 << 10)
WS_OF = 16 << 20
WS_BYTES = 24 << 20
QK_SCALE = math.log2(math.e) / math.sqrt(32.0)
LOG2E = math.log2(math.e)

def srd(A, d, lo, hi, nbytes):
    A(f's_mov_b32 s{d}, s{lo}')
    A(f's_and_b32 s{d+1}, s{hi}, 0xffff')
    A(f's_mov_b32 s{d+2}, {nbytes:#x}')
    A(f's_mov_b32 s{d+3}, 0x20000')

INSTR = False
VAR = ''
WS_DBG = 32 << 20
def stamp_start(A):
    if INSTR:
        A('s_memtime s[60:61]')
        A('s_memrealtime s[62:63]')
def stamp_mid(A, i):
    if INSTR:
        A(f's_memrealtime s[{72+2*i}:{73+2*i}]')
def stamp_end(A, kidx):
    if not INSTR: return
    A('s_waitcnt vmcnt(0) lgkmcnt(0)')
    A('s_memtime s[64:65]')
    A('s_memrealtime s[66:67]')
    A('s_load_dwordx2 s[68:69], s[0:1], 104')
    A('s_getreg_b32 s70, hwreg(HW_REG_HW_ID)')
    A('s_getreg_b32 s71, hwreg(HW_REG_XCC_ID)')
    A('s_waitcnt lgkmcnt(0)')
    A('s_mov_b64 exec, 1')
    A('s_lshl_b32 s80, s2, 2')
    A('s_add_u32 s80, s80, s24')
    A('s_lshl_b32 s80, s80, 6')
    A(f's_add_u32 s80, s80, {WS_DBG + kidx*65536*4}')
    A('v_mov_b32 v0, s80')
    for i,r in enumerate([60,62,64,66,70,71,72,74,76,78]):
        A(f'v_mov_b32 v1, s{r}')
        A(f'global_store_dword v0, v1, s[68:69] offset:{4*i}')
    A('s_waitcnt vmcnt(0)')

WS_DBG2 = 40 << 20
def lstamp(A, vreg, idx):
    if not INSTR: return
    A('s_memrealtime s[60:61]')
    A('s_waitcnt lgkmcnt(0)')
    if isinstance(idx, str):
        A(f's_mov_b32 m0, {idx}')
        A(f'v_writelane_b32 v{vreg}, s60, m0')
    else:
        A(f'v_writelane_b32 v{vreg}, s60, {idx}')
def ldump(A, kidx):
    if not INSTR: return
    A('s_load_dwordx2 s[68:69], s[0:1], 104')
    A('s_lshl_b32 s80, s2, 2')
    A('s_add_u32 s80, s80, s24')
    A('s_lshl_b32 s80, s80, 10')
    A(f's_add_u32 s80, s80, {WS_DBG2 + kidx*(1<<20)}')
    A('v_lshlrev_b32 v0, 2, v1')
    A('v_add_u32 v0, s80, v0')
    A('s_waitcnt lgkmcnt(0)')
    A('global_store_dword v0, v30, s[68:69]')
    A('global_store_dword v0, v31, s[68:69] offset:256')
    A('global_store_dword v0, v32, s[68:69] offset:512')
    A('s_waitcnt vmcnt(0)')

def header(A, name):
    A(f'.globl {name}\n.p2align 8\n.type {name},@function\n{name}:')

K1_SLOT = 36864
K1_RING = 4
K1_GATE = K1_SLOT * K1_RING
K1_LDS = K1_GATE + 2048
def k1(A):
    name = 'qkv_kernel'
    header(A, name)
    SX, SW, SKV, SWS, SG = 4, 8, 12, 16, 20
    A('s_cmp_ge_u32 s2, 256')
    A('s_cbranch_scc1 K1_END2')
    stamp_start(A)
    A('s_load_dwordx4 s[40:43], s[0:1], 0')
    A('s_load_dwordx4 s[44:47], s[0:1], 16')
    A('s_load_dwordx4 s[48:51], s[0:1], 48')
    A('s_load_dwordx2 s[52:53], s[0:1], 64')
    A('s_load_dwordx2 s[54:55], s[0:1], 80')
    A('s_load_dwordx2 s[56:57], s[0:1], 104')
    A('v_lshrrev_b32 v21, 6, v0')
    A('v_and_b32 v1, 63, v0')
    A('v_readfirstlane_b32 s24, v21')
    A('s_and_b32 s29, s2, 1')
    A('s_lshl_b32 s29, s29, 3')
    A('s_bfe_u32 s30, s2, 0x30003')
    A('s_add_u32 s26, s29, s30')
    A('s_bfe_u32 s29, s2, 0x20001')
    A('s_lshl_b32 s31, s29, 2')
    A('s_lshr_b32 s32, s2, 6')
    A('s_add_u32 s25, s31, s32')
    if 'rotfull' in VAR:
        A('s_lshl_b32 s30, s30, 1')
        A('s_and_b32 s33, s2, 1')
        A('s_add_u32 s30, s30, s33')
        A('s_lshl_b32 s32, s32, 2')
        A('s_add_u32 s30, s30, s32')
        A('s_add_u32 s30, s30, s29')
        A('s_and_b32 s27, s30, 15')
    elif 'rot2' in VAR:
        A('s_and_b32 s27, s2, 7')
        A('s_bfe_u32 s30, s2, 0x10003')
        A('s_lshl_b32 s30, s30, 3')
        A('s_add_u32 s27, s27, s30')
    else:
        A('s_and_b32 s27, s2, 7')
        A('s_lshl_b32 s27, s27, 1')
    A('v_lshlrev_b32 v10, 4, v1')
    A('s_cmp_lt_u32 s24, 4')
    A('s_cbranch_scc1 K1_COMPUTE')
    A('s_sub_u32 s24, s24, 4')
    A('v_lshrrev_b32 v21, 3, v1')
    A('v_lshlrev_b32 v21, 11, v21')
    A('v_lshrrev_b32 v22, 4, v1')
    A('v_and_b32 v23, 7, v1')
    A('v_xor_b32 v23, v23, v22')
    A('v_lshl_add_u32 v2, v23, 4, v21')
    A('v_xor_b32 v23, 4, v23')
    A('v_lshl_add_u32 v3, v23, 4, v21')
    A('v_add_u32 v3, 15360, v3')
    A('v_add_u32 v4, 30720, v2')
    A('v_add_u32 v5, 30720, v3')
    A('v_bfe_u32 v23, v1, 2, 2')
    A('v_xor_b32 v23, v23, v22')
    A('v_lshlrev_b32 v23, 6, v23')
    A('v_lshl_add_u32 v23, v22, 11, v23')
    A('v_and_b32 v21, 3, v1')
    A('v_lshl_add_u32 v6, v21, 4, v23')
    A('v_add_u32 v7, 7168, v6')
    A('v_add_u32 v8, 14336, v6')
    A('v_add_u32 v9, 21504, v6')
    A('s_lshl_b32 s34, s25, 18')
    A('s_lshl_b32 s29, s24, 16')
    A('s_add_u32 s34, s34, s29')
    A('s_and_b32 s35, s26, 7')
    A('s_lshl_b32 s35, s35, 8')
    A('s_lshl_b32 s29, s24, 15')
    A('s_add_u32 s35, s35, s29')
    A('s_lshl_b32 s36, s24, 10')
    A('s_lshl_b32 s37, s24, 12')
    A('s_add_u32 s39, s36, 32768')
    A('s_mov_b32 s33, 0')
    A('s_waitcnt lgkmcnt(0)')
    srd(A, SX, 40, 41, 4 << 20)
    A('s_cmp_ge_u32 s26, 8')
    A('s_cselect_b32 s42, s48, s42')
    A('s_cselect_b32 s43, s49, s43')
    A('s_cselect_b32 s44, s50, s44')
    A('s_cselect_b32 s45, s51, s45')
    A('s_cselect_b32 s46, s52, s46')
    A('s_cselect_b32 s47, s53, s47')
    srd(A, SW, 42, 43, 2 << 20)
    A('s_bitcmp1_b32 s26, 2')
    A('s_cselect_b32 s44, s46, s44')
    A('s_cselect_b32 s45, s47, s45')
    srd(A, SKV, 44, 45, 65536)
    srd(A, SG, 54, 55, 2048)
    A('s_and_b32 s29, s36, 1024')
    A(f's_add_u32 m0, s29, {K1_GATE}')
    A('s_mov_b32 s38, 0')
    A(f'buffer_load_dwordx4 v10, s[{SG}:{SG+3}], s29 offen lds')
    A('K1_LLOOP:')
    A('s_bitcmp1_b32 19, s38')
    A('s_cbranch_scc1 K1_LISSUE')
    A('s_cmp_ge_u32 s38, 5')
    A('s_cbranch_scc1 K1_L18')
    A('s_waitcnt vmcnt(9)')
    A('K1_L18:')
    A(f's_waitcnt vmcnt({9*(K1_RING-2)})')
    lstamp(A, 30, 's38')
    A('s_barrier')
    A('K1_LISSUE:')
    lstamp(A, 31, 's38')
    A('s_lshl_b32 s29, s27, 7')
    A('s_add_u32 s29, s29, s34')
    A('s_mov_b32 m0, s37')
    A('s_lshl_b32 s30, s27, 17')
    for i in range(4):
        A(f'buffer_load_dwordx4 v{2+i}, s[{SX}:{SX+3}], s29 offen offset:{i*1024} lds')
    A('s_add_u32 m0, s37, 16384')
    A('s_add_u32 s30, s30, s35')
    A('s_lshl_b32 s31, s27, 12')
    for i in range(4):
        A(f'buffer_load_dwordx4 v{6+i}, s[{SW}:{SW+3}], s30 offen offset:{i*1024} lds')
    A('s_mov_b32 m0, s39')
    A('s_add_u32 s31, s31, s36')
    A(f'buffer_load_dwordx4 v10, s[{SKV}:{SKV+3}], s31 offen lds')
    A('s_add_u32 s27, s27, 1')
    A('s_and_b32 s27, s27, 15')
    A('s_add_u32 s33, s33, 1')
    A(f's_cmp_eq_u32 s33, {K1_RING}')
    A('s_cselect_b32 s33, 0, s33')
    A(f's_cselect_b32 s29, {K1_SLOT*K1_RING}, 0')
    A(f's_add_u32 s37, s37, {K1_SLOT}')
    A(f's_add_u32 s39, s39, {K1_SLOT}')
    A('s_sub_u32 s37, s37, s29')
    A('s_sub_u32 s39, s39, s29')
    lstamp(A, 32, 's38')
    A('s_add_u32 s38, s38, 1')
    A('s_cmp_lt_u32 s38, 16')
    A('s_cbranch_scc1 K1_LLOOP')
    for n in range(K1_RING-2, -1, -1):
        A(f's_waitcnt vmcnt({9*n})')
        lstamp(A, 30, 16+K1_RING-2-n)
        A('s_barrier')
        lstamp(A, 31, 16+K1_RING-2-n)
    ldump(A, 0)
    A('s_endpgm')
    A('K1_COMPUTE:')
    A('s_lshl_b32 s36, s24, 10')
    A('v_and_b32 v21, 31, v1')
    A('v_lshrrev_b32 v22, 5, v1')
    A('v_bfe_u32 v23, v1, 1, 3')
    A('v_xor_b32 v23, v23, v22')
    A('v_lshlrev_b32 v21, 7, v21')
    A('s_and_b32 s29, s24, 1')
    A('s_lshl_b32 s29, s29, 13')
    for st in range(4):
        A(f'v_xor_b32 v176, {2*st}, v23')
        A(f'v_lshl_add_u32 v{11+st}, v176, 4, v21')
    A('s_lshl_b32 s30, s24, 1')
    A('v_xor_b32 v176, s30, v23')
    A('v_lshl_add_u32 v18, v176, 4, v21')
    A('s_and_b32 s30, s26, 3')
    A('s_lshl_b32 s30, s30, 12')
    A('v_add_u32 v18, s30, v18')
    for st in range(4):
        A(f'v_add_u32 v{11+st}, s29, v{11+st}')
    A('v_bfe_u32 v176, v1, 2, 2')
    A('v_lshl_add_u32 v177, v22, 3, v176')
    A('v_bfe_u32 v178, v1, 4, 1')
    A('v_lshlrev_b32 v178, 5, v178')
    A('v_and_b32 v179, 3, v1')
    A('v_lshl_add_u32 v178, v179, 3, v178')
    A('s_and_b32 s30, s24, 2')
    A('v_xor_b32 v179, s30, v176')
    A('v_lshl_add_u32 v15, v179, 6, v178')
    A('v_xor_b32 v179, 1, v179')
    A('v_lshl_add_u32 v16, v179, 6, v178')
    A('v_lshlrev_b32 v179, 8, v177')
    A('v_add_u32 v15, v15, v179')
    A('v_add_u32 v16, v16, v179')
    A('v_lshl_add_u32 v17, v177, 6, v178')
    A('v_add_u32 v17, s36, v17')
    A('s_lshl_b32 s30, s24, 5')
    A(f's_add_u32 s30, s30, {K1_GATE}')
    A('v_lshlrev_b32 v19, 4, v22')
    A('v_add_u32 v19, s30, v19')
    for r in range(80, 176):
        A(f'v_mov_b32 v{r}, 0')
    A('s_mov_b32 s38, 0')
    A('s_mov_b32 s33, 0')
    A(f's_mov_b32 s58, {K1_SLOT}')
    A('s_waitcnt lgkmcnt(0)')
    srd(A, SWS, 56, 57, WS_BYTES)

    L = Cnt(A, 'lgkmcnt', 15)
    def rd_list(st, setb):
        def ra(aa, rho): return (f'ds_read_b64_tr_b16 {v(setb+4*aa+2*rho,2)}, v{15+aa} offset:{16384+st*4096+rho*1024}', (setb, 'A', aa))
        def rb(b): return (f'ds_read_b128 {v(setb+8+4*b,4)}, v{11+st} offset:{b*4096}', (setb, 'B', b))
        return [ra(0,0), ra(0,1), rb(0), rb(1), ra(1,0), ra(1,1)]
    kv_list = [(f'ds_read_b64_tr_b16 {v(56,2)}, v17 offset:32768', 'KW'), (f'ds_read_b64_tr_b16 {v(58,2)}, v17 offset:{32768+256}', 'KW'),
               ('ds_read_b128 v[60:63], v18', 'KX'), ('ds_read_b128 v[64:67], v20', 'KG')]
    def group(setb, rds, per, other=()):
        rds = list(rds); other = list(other); per = list(per)
        for aa in range(2):
            for b in range(2):
                acc = 80 + 16*(aa*2+b)
                L.need((setb, 'A', aa), (setb, 'B', b))
                A(f'v_mfma_f32_32x32x16_bf16 {v(acc,16)}, {v(setb+4*aa,4)}, {v(setb+8+4*b,4)}, {v(acc,16)}')
                for _ in range(per.pop(0)):
                    if rds: L.issue(*rds.pop(0))
                for _ in range(2):
                    if other: A(other.pop(0))
        assert not rds
        for o in other: A(o)

    stamp_mid(A, 0)
    A('s_lshl_b32 s29, s27, 7')
    A('v_add_u32 v20, s29, v19')
    A('s_barrier')
    for r in rd_list(0, 24): L.issue(*r)
    A('K1_LOOP:')
    q0 = list(L.q)
    group(24, rd_list(1, 40) + kv_list[:2], (3, 2, 2, 1),
          ['s_add_u32 s27, s27, 1', 's_and_b32 s27, s27, 15', 's_add_u32 s33, s33, 1', f's_cmp_eq_u32 s33, {K1_RING}',
           's_cselect_b32 s33, 0, s33', f's_cselect_b32 s29, {(-K1_SLOT*(K1_RING-1)) & 0xffffffff:#x}, s58', 's_lshl_b32 s30, s27, 7'])
    group(40, rd_list(2, 24) + kv_list[2:], (3, 2, 2, 1),
          [f'v_add_u32 v{r}, s29, v{r}' for r in (11, 12, 17)])
    group(24, rd_list(3, 40), (3, 3, 0, 0),
          ['', '', '', ''] + [f'v_add_u32 v{r}, s29, v{r}' for r in (13, 14, 15, 16)])
    L.need('KW', 'KX')
    A('v_mfma_f32_32x32x16_bf16 v[144:159], v[56:59], v[60:63], v[144:159]')
    A('v_add_u32 v18, s29, v18')
    A('s_add_u32 s38, s38, 1')
    L.need('KG')
    A('v_mfma_f32_32x32x16_bf16 v[160:175], v[64:67], v[60:63], v[160:175]')
    A('v_add_u32 v20, s30, v19')
    L.drain()
    A('s_barrier')
    group(40, rd_list(0, 24), (3, 3, 0, 0), ['s_cmp_lt_u32 s38, 16'])
    assert L.q == q0
    A('s_cbranch_scc1 K1_LOOP')
    stamp_mid(A, 1)

    A('s_lshl_b32 s29, s26, 2')
    A('s_and_b32 s30, s24, 2')
    A('s_add_u32 s29, s29, s30')
    A('s_lshl_b32 s29, s29, 6')
    A('s_lshl_b32 s30, s25, 2')
    A('s_add_u32 s29, s29, s30')
    A('s_and_b32 s30, s24, 1')
    A('s_lshl_b32 s30, s30, 1')
    A('s_add_u32 s29, s29, s30')
    A('s_lshl_b32 s29, s29, 11')
    A('s_add_u32 s30, s29, 0x20000')
    A('s_waitcnt lgkmcnt(0)')
    A('v_lshlrev_b32 v21, 4, v0')
    A('v_lshlrev_b32 v22, 2, v0')
    A('s_nop 7')
    for g4 in range(4):
        A(f'ds_write_b128 v21, {v(144+4*g4,4)} offset:{g4*4096}')
    A('ds_write_b32 v22, v160 offset:16384')
    for aa in range(2):
        for b in range(2):
            acc = 80 + 16*(aa*2+b)
            dst = 24 + 8*(aa*2+b)
            for i in range(8):
                A(f'v_cvt_pk_bf16_f32 v{dst+i}, v{acc+2*i}, v{acc+2*i+1}')
            for f in range(2):
                A(f'buffer_store_dwordx4 {v(dst+4*f,4)}, v10, s[{SWS}:{SWS+3}], s{29+aa} offen offset:{b*2048+f*1024}')
    A('s_waitcnt lgkmcnt(0)')
    A('s_barrier')
    A('s_cmp_ge_u32 s24, 3')
    A('s_cbranch_scc1 K1_END')
    A('s_cmp_eq_u32 s24, 2')
    A('s_cbranch_scc1 K1_GATE')
    A('s_lshr_b32 s29, s26, 3')
    A('s_lshl_b32 s29, s29, 18')
    A('s_lshl_b32 s30, s25, 2')
    A('s_and_b32 s31, s26, 3')
    A('s_add_u32 s30, s30, s31')
    A('s_lshl_b32 s30, s30, 12')
    A('s_add_u32 s29, s29, s30')
    A('s_bfe_u32 s30, s26, 0x10002')
    A('s_lshl_b32 s30, s30, 11')
    A('s_add_u32 s29, s29, s30')
    A('s_add_u32 s29, s29, s36')
    A(f's_add_u32 s29, s29, {WS_KV}')
    A('s_bitcmp1_b32 s26, 2')
    A('s_cbranch_scc1 K1_VT')
    A('s_lshl_b32 s30, s24, 13')
    A('v_add_u32 v21, s30, v10')
    for w in range(4):
        for q in range(2):
            A(f'ds_read_b128 {v(80+8*w+4*q,4)}, v21 offset:{q*4096+w*1024}')
    A(f's_mov_b32 s31, {f32bits(QK_SCALE):#x}')
    A('s_branch K1_KVSUM')
    A('K1_VT:')
    A('v_bfe_u32 v21, v1, 3, 2')
    A('v_lshlrev_b32 v21, 12, v21')
    A('v_bfe_u32 v22, v1, 2, 1')
    A('v_lshl_add_u32 v21, v22, 9, v21')
    A('v_and_b32 v22, 3, v1')
    A('v_lshl_add_u32 v21, v22, 2, v21')
    A('v_lshrrev_b32 v22, 5, v1')
    A('v_lshl_add_u32 v21, v22, 7, v21')
    A('s_lshl_b32 s30, s24, 8')
    A('v_add_u32 v21, s30, v21')
    for w in range(4):
        for i in range(8):
            A(f'ds_read_b32 v{80+8*w+i}, v21 offset:{w*1024+i*16}')
        A('s_waitcnt lgkmcnt(0)')
    A('s_mov_b32 s31, 1.0')
    A('K1_KVSUM:')
    A('s_waitcnt lgkmcnt(0)')
    for i in range(8):
        A(f'v_add_f32 v{80+i}, v{80+i}, v{88+i}')
        A(f'v_add_f32 v{96+i}, v{96+i}, v{104+i}')
    for i in range(8):
        A(f'v_add_f32 v{80+i}, v{80+i}, v{96+i}')
    for i in range(8):
        A(f'v_mul_f32 v{80+i}, s31, v{80+i}')
    for i in range(4):
        A(f'v_cvt_pk_bf16_f32 v{112+i}, v{80+2*i}, v{81+2*i}')
    A(f'buffer_store_dwordx4 v[112:115], v10, s[{SWS}:{SWS+3}], s29 offen')
    A('s_branch K1_END')
    A('K1_GATE:')
    A('s_cmp_ge_u32 s26, 4')
    A('s_cbranch_scc1 K1_END')
    A('v_lshlrev_b32 v21, 2, v1')
    for w in range(4):
        A(f'ds_read_b32 v{80+w}, v21 offset:{16384+w*256}')
    A('s_lshl_b32 s29, s25, 2')
    A('s_add_u32 s29, s29, s26')
    A('s_lshl_b32 s29, s29, 7')
    A(f's_add_u32 s29, s29, {WS_G}')
    A('s_waitcnt lgkmcnt(0)')
    A('v_add_f32 v80, v80, v81')
    A('v_add_f32 v82, v82, v83')
    A('v_add_f32 v80, v80, v82')
    A(f'v_mul_f32 v80, {f32bits(-LOG2E):#x}, v80')
    A('v_exp_f32 v80, v80')
    A('s_nop 0')
    A('v_add_f32 v80, 1.0, v80')
    A('v_rcp_f32 v80, v80')
    A('v_cmp_gt_u32 vcc, 32, v1')
    A('s_and_saveexec_b64 s[40:41], vcc')
    A(f'buffer_store_dword v80, v21, s[{SWS}:{SWS+3}], s29 offen')
    A('K1_END:')
    stamp_end(A, 0)
    A('K1_END2:')
    A('s_endpgm')
    return kd(name, 184, 184)

def k2(A):
    name = 'attn_kernel'
    header(A, name)
    SWS = 4
    SB = 16
    AO, AL, AQ, AK, AV = 0, 64, 80, 112, 144
    A('s_cmp_ge_u32 s2, 256')
    A('s_cbranch_scc1 K2_END2')
    stamp_start(A)
    A('s_load_dwordx2 s[40:41], s[0:1], 104')
    A('v_lshrrev_b32 v8, 6, v0')
    A('v_and_b32 v1, 63, v0')
    A('v_readfirstlane_b32 s24, v8')
    A('v_lshlrev_b32 v2, 4, v1')
    A('s_and_b32 s25, s2, 1')
    A('s_bfe_u32 s26, s2, 0x20001')
    A('s_lshr_b32 s27, s2, 3')
    A('s_lshl_b32 s28, s25, 5')
    A('s_add_u32 s28, s28, s27')
    A('s_lshl_b32 s29, s26, 4')
    A('s_lshl_b32 s30, s24, 2')
    A('s_add_u32 s29, s29, s30')
    A('s_lshl_b32 s30, s28, 6')
    A('s_add_u32 s30, s30, s29')
    A('s_lshl_b32 s30, s30, 11')
    A('s_add_u32 s31, s30, 4096')
    A('s_lshl_b32 s32, s25, 18')
    A(f's_add_u32 s32, s32, {WS_KV}')
    A('s_lshl_b32 s33, s27, 13')
    A('s_waitcnt lgkmcnt(0)')
    srd(A, SWS, 40, 41, WS_BYTES)
    W = f's[{SWS}:{SWS+3}]'
    def adv():
        return ['s_add_u32 s33, s33, 4096', 's_and_b32 s33, s33, 0x3ffff', 's_add_u32 s34, s32, s33']
    A('s_add_u32 s34, s32, s33')
    A(f'buffer_load_dwordx4 {a(AK,4)}, v2, {W}, s34 offen')
    A(f'buffer_load_dwordx4 {a(AK+4,4)}, v2, {W}, s34 offen offset:1024')
    for t in range(4):
        for f in range(2):
            so = 30 if t < 2 else 31
            A(f'buffer_load_dwordx4 {a(AQ+8*t+4*f,4)}, v2, {W}, s{so} offen offset:{(t%2)*2048+f*1024}')
    A(f'buffer_load_dwordx4 {a(AV,4)}, v2, {W}, s34 offen offset:2048')
    A(f'buffer_load_dwordx4 {a(AV+4,4)}, v2, {W}, s34 offen offset:3072')
    for b in (1, 2):
        for l in adv(): A(l)
        A(f'buffer_load_dwordx4 {a(AK+8*b,4)}, v2, {W}, s34 offen')
        A(f'buffer_load_dwordx4 {a(AK+8*b+4,4)}, v2, {W}, s34 offen offset:1024')
        A(f'buffer_load_dwordx4 {a(AV+8*b,4)}, v2, {W}, s34 offen offset:2048')
        A(f'buffer_load_dwordx4 {a(AV+8*b+4,4)}, v2, {W}, s34 offen offset:3072')
    for l in adv(): A(l)
    A('v_and_b32 v8, 31, v1')
    A('v_lshlrev_b32 v8, 2, v8')
    A('s_lshl_b32 s35, s29, 7')
    A(f's_add_u32 s35, s35, {WS_G}')
    for t in range(4):
        A(f'buffer_load_dword v{12+t}, v8, {W}, s35 offen offset:{t*128}')
    A('v_mov_b32 v3, 0xdddddddd')
    A('v_mov_b32 v9, 0x3f803f80')
    A('v_bfe_u32 v10, v1, 2, 1')
    A('v_cmp_eq_u32 vcc, 0, v10')
    A('s_nop 1')
    A('v_cndmask_b32 v4, 0, v9, vcc')
    A('v_cndmask_b32 v5, 0, v9, vcc')
    A('v_cndmask_b32 v6, v9, 0, vcc')
    A('v_cndmask_b32 v7, v9, 0, vcc')
    if 'sel4' in VAR:
        A('v_and_b32 v10, 3, v1')
        A('v_cmp_eq_u32 vcc, 0, v10')
        A('s_nop 1')
        for r in range(4, 8):
            A(f'v_cndmask_b32 v{r}, 0, v{r}, vcc')
    for r in range(80):
        A(f'v_accvgpr_write_b32 a{r}, 0')
    for r in range(4):
        A(f'v_accvgpr_write_b32 a{AV+28+r}, 0')
    for r in range(8):
        A(f'v_mov_b32 v{SB+48+8+r}, 0')
    A('s_mov_b32 s36, 16')
    def qk(t, kb, half):
        if 'noqk' in VAR: return 's_nop 0'
        c = '0' if half == 0 else v(SB+16*t, 16)
        return f'v_mfma_f32_32x32x16_bf16 {v(SB+16*t,16)}, {a(AK+8*kb+4*half,4)}, {a(AQ+8*t+4*half,4)}, {c}'
    def pv(t, vb, half):
        if 'nopv' in VAR: return 's_nop 0'
        return f'v_smfmac_f32_32x32x32_bf16 {a(AO+16*t,16)}, {a(AV+8*vb+4*half,4)}, {v(SB+16*t+8*half,8)}, v3'
    def sm(t, half):
        if 'nosum' in VAR: return 's_nop 0'
        return f'v_smfmac_f32_16x16x64_bf16 {a(AL+4*t,4)}, v[4:7], {v(SB+16*t+8*half,8)}, v3'
    def ex(t, i):
        if 'noexp' in VAR: return ''
        if 'sepexp' in VAR: return f'v_exp_f32 v{80+i}, v{SB+16*t+i}'
        if 'movexp' in VAR: return f'v_mov_b32 v{SB+16*t+i}, v{SB+16*t+i}'
        return f'v_exp_f32 v{SB+16*t+i}, v{SB+16*t+i}'
    A('s_waitcnt vmcnt(12)')
    A(qk(0, 0, 0))
    A(qk(0, 0, 1))
    A('s_nop 7')
    A('s_nop 3')
    stamp_mid(A,0)
    A('.p2align 6')
    A('K2_LOOP:')
    for i in range(4):
        for t in range(4):
            nt, nb = (t+1) % 4, (i if t < 3 else (i+1) % 4)
            pt, pb = (t-1) % 4, (i if t > 0 else (i-1) % 4)
            lb = (i+3) % 4
            ld = [f'buffer_load_dwordx4 {a(AK+8*lb,4)}, v2, {W}, s34 offen',
                  f'buffer_load_dwordx4 {a(AK+8*lb+4,4)}, v2, {W}, s34 offen offset:1024',
                  f'buffer_load_dwordx4 {a(AV+8*lb,4)}, v2, {W}, s34 offen offset:2048',
                  f'buffer_load_dwordx4 {a(AV+8*lb+4,4)}, v2, {W}, s34 offen offset:3072'][t]
            if 'dense' in VAR:
                PB = 80
                def cv(tt, half, i): return f'v_cvt_pk_bf16_f32 v{PB+8*(tt%2)+4*half+i}, v{SB+16*tt+8*half+2*i}, v{SB+16*tt+8*half+2*i+1}'
                def pvd(tt, vb, half): return f'v_mfma_f32_32x32x16_bf16 {a(AO+16*tt,16)}, {a(AV+8*vb+4*half,4)}, {v(PB+8*(tt%2)+4*half,4)}, {a(AO+16*tt,16)}'
                def smd(tt): return 's_nop 0' if 'nosum' in VAR else f'v_smfmac_f32_16x16x64_bf16 {a(AL+4*tt,4)}, v[4:7], {v(PB+8*(tt%2),8)}, v3'
                A(qk(nt, nb, 0))
                for e in (0, 1): A(ex(t, e))
                A(cv(pt,1,3))
                A(ex(t, 2))
                A(qk(nt, nb, 1))
                A(ex(t, 3)); A(cv(t,0,0)); A(ex(t, 4)); A(cv(t,0,1)); A(ex(t,5))
                A(pvd(pt, pb, 1))
                A(ld)
                A(ex(t, 6)); A(cv(t,0,2)); A(ex(t, 7)); A(ex(t,8))
                A(smd(pt))
                if t == 3: A(adv()[0])
                A(cv(t,0,3)); A(ex(t, 9)); A(ex(t,10))
                A(pvd(t, i, 0))
                if t == 3: A(adv()[1])
                if t == 3: A(adv()[2])
                if t == 2 and i == 3: A('s_sub_u32 s36, s36, 1')
                if t == 2: A('s_waitcnt vmcnt(7)')
                if t == 3 and i == 3: A('s_cmp_lg_u32 s36, 0')
                A(ex(t, 11)); A(cv(t,1,0)); A(ex(t, 12)); A(cv(t,1,1)); A(ex(t,13)); A(ex(t, 14)); A(cv(t,1,2)); A(ex(t,15))
                continue
            A(qk(nt, nb, 0))
            for e in (0, 1, 2): A(ex(t, e))
            A(qk(nt, nb, 1))
            for e in (3, 4, 5): A(ex(t, e))
            A(pv(pt, pb, 1))
            A(ld)
            for e in (6, 7, 8): A(ex(t, e))
            A(sm(pt, 1))
            if t == 3: A(adv()[0])
            for e in (9, 10): A(ex(t, e))
            A(pv(t, i, 0))
            if t == 3: A(adv()[1])
            if t == 2 and i == 3: A('s_sub_u32 s36, s36, 1')
            for e in (11, 12, 13): A(ex(t, e))
            A(sm(t, 0))
            if t == 3: A(adv()[2])
            if t == 2: A('s_waitcnt vmcnt(7)')
            if t == 3 and i == 3: A('s_cmp_lg_u32 s36, 0')
            for e in (14, 15): A(ex(t, e))
    A('s_cbranch_scc1 K2_LOOP')
    stamp_mid(A,1)
    A('s_nop 1')
    A(pv(3, 3, 1))
    A(sm(3, 1))
    A('s_nop 15')
    A('K2_FIN:')
    A('s_waitcnt vmcnt(0)')
    A('s_cmp_eq_u32 s25, 0')
    A('s_cbranch_scc1 K2_G0')
    for t in range(4):
        A(f'v_sub_f32 v{12+t}, 1.0, v{12+t}')
    A('K2_G0:')
    A('s_lshl_b32 s30, s29, 17')
    A('s_lshl_b32 s31, s28, 11')
    A('s_add_u32 s30, s30, s31')
    A(f's_add_u32 s30, s30, {WS_OF}')
    for t in range(4):
        A(f'v_accvgpr_read_b32 v8, a{AL+4*t}')
        for r in range(16):
            A(f'v_accvgpr_read_b32 v{SB+16*t+r}, a{AO+16*t+r}')
        A('v_rcp_f32 v8, v8')
        A('s_nop 0')
        A(f'v_mul_f32 v8, v8, v{12+t}')
        for r in range(16):
            A(f'v_mul_f32 v{SB+16*t+r}, v{SB+16*t+r}, v8')
        for r in range(8):
            A(f'v_cvt_pk_bf16_f32 v{SB+16*t+r}, v{SB+16*t+2*r}, v{SB+16*t+2*r+1}')
        A(f'buffer_store_dwordx4 {v(SB+16*t,4)}, v2, {W}, s30 offen')
        A(f'buffer_store_dwordx4 {v(SB+16*t+4,4)}, v2, {W}, s30 offen offset:1024')
        A('s_add_u32 s30, s30, 0x20000')
    A('K2_END:')
    stamp_end(A, 1)
    A('K2_END2:')
    A('s_endpgm')
    return kd(name, 256, 80)

K3_SLOT = 16384
K3_RING = 4
K3_LDS = 98304
def k3(A):
    name = 'oproj_kernel'
    header(A, name)
    SWS, SWO, SOUT = 4, 8, 12
    A('s_cmp_ge_u32 s2, 256')
    A('s_cbranch_scc1 K3_END2')
    stamp_start(A)
    A('s_load_dwordx2 s[40:41], s[0:1], 32')
    A('s_load_dwordx2 s[42:43], s[0:1], 72')
    A('s_load_dwordx2 s[44:45], s[0:1], 88')
    A('s_load_dwordx2 s[46:47], s[0:1], 104')
    A('v_lshrrev_b32 v8, 6, v0')
    A('v_and_b32 v1, 63, v0')
    A('v_readfirstlane_b32 s24, v8')
    A('v_lshlrev_b32 v2, 4, v1')
    A('s_bfe_u32 s29, s2, 0x20001')
    A('s_lshl_b32 s29, s29, 2')
    A('s_bfe_u32 s30, s2, 0x20003')
    A('s_add_u32 s25, s29, s30')
    A('s_and_b32 s29, s2, 1')
    A('s_lshl_b32 s31, s29, 3')
    A('s_lshr_b32 s32, s2, 5')
    A('s_add_u32 s26, s31, s32')
    if 'k3rotfull' in VAR:
        A('s_lshl_b32 s27, s32, 1')
        A('s_lshl_b32 s30, s30, 2')
        A('s_add_u32 s27, s27, s30')
        A('s_add_u32 s27, s27, s29')
        A('s_and_b32 s27, s27, 15')
    else:
        A('s_and_b32 s32, s2, 6')
        A('s_add_u32 s27, s31, s32')
    A('s_cmp_lt_u32 s24, 4')
    A('s_cbranch_scc1 K3_COMPUTE')
    A('s_sub_u32 s24, s24, 4')
    A('v_lshrrev_b32 v8, 3, v1')
    A('v_lshlrev_b32 v8, 11, v8')
    A('v_lshrrev_b32 v9, 2, v1')
    A('v_lshrrev_b32 v10, 4, v1')
    A('v_xor_b32 v9, v9, v10')
    A('v_and_b32 v9, 1, v9')
    A('v_lshl_add_u32 v8, v9, 6, v8')
    A('v_and_b32 v9, 3, v1')
    A('v_lshl_add_u32 v3, v9, 4, v8')
    A('v_add_u32 v4, 15360, v3')
    A('v_add_u32 v5, 30720, v3')
    A('v_add_u32 v6, 46080, v3')
    A('s_lshl_b32 s34, s26, 7')
    A('s_lshl_b32 s29, s24, 16')
    A('s_add_u32 s34, s34, s29')
    A('s_lshl_b32 s37, s24, 12')
    A('s_mov_b32 s38, 0')
    A('s_waitcnt lgkmcnt(0)')
    A('s_and_b32 s41, s41, 0xffff')
    A('s_and_b32 s43, s43, 0xffff')
    A(f's_mov_b32 s{SWO+2}, 0x200000')
    A(f's_mov_b32 s{SWO+3}, 0x20000')
    A('K3_LLOOP:')
    A('s_bitcmp1_b32 19, s38')
    A('s_cbranch_scc1 K3_LISSUE')
    A('s_cmp_ge_u32 s38, 5')
    A('s_cbranch_scc1 K3_L8')
    A('s_waitcnt vmcnt(4)')
    A('K3_L8:')
    A('s_waitcnt vmcnt(8)')
    lstamp(A, 30, 's38')
    A('s_barrier')
    A('K3_LISSUE:')
    lstamp(A, 31, 's38')
    A('s_cmp_ge_u32 s27, 8')
    A(f's_cselect_b32 s{SWO}, s42, s40')
    A(f's_cselect_b32 s{SWO+1}, s43, s41')
    A('s_and_b32 s29, s27, 7')
    A('s_lshl_b32 s29, s29, 18')
    A('s_mov_b32 m0, s37')
    A('s_add_u32 s29, s29, s34')
    for i in range(4):
        A(f'buffer_load_dwordx4 v{3+i}, s[{SWO}:{SWO+3}], s29 offen offset:{i*1024} lds')
    A('s_add_u32 s27, s27, 1')
    A('s_and_b32 s27, s27, 15')
    A(f's_add_u32 s37, s37, {K3_SLOT}')
    A('s_and_b32 s37, s37, 0xffff')
    lstamp(A, 32, 's38')
    A('s_add_u32 s38, s38, 1')
    A('s_cmp_lt_u32 s38, 16')
    A('s_cbranch_scc1 K3_LLOOP')
    for n in range(2, -1, -1):
        A(f's_waitcnt vmcnt({4*n})')
        lstamp(A, 30, 16+2-n)
        A('s_barrier')
        lstamp(A, 31, 16+2-n)
    ldump(A, 2)
    A('s_endpgm')
    A('K3_COMPUTE:')
    A('s_lshl_b32 s35, s25, 2')
    A('s_add_u32 s35, s35, s24')
    A('s_lshl_b32 s36, s35, 17')
    A(f's_add_u32 s36, s36, {WS_OF}')
    A('s_lshl_b32 s37, s27, 13')
    A('v_add_u32 v3, 4096, v2')
    A('s_waitcnt lgkmcnt(0)')
    srd(A, SWS, 46, 47, WS_BYTES)
    OB = 128
    V = Cnt(A, 'vmcnt', 63)
    L = Cnt(A, 'lgkmcnt', 15)
    def oload(slot, st):
        return (f'buffer_load_dwordx4 {v(OB+32*slot+4*st,4)}, v{2+st//4}, s[{SWS}:{SWS+3}], s30 offen offset:{(st%4)*1024}', ('O', slot, st))
    adv = ['s_add_u32 s37, s37, 8192', 's_and_b32 s37, s37, 0x1ffff', 's_add_u32 s30, s36, s37']
    A(adv[2])
    for sl in range(3):
        for st in range(8): V.issue(*oload(sl, st))
        for x in adv: A(x)
    A('v_bfe_u32 v8, v1, 2, 2')
    A('v_lshrrev_b32 v9, 5, v1')
    A('v_lshl_add_u32 v9, v9, 2, v8')
    A('v_lshlrev_b32 v9, 7, v9')
    A('v_bfe_u32 v10, v1, 4, 1')
    A('v_lshl_add_u32 v9, v10, 5, v9')
    A('v_and_b32 v10, 3, v1')
    A('v_lshl_add_u32 v9, v10, 3, v9')
    A('v_lshrrev_b32 v8, 1, v8')
    A('v_lshl_add_u32 v5, v8, 6, v9')
    A('v_xor_b32 v8, 1, v8')
    A('v_lshl_add_u32 v6, v8, 6, v9')
    ACC = 96
    for r in range(32):
        A(f'v_mov_b32 v{ACC+r}, 0')
    A('s_mov_b32 s38, 0')
    srd(A, SOUT, 44, 45, 4 << 20)
    WB = 32
    def wr(slot, st):
        out = []
        for ct in range(2):
            for rho in range(2):
                out.append((f'ds_read_b64_tr_b16 {v(WB+8*(st%4)+4*ct+2*rho,2)}, v{5+ct} offset:{slot*16384+st*2048+rho*1024}', ('W', st%4, ct)))
        return out
    LA = 2
    stamp_mid(A, 0)
    A('s_barrier')
    for st in range(LA):
        for r in wr(0, st): L.issue(*r)
    A('K3_LOOP:')
    q0, v0 = list(L.q), list(V.q)
    for slot in range(4):
        for st in range(8):
            nst = st + LA
            if nst == 8:
                L.drain()
                A('s_barrier')
            rds = wr(slot, nst) if nst < 8 else wr((slot+1) % 4, nst-8)
            for ct in range(2):
                L.need(('W', st%4, ct))
                V.need(('O', slot, st))
                A(f'v_mfma_f32_32x32x16_bf16 {v(ACC+16*ct,16)}, {v(WB+8*(st%4)+4*ct,4)}, {v(OB+32*slot+4*st,4)}, {v(ACC+16*ct,16)}')
                L.issue(*rds[2*ct]); L.issue(*rds[2*ct+1])
                if ct == 0:
                    if slot == 1 and st == 0:
                        A('s_cmp_eq_u32 s38, 3')
                        A(f's_cselect_b32 s{SWS+2}, 0, s{SWS+2}')
                    V.issue(*oload((slot+3) % 4, st))
                elif st == 7:
                    for x in adv: A(x)
    A('s_add_u32 s38, s38, 1')
    A('s_cmp_lt_u32 s38, 4')
    assert L.q == q0, (L.q, q0)
    assert V.q == v0, (V.q, v0)
    A('s_cbranch_scc1 K3_LOOP')
    stamp_mid(A, 1)
    A('v_and_b32 v8, 31, v1')
    A('v_lshlrev_b32 v8, 11, v8')
    A('v_lshrrev_b32 v9, 5, v1')
    A('v_lshl_add_u32 v8, v9, 3, v8')
    A('s_lshl_b32 s29, s35, 16')
    A('s_lshl_b32 s30, s26, 7')
    A('s_add_u32 s29, s29, s30')
    A('s_nop 7')
    for ct in range(2):
        for g in range(4):
            b = ACC+16*ct+4*g
            d = 80+8*ct+2*g
            A(f'v_cvt_pk_bf16_f32 v{d}, v{b}, v{b+1}')
            A(f'v_cvt_pk_bf16_f32 v{d+1}, v{b+2}, v{b+3}')
            A(f'buffer_store_dwordx2 {v(d,2)}, v8, s[{SOUT}:{SOUT+3}], s29 offen offset:{ct*64+g*16}')
    A('K3_END:')
    stamp_end(A, 2)
    A('K3_END2:')
    A('s_endpgm')
    return kd(name, 256, 256)

def build():
    ref = open(f'cdna_kernels/{NAME}.s.ref').read().split('\n')
    head = [l for l in ref if l.startswith(';') and '@launch' not in l and 'Override' not in l and 'grid=ceil' not in l]
    out = '\n'.join(head) + '\n'
    out += f'; @launch kernel=qkv_kernel grid=(256,1,1) block=(512,1,1) lds={K1_LDS}\n'
    out += f'; @launch kernel=attn_kernel grid=(256,1,1) block=(256,1,1) lds=0\n'
    out += f'; @launch kernel=oproj_kernel grid=(256,1,1) block=(512,1,1) lds={K3_LDS}\n'
    out += '.amdgcn_target "amdgcn-amd-amdhsa--gfx950"\n.text\n'
    A = Asm()
    kds = [k1(A), k2(A), k3(A)]
    out += A.text()
    out += '.section .rodata,"a"\n' + ''.join(kds)
    return out

if __name__ == '__main__':
    args = [x for x in sys.argv[1:] if not x.startswith('--')]
    if '--instr' in sys.argv: INSTR = True
    for x in sys.argv:
        if x.startswith('--var='): VAR = x[6:]
    dst = args[0] if args else f'cdna_kernels/{NAME}.s'
    open(dst, 'w').write(build())
```

```python
import math, sys
from asmlib import *

NAME = 'gated_mix__grouped_kv_mqa__grouped_kv_mqa__prompt'
WS_QF = 0
WS_KV = 8 << 20
WS_G = (8 << 20) + (512 << 10)
WS_OF = 16 << 20
WS_BYTES = 24 << 20
QK_SCALE = math.log2(math.e) / math.sqrt(32.0)
LOG2E = math.log2(math.e)

def srd(A, d, lo, hi, nbytes):
    A(f's_mov_b32 s{d}, s{lo}')
    A(f's_and_b32 s{d+1}, s{hi}, 0xffff')
    A(f's_mov_b32 s{d+2}, {nbytes:#x}')
    A(f's_mov_b32 s{d+3}, 0x20000')

INSTR = False
VAR = ''
WS_DBG = 32 << 20
DBGT = False
def stamp_start(A):
    if DBGT:
        A('s_memrealtime s[62:63]')
    if INSTR:
        A('s_memtime s[60:61]')
        A('s_memrealtime s[62:63]')
def stamp_mid(A, i):
    if INSTR or DBGT:
        A(f's_memrealtime s[{72+2*i}:{73+2*i}]')
def stamp_end(A, kidx):
    if DBGT:
        A('s_waitcnt vmcnt(0) lgkmcnt(0)')
        A('s_memrealtime s[66:67]')
        A('s_load_dwordx2 s[68:69], s[0:1], 96')
        A('s_waitcnt lgkmcnt(0)')
        A('s_mov_b64 exec, 1')
        A('v_mov_b32 v0, 0')
        A(f'v_mov_b32 v1, {kidx+100}')
        A('global_atomic_umax v0, v1, s[68:69]')
        for i, r in enumerate([62, 72, 74, 66]):
            A(f'v_mov_b32 v1, s{r}')
            A('v_not_b32 v2, v1')
            A(f'global_atomic_umax v0, v2, s[68:69] offset:{4+8*i}')
            A(f'global_atomic_umax v0, v1, s[68:69] offset:{8+8*i}')
        A('s_waitcnt vmcnt(0)')
    if not INSTR: return
    A('s_waitcnt vmcnt(0) lgkmcnt(0)')
    A('s_memtime s[64:65]')
    A('s_memrealtime s[66:67]')
    A('s_load_dwordx2 s[68:69], s[0:1], 104')
    A('s_getreg_b32 s70, hwreg(HW_REG_HW_ID)')
    A('s_getreg_b32 s71, hwreg(HW_REG_XCC_ID)')
    A('s_waitcnt lgkmcnt(0)')
    A('s_mov_b64 exec, 1')
    A('s_lshl_b32 s80, s2, 2')
    A('s_add_u32 s80, s80, s24')
    A('s_lshl_b32 s80, s80, 6')
    A(f's_add_u32 s80, s80, {WS_DBG + kidx*65536*4}')
    A('v_mov_b32 v0, s80')
    for i,r in enumerate([60,62,64,66,70,71,72,74,76,78]):
        A(f'v_mov_b32 v1, s{r}')
        A(f'global_store_dword v0, v1, s[68:69] offset:{4*i}')
    A('s_waitcnt vmcnt(0)')

WS_DBG2 = 40 << 20
def lstamp(A, vreg, idx):
    if not INSTR: return
    A('s_memrealtime s[60:61]')
    A('s_waitcnt lgkmcnt(0)')
    if isinstance(idx, str):
        A(f's_mov_b32 m0, {idx}')
        A(f'v_writelane_b32 v{vreg}, s60, m0')
    else:
        A(f'v_writelane_b32 v{vreg}, s60, {idx}')
def ldump(A, kidx):
    if not INSTR: return
    A('s_load_dwordx2 s[68:69], s[0:1], 104')
    A('s_lshl_b32 s80, s2, 2')
    A('s_add_u32 s80, s80, s24')
    A('s_lshl_b32 s80, s80, 10')
    A(f's_add_u32 s80, s80, {WS_DBG2 + kidx*(1<<20)}')
    A('v_lshlrev_b32 v0, 2, v1')
    A('v_add_u32 v0, s80, v0')
    A('s_waitcnt lgkmcnt(0)')
    A('global_store_dword v0, v30, s[68:69]')
    A('global_store_dword v0, v31, s[68:69] offset:256')
    A('global_store_dword v0, v32, s[68:69] offset:512')
    A('s_waitcnt vmcnt(0)')

def header(A, name):
    A(f'.globl {name}\n.p2align 8\n.type {name},@function\n{name}:')

K1_SLOT = 36864
K1_RING = 4
K1_GATE = K1_SLOT * K1_RING
K1_LDS = K1_GATE + 2048
def k1(A):
    name = 'qkv_kernel'
    header(A, name)
    SX, SW, SKV, SWS, SG = 4, 8, 12, 16, 20
    A('s_cmp_ge_u32 s2, 256')
    A('s_cbranch_scc1 K1_END2')
    stamp_start(A)
    A('s_load_dwordx4 s[40:43], s[0:1], 0')
    A('s_load_dwordx4 s[44:47], s[0:1], 16')
    A('s_load_dwordx4 s[48:51], s[0:1], 48')
    A('s_load_dwordx2 s[52:53], s[0:1], 64')
    A('s_load_dwordx2 s[54:55], s[0:1], 80')
    A('s_load_dwordx2 s[56:57], s[0:1], 104')
    A('v_lshrrev_b32 v21, 6, v0')
    A('v_and_b32 v1, 63, v0')
    A('v_readfirstlane_b32 s24, v21')
    A('s_and_b32 s29, s2, 1')
    A('s_lshl_b32 s29, s29, 3')
    A('s_bfe_u32 s30, s2, 0x30003')
    A('s_add_u32 s26, s29, s30')
    A('s_bfe_u32 s29, s2, 0x20001')
    A('s_lshl_b32 s31, s29, 2')
    A('s_lshr_b32 s32, s2, 6')
    A('s_add_u32 s25, s31, s32')
    if 'rotfull' in VAR:
        A('s_lshl_b32 s30, s30, 1')
        A('s_and_b32 s33, s2, 1')
        A('s_add_u32 s30, s30, s33')
        A('s_lshl_b32 s32, s32, 2')
        A('s_add_u32 s30, s30, s32')
        A('s_add_u32 s30, s30, s29')
        A('s_and_b32 s27, s30, 15')
    elif 'rot2' in VAR:
        A('s_and_b32 s27, s2, 7')
        A('s_bfe_u32 s30, s2, 0x10003')
        A('s_lshl_b32 s30, s30, 3')
        A('s_add_u32 s27, s27, s30')
    else:
        A('s_and_b32 s27, s2, 7')
        A('s_lshl_b32 s27, s27, 1')
    A('v_lshlrev_b32 v10, 4, v1')
    A('s_cmp_lt_u32 s24, 4')
    A('s_cbranch_scc1 K1_COMPUTE')
    A('s_sub_u32 s24, s24, 4')
    A('v_lshrrev_b32 v21, 3, v1')
    A('v_lshlrev_b32 v21, 11, v21')
    A('v_lshrrev_b32 v22, 4, v1')
    A('v_and_b32 v23, 7, v1')
    A('v_xor_b32 v23, v23, v22')
    A('v_lshl_add_u32 v2, v23, 4, v21')
    A('v_xor_b32 v23, 4, v23')
    A('v_lshl_add_u32 v3, v23, 4, v21')
    A('v_add_u32 v3, 15360, v3')
    A('v_add_u32 v4, 30720, v2')
    A('v_add_u32 v5, 30720, v3')
    A('v_bfe_u32 v23, v1, 2, 2')
    A('v_xor_b32 v23, v23, v22')
    A('v_lshlrev_b32 v23, 6, v23')
    A('v_lshl_add_u32 v23, v22, 11, v23')
    A('v_and_b32 v21, 3, v1')
    A('v_lshl_add_u32 v6, v21, 4, v23')
    A('v_add_u32 v7, 7168, v6')
    A('v_add_u32 v8, 14336, v6')
    A('v_add_u32 v9, 21504, v6')
    A('s_lshl_b32 s34, s25, 18')
    A('s_lshl_b32 s29, s24, 16')
    A('s_add_u32 s34, s34, s29')
    A('s_and_b32 s35, s26, 7')
    A('s_lshl_b32 s35, s35, 8')
    A('s_lshl_b32 s29, s24, 15')
    A('s_add_u32 s35, s35, s29')
    A('s_lshl_b32 s36, s24, 10')
    A('s_lshl_b32 s37, s24, 12')
    A('s_add_u32 s39, s36, 32768')
    A('s_mov_b32 s33, 0')
    A('s_waitcnt lgkmcnt(0)')
    srd(A, SX, 40, 41, 4 << 20)
    A('s_cmp_ge_u32 s26, 8')
    A('s_cselect_b32 s42, s48, s42')
    A('s_cselect_b32 s43, s49, s43')
    A('s_cselect_b32 s44, s50, s44')
    A('s_cselect_b32 s45, s51, s45')
    A('s_cselect_b32 s46, s52, s46')
    A('s_cselect_b32 s47, s53, s47')
    srd(A, SW, 42, 43, 2 << 20)
    A('s_bitcmp1_b32 s26, 2')
    A('s_cselect_b32 s44, s46, s44')
    A('s_cselect_b32 s45, s47, s45')
    srd(A, SKV, 44, 45, 65536)
    srd(A, SG, 54, 55, 2048)
    A('s_and_b32 s29, s36, 1024')
    A(f's_add_u32 m0, s29, {K1_GATE}')
    A('s_mov_b32 s38, 0')
    A(f'buffer_load_dwordx4 v10, s[{SG}:{SG+3}], s29 offen lds')
    A('K1_LLOOP:')
    A('s_bitcmp1_b32 19, s38')
    A('s_cbranch_scc1 K1_LISSUE')
    A('s_cmp_ge_u32 s38, 5')
    A('s_cbranch_scc1 K1_L18')
    A('s_waitcnt vmcnt(9)')
    A('K1_L18:')
    A(f's_waitcnt vmcnt({9*(K1_RING-2)})')
    lstamp(A, 30, 's38')
    A('s_barrier')
    A('K1_LISSUE:')
    lstamp(A, 31, 's38')
    A('s_lshl_b32 s29, s27, 7')
    A('s_add_u32 s29, s29, s34')
    A('s_mov_b32 m0, s37')
    A('s_lshl_b32 s30, s27, 17')
    for i in range(4):
        A(f'buffer_load_dwordx4 v{2+i}, s[{SX}:{SX+3}], s29 offen offset:{i*1024} lds')
    A('s_add_u32 m0, s37, 16384')
    A('s_add_u32 s30, s30, s35')
    A('s_lshl_b32 s31, s27, 12')
    for i in range(4):
        A(f'buffer_load_dwordx4 v{6+i}, s[{SW}:{SW+3}], s30 offen offset:{i*1024} lds')
    A('s_mov_b32 m0, s39')
    A('s_add_u32 s31, s31, s36')
    A(f'buffer_load_dwordx4 v10, s[{SKV}:{SKV+3}], s31 offen lds')
    A('s_add_u32 s27, s27, 1')
    A('s_and_b32 s27, s27, 15')
    A('s_add_u32 s33, s33, 1')
    A(f's_cmp_eq_u32 s33, {K1_RING}')
    A('s_cselect_b32 s33, 0, s33')
    A(f's_cselect_b32 s29, {K1_SLOT*K1_RING}, 0')
    A(f's_add_u32 s37, s37, {K1_SLOT}')
    A(f's_add_u32 s39, s39, {K1_SLOT}')
    A('s_sub_u32 s37, s37, s29')
    A('s_sub_u32 s39, s39, s29')
    lstamp(A, 32, 's38')
    A('s_add_u32 s38, s38, 1')
    A('s_cmp_lt_u32 s38, 16')
    A('s_cbranch_scc1 K1_LLOOP')
    for n in range(K1_RING-2, -1, -1):
        A(f's_waitcnt vmcnt({9*n})')
        lstamp(A, 30, 16+K1_RING-2-n)
        A('s_barrier')
        lstamp(A, 31, 16+K1_RING-2-n)
    ldump(A, 0)
    A('s_endpgm')
    A('K1_COMPUTE:')
    A('s_lshl_b32 s36, s24, 10')
    A('v_and_b32 v21, 31, v1')
    A('v_lshrrev_b32 v22, 5, v1')
    A('v_bfe_u32 v23, v1, 1, 3')
    A('v_xor_b32 v23, v23, v22')
    A('v_lshlrev_b32 v21, 7, v21')
    A('s_and_b32 s29, s24, 1')
    A('s_lshl_b32 s29, s29, 13')
    for st in range(4):
        A(f'v_xor_b32 v176, {2*st}, v23')
        A(f'v_lshl_add_u32 v{11+st}, v176, 4, v21')
    A('s_lshl_b32 s30, s24, 1')
    A('v_xor_b32 v176, s30, v23')
    A('v_lshl_add_u32 v18, v176, 4, v21')
    A('s_and_b32 s30, s26, 3')
    A('s_lshl_b32 s30, s30, 12')
    A('v_add_u32 v18, s30, v18')
    for st in range(4):
        A(f'v_add_u32 v{11+st}, s29, v{11+st}')
    A('v_bfe_u32 v176, v1, 2, 2')
    A('v_lshl_add_u32 v177, v22, 3, v176')
    A('v_bfe_u32 v178, v1, 4, 1')
    A('v_lshlrev_b32 v178, 5, v178')
    A('v_and_b32 v179, 3, v1')
    A('v_lshl_add_u32 v178, v179, 3, v178')
    A('s_and_b32 s30, s24, 2')
    A('v_xor_b32 v179, s30, v176')
    A('v_lshl_add_u32 v15, v179, 6, v178')
    A('v_xor_b32 v179, 1, v179')
    A('v_lshl_add_u32 v16, v179, 6, v178')
    A('v_lshlrev_b32 v179, 8, v177')
    A('v_add_u32 v15, v15, v179')
    A('v_add_u32 v16, v16, v179')
    A('v_lshl_add_u32 v17, v177, 6, v178')
    A('v_add_u32 v17, s36, v17')
    A('s_lshl_b32 s30, s24, 5')
    A(f's_add_u32 s30, s30, {K1_GATE}')
    A('v_lshlrev_b32 v19, 4, v22')
    A('v_add_u32 v19, s30, v19')
    for r in range(80, 176):
        A(f'v_mov_b32 v{r}, 0')
    A('s_mov_b32 s38, 0')
    A('s_mov_b32 s33, 0')
    A(f's_mov_b32 s58, {K1_SLOT}')
    A('s_waitcnt lgkmcnt(0)')
    srd(A, SWS, 56, 57, WS_BYTES)

    L = Cnt(A, 'lgkmcnt', 15)
    def rd_list(st, setb):
        def ra(aa, rho): return (f'ds_read_b64_tr_b16 {v(setb+4*aa+2*rho,2)}, v{15+aa} offset:{16384+st*4096+rho*1024}', (setb, 'A', aa))
        def rb(b): return (f'ds_read_b128 {v(setb+8+4*b,4)}, v{11+st} offset:{b*4096}', (setb, 'B', b))
        return [ra(0,0), ra(0,1), rb(0), rb(1), ra(1,0), ra(1,1)]
    kv_list = [(f'ds_read_b64_tr_b16 {v(56,2)}, v17 offset:32768', 'KW'), (f'ds_read_b64_tr_b16 {v(58,2)}, v17 offset:{32768+256}', 'KW'),
               ('ds_read_b128 v[60:63], v18', 'KX'), ('ds_read_b128 v[64:67], v20', 'KG')]
    def group(setb, rds, per, other=()):
        rds = list(rds); other = list(other); per = list(per)
        for aa in range(2):
            for b in range(2):
                acc = 80 + 16*(aa*2+b)
                L.need((setb, 'A', aa), (setb, 'B', b))
                A(f'v_mfma_f32_32x32x16_bf16 {v(acc,16)}, {v(setb+4*aa,4)}, {v(setb+8+4*b,4)}, {v(acc,16)}')
                for _ in range(per.pop(0)):
                    if rds: L.issue(*rds.pop(0))
                for _ in range(2):
                    if other: A(other.pop(0))
        assert not rds
        for o in other: A(o)

    stamp_mid(A, 0)
    A('s_lshl_b32 s29, s27, 7')
    A('v_add_u32 v20, s29, v19')
    A('s_barrier')
    for r in rd_list(0, 24): L.issue(*r)
    A('K1_LOOP:')
    q0 = list(L.q)
    group(24, rd_list(1, 40) + kv_list[:2], (3, 2, 2, 1),
          ['s_add_u32 s27, s27, 1', 's_and_b32 s27, s27, 15', 's_add_u32 s33, s33, 1', f's_cmp_eq_u32 s33, {K1_RING}',
           's_cselect_b32 s33, 0, s33', f's_cselect_b32 s29, {(-K1_SLOT*(K1_RING-1)) & 0xffffffff:#x}, s58', 's_lshl_b32 s30, s27, 7'])
    group(40, rd_list(2, 24) + kv_list[2:], (3, 2, 2, 1),
          [f'v_add_u32 v{r}, s29, v{r}' for r in (11, 12, 17)])
    group(24, rd_list(3, 40), (3, 3, 0, 0),
          ['', '', '', ''] + [f'v_add_u32 v{r}, s29, v{r}' for r in (13, 14, 15, 16)])
    L.need('KW', 'KX')
    A('v_mfma_f32_32x32x16_bf16 v[144:159], v[56:59], v[60:63], v[144:159]')
    A('v_add_u32 v18, s29, v18')
    A('s_add_u32 s38, s38, 1')
    L.need('KG')
    A('v_mfma_f32_32x32x16_bf16 v[160:175], v[64:67], v[60:63], v[160:175]')
    A('v_add_u32 v20, s30, v19')
    L.drain()
    A('s_barrier')
    group(40, rd_list(0, 24), (3, 3, 0, 0), ['s_cmp_lt_u32 s38, 16'])
    assert L.q == q0
    A('s_cbranch_scc1 K1_LOOP')
    stamp_mid(A, 1)

    A('s_lshl_b32 s29, s26, 2')
    A('s_and_b32 s30, s24, 2')
    A('s_add_u32 s29, s29, s30')
    A('s_lshl_b32 s29, s29, 6')
    A('s_lshl_b32 s30, s25, 2')
    A('s_add_u32 s29, s29, s30')
    A('s_and_b32 s30, s24, 1')
    A('s_lshl_b32 s30, s30, 1')
    A('s_add_u32 s29, s29, s30')
    A('s_lshl_b32 s29, s29, 11')
    A('s_add_u32 s30, s29, 0x20000')
    A('s_waitcnt lgkmcnt(0)')
    A('v_lshlrev_b32 v21, 4, v0')
    A('v_lshlrev_b32 v22, 2, v0')
    A('s_nop 7')
    for g4 in range(4):
        A(f'ds_write_b128 v21, {v(144+4*g4,4)} offset:{g4*4096}')
    A('ds_write_b32 v22, v160 offset:16384')
    for aa in range(2):
        for b in range(2):
            acc = 80 + 16*(aa*2+b)
            dst = 24 + 8*(aa*2+b)
            for i in range(8):
                A(f'v_cvt_pk_bf16_f32 v{dst+i}, v{acc+2*i}, v{acc+2*i+1}')
            for f in range(2):
                A(f'buffer_store_dwordx4 {v(dst+4*f,4)}, v10, s[{SWS}:{SWS+3}], s{29+aa} offen offset:{b*2048+f*1024}')
    A('s_waitcnt lgkmcnt(0)')
    A('s_barrier')
    A('s_cmp_ge_u32 s24, 3')
    A('s_cbranch_scc1 K1_END')
    A('s_cmp_eq_u32 s24, 2')
    A('s_cbranch_scc1 K1_GATE')
    A('s_lshr_b32 s29, s26, 3')
    A('s_lshl_b32 s29, s29, 18')
    A('s_lshl_b32 s30, s25, 2')
    A('s_and_b32 s31, s26, 3')
    A('s_add_u32 s30, s30, s31')
    A('s_lshl_b32 s30, s30, 12')
    A('s_add_u32 s29, s29, s30')
    A('s_bfe_u32 s30, s26, 0x10002')
    A('s_lshl_b32 s30, s30, 11')
    A('s_add_u32 s29, s29, s30')
    A('s_add_u32 s29, s29, s36')
    A(f's_add_u32 s29, s29, {WS_KV}')
    A('s_bitcmp1_b32 s26, 2')
    A('s_cbranch_scc1 K1_VT')
    A('s_lshl_b32 s30, s24, 13')
    A('v_add_u32 v21, s30, v10')
    for w in range(4):
        for q in range(2):
            A(f'ds_read_b128 {v(80+8*w+4*q,4)}, v21 offset:{q*4096+w*1024}')
    A(f's_mov_b32 s31, {f32bits(QK_SCALE):#x}')
    A('s_branch K1_KVSUM')
    A('K1_VT:')
    A('v_bfe_u32 v21, v1, 3, 2')
    A('v_lshlrev_b32 v21, 12, v21')
    A('v_bfe_u32 v22, v1, 2, 1')
    A('v_lshl_add_u32 v21, v22, 9, v21')
    A('v_and_b32 v22, 3, v1')
    A('v_lshl_add_u32 v21, v22, 2, v21')
    A('v_lshrrev_b32 v22, 5, v1')
    A('v_lshl_add_u32 v21, v22, 7, v21')
    A('s_lshl_b32 s30, s24, 8')
    A('v_add_u32 v21, s30, v21')
    for w in range(4):
        for i in range(8):
            A(f'ds_read_b32 v{80+8*w+i}, v21 offset:{w*1024+i*16}')
        A('s_waitcnt lgkmcnt(0)')
    A('s_mov_b32 s31, 1.0')
    A('K1_KVSUM:')
    A('s_waitcnt lgkmcnt(0)')
    for i in range(8):
        A(f'v_add_f32 v{80+i}, v{80+i}, v{88+i}')
        A(f'v_add_f32 v{96+i}, v{96+i}, v{104+i}')
    for i in range(8):
        A(f'v_add_f32 v{80+i}, v{80+i}, v{96+i}')
    for i in range(8):
        A(f'v_mul_f32 v{80+i}, s31, v{80+i}')
    for i in range(4):
        A(f'v_cvt_pk_bf16_f32 v{112+i}, v{80+2*i}, v{81+2*i}')
    A(f'buffer_store_dwordx4 v[112:115], v10, s[{SWS}:{SWS+3}], s29 offen')
    A('s_branch K1_END')
    A('K1_GATE:')
    A('s_cmp_ge_u32 s26, 4')
    A('s_cbranch_scc1 K1_END')
    A('v_lshlrev_b32 v21, 2, v1')
    for w in range(4):
        A(f'ds_read_b32 v{80+w}, v21 offset:{16384+w*256}')
    A('s_lshl_b32 s29, s25, 2')
    A('s_add_u32 s29, s29, s26')
    A('s_lshl_b32 s29, s29, 7')
    A(f's_add_u32 s29, s29, {WS_G}')
    A('s_waitcnt lgkmcnt(0)')
    A('v_add_f32 v80, v80, v81')
    A('v_add_f32 v82, v82, v83')
    A('v_add_f32 v80, v80, v82')
    A(f'v_mul_f32 v80, {f32bits(-LOG2E):#x}, v80')
    A('v_exp_f32 v80, v80')
    A('s_nop 0')
    A('v_add_f32 v80, 1.0, v80')
    A('v_rcp_f32 v80, v80')
    A('v_cmp_gt_u32 vcc, 32, v1')
    A('s_and_saveexec_b64 s[40:41], vcc')
    A(f'buffer_store_dword v80, v21, s[{SWS}:{SWS+3}], s29 offen')
    A('K1_END:')
    stamp_end(A, 0)
    A('K1_END2:')
    A('s_endpgm')
    return kd(name, 184, 184)

def k2(A):
    name = 'attn_kernel'
    header(A, name)
    SWS = 4
    SB = 16
    AO, AL, AQ, AK, AV = 0, 64, 80, 112, 144
    A('s_cmp_ge_u32 s2, 256')
    A('s_cbranch_scc1 K2_END2')
    stamp_start(A)
    A('s_load_dwordx2 s[40:41], s[0:1], 104')
    A('v_lshrrev_b32 v8, 6, v0')
    A('v_and_b32 v1, 63, v0')
    A('v_readfirstlane_b32 s24, v8')
    A('v_lshlrev_b32 v2, 4, v1')
    A('s_and_b32 s25, s2, 1')
    A('s_bfe_u32 s26, s2, 0x20001')
    A('s_lshr_b32 s27, s2, 3')
    A('s_lshl_b32 s28, s25, 5')
    A('s_add_u32 s28, s28, s27')
    A('s_lshl_b32 s29, s26, 4')
    A('s_lshl_b32 s30, s24, 2')
    A('s_add_u32 s29, s29, s30')
    A('s_lshl_b32 s30, s28, 6')
    A('s_add_u32 s30, s30, s29')
    A('s_lshl_b32 s30, s30, 11')
    A('s_add_u32 s31, s30, 4096')
    A('s_lshl_b32 s32, s25, 18')
    A(f's_add_u32 s32, s32, {WS_KV}')
    A('s_lshl_b32 s33, s27, 13')
    A('s_waitcnt lgkmcnt(0)')
    srd(A, SWS, 40, 41, WS_BYTES)
    W = f's[{SWS}:{SWS+3}]'
    def adv():
        return ['s_add_u32 s33, s33, 4096', 's_and_b32 s33, s33, 0x3ffff', 's_add_u32 s34, s32, s33']
    A('s_add_u32 s34, s32, s33')
    A(f'buffer_load_dwordx4 {a(AK,4)}, v2, {W}, s34 offen')
    A(f'buffer_load_dwordx4 {a(AK+4,4)}, v2, {W}, s34 offen offset:1024')
    for t in range(4):
        for f in range(2):
            so = 30 if t < 2 else 31
            A(f'buffer_load_dwordx4 {a(AQ+8*t+4*f,4)}, v2, {W}, s{so} offen offset:{(t%2)*2048+f*1024}')
    A(f'buffer_load_dwordx4 {a(AV,4)}, v2, {W}, s34 offen offset:2048')
    A(f'buffer_load_dwordx4 {a(AV+4,4)}, v2, {W}, s34 offen offset:3072')
    for b in (1, 2):
        for l in adv(): A(l)
        A(f'buffer_load_dwordx4 {a(AK+8*b,4)}, v2, {W}, s34 offen')
        A(f'buffer_load_dwordx4 {a(AK+8*b+4,4)}, v2, {W}, s34 offen offset:1024')
        A(f'buffer_load_dwordx4 {a(AV+8*b,4)}, v2, {W}, s34 offen offset:2048')
        A(f'buffer_load_dwordx4 {a(AV+8*b+4,4)}, v2, {W}, s34 offen offset:3072')
    for l in adv(): A(l)
    A('v_and_b32 v8, 31, v1')
    A('v_lshlrev_b32 v8, 2, v8')
    A('s_lshl_b32 s35, s29, 7')
    A(f's_add_u32 s35, s35, {WS_G}')
    for t in range(4):
        A(f'buffer_load_dword v{12+t}, v8, {W}, s35 offen offset:{t*128}')
    A('v_mov_b32 v3, 0xdddddddd')
    A('v_mov_b32 v9, 0x3f803f80')
    A('v_bfe_u32 v10, v1, 2, 1')
    A('v_cmp_eq_u32 vcc, 0, v10')
    A('s_nop 1')
    A('v_cndmask_b32 v4, 0, v9, vcc')
    A('v_cndmask_b32 v5, 0, v9, vcc')
    A('v_cndmask_b32 v6, v9, 0, vcc')
    A('v_cndmask_b32 v7, v9, 0, vcc')
    if 'sel4' in VAR:
        A('v_and_b32 v10, 3, v1')
        A('v_cmp_eq_u32 vcc, 0, v10')
        A('s_nop 1')
        for r in range(4, 8):
            A(f'v_cndmask_b32 v{r}, 0, v{r}, vcc')
    for r in range(80):
        A(f'v_accvgpr_write_b32 a{r}, 0')
    for r in range(4):
        A(f'v_accvgpr_write_b32 a{AV+28+r}, 0')
    for r in range(8):
        A(f'v_mov_b32 v{SB+48+8+r}, 0')
    A('s_mov_b32 s36, 16')
    def qk(t, kb, half):
        if 'noqk' in VAR: return 's_nop 0'
        c = '0' if half == 0 else v(SB+16*t, 16)
        return f'v_mfma_f32_32x32x16_bf16 {v(SB+16*t,16)}, {a(AK+8*kb+4*half,4)}, {a(AQ+8*t+4*half,4)}, {c}'
    def pv(t, vb, half):
        if 'nopv' in VAR: return 's_nop 0'
        return f'v_smfmac_f32_32x32x32_bf16 {a(AO+16*t,16)}, {a(AV+8*vb+4*half,4)}, {v(SB+16*t+8*half,8)}, v3'
    def sm(t, half):
        if 'nosum' in VAR: return 's_nop 0'
        return f'v_smfmac_f32_16x16x64_bf16 {a(AL+4*t,4)}, v[4:7], {v(SB+16*t+8*half,8)}, v3'
    def ex(t, i):
        if 'noexp' in VAR: return ''
        if 'sepexp' in VAR: return f'v_exp_f32 v{80+i}, v{SB+16*t+i}'
        if 'movexp' in VAR: return f'v_mov_b32 v{SB+16*t+i}, v{SB+16*t+i}'
        return f'v_exp_f32 v{SB+16*t+i}, v{SB+16*t+i}'
    A('s_waitcnt vmcnt(12)')
    A(qk(0, 0, 0))
    A(qk(0, 0, 1))
    A('s_nop 7')
    A('s_nop 3')
    stamp_mid(A,0)
    A('.p2align 6')
    A('K2_LOOP:')
    for i in range(4):
        for t in range(4):
            nt, nb = (t+1) % 4, (i if t < 3 else (i+1) % 4)
            pt, pb = (t-1) % 4, (i if t > 0 else (i-1) % 4)
            lb = (i+3) % 4
            ld = [f'buffer_load_dwordx4 {a(AK+8*lb,4)}, v2, {W}, s34 offen',
                  f'buffer_load_dwordx4 {a(AK+8*lb+4,4)}, v2, {W}, s34 offen offset:1024',
                  f'buffer_load_dwordx4 {a(AV+8*lb,4)}, v2, {W}, s34 offen offset:2048',
                  f'buffer_load_dwordx4 {a(AV+8*lb+4,4)}, v2, {W}, s34 offen offset:3072'][t]
            if 'dense' in VAR:
                PB = 80
                def cv(tt, half, i): return f'v_cvt_pk_bf16_f32 v{PB+8*(tt%2)+4*half+i}, v{SB+16*tt+8*half+2*i}, v{SB+16*tt+8*half+2*i+1}'
                def pvd(tt, vb, half): return f'v_mfma_f32_32x32x16_bf16 {a(AO+16*tt,16)}, {a(AV+8*vb+4*half,4)}, {v(PB+8*(tt%2)+4*half,4)}, {a(AO+16*tt,16)}'
                def smd(tt): return 's_nop 0' if 'nosum' in VAR else f'v_smfmac_f32_16x16x64_bf16 {a(AL+4*tt,4)}, v[4:7], {v(PB+8*(tt%2),8)}, v3'
                A(qk(nt, nb, 0))
                for e in (0, 1): A(ex(t, e))
                A(cv(pt,1,3))
                A(ex(t, 2))
                A(qk(nt, nb, 1))
                A(ex(t, 3)); A(cv(t,0,0)); A(ex(t, 4)); A(cv(t,0,1)); A(ex(t,5))
                A(pvd(pt, pb, 1))
                A(ld)
                A(ex(t, 6)); A(cv(t,0,2)); A(ex(t, 7)); A(ex(t,8))
                A(smd(pt))
                if t == 3: A(adv()[0])
                A(cv(t,0,3)); A(ex(t, 9)); A(ex(t,10))
                A(pvd(t, i, 0))
                if t == 3: A(adv()[1])
                if t == 3: A(adv()[2])
                if t == 2 and i == 3: A('s_sub_u32 s36, s36, 1')
                if t == 2: A('s_waitcnt vmcnt(7)')
                if t == 3 and i == 3: A('s_cmp_lg_u32 s36, 0')
                A(ex(t, 11)); A(cv(t,1,0)); A(ex(t, 12)); A(cv(t,1,1)); A(ex(t,13)); A(ex(t, 14)); A(cv(t,1,2)); A(ex(t,15))
                continue
            A(qk(nt, nb, 0))
            for e in (0, 1, 2): A(ex(t, e))
            A(qk(nt, nb, 1))
            for e in (3, 4, 5): A(ex(t, e))
            A(pv(pt, pb, 1))
            A(ld)
            for e in (6, 7, 8): A(ex(t, e))
            A(sm(pt, 1))
            if t == 3: A(adv()[0])
            for e in (9, 10): A(ex(t, e))
            A(pv(t, i, 0))
            if t == 3: A(adv()[1])
            if t == 2 and i == 3: A('s_sub_u32 s36, s36, 1')
            for e in (11, 12, 13): A(ex(t, e))
            A(sm(t, 0))
            if t == 3: A(adv()[2])
            if t == 2: A('s_waitcnt vmcnt(7)')
            if t == 3 and i == 3: A('s_cmp_lg_u32 s36, 0')
            for e in (14, 15): A(ex(t, e))
    A('s_cbranch_scc1 K2_LOOP')
    stamp_mid(A,1)
    A('s_nop 1')
    A(pv(3, 3, 1))
    A(sm(3, 1))
    A('s_nop 15')
    A('K2_FIN:')
    A('s_waitcnt vmcnt(0)')
    A('s_cmp_eq_u32 s25, 0')
    A('s_cbranch_scc1 K2_G0')
    for t in range(4):
        A(f'v_sub_f32 v{12+t}, 1.0, v{12+t}')
    A('K2_G0:')
    A('s_lshl_b32 s30, s29, 17')
    A('s_lshl_b32 s31, s28, 11')
    A('s_add_u32 s30, s30, s31')
    A(f's_add_u32 s30, s30, {WS_OF}')
    for t in range(4):
        A(f'v_accvgpr_read_b32 v8, a{AL+4*t}')
        for r in range(16):
            A(f'v_accvgpr_read_b32 v{SB+16*t+r}, a{AO+16*t+r}')
        A('v_rcp_f32 v8, v8')
        A('s_nop 0')
        A(f'v_mul_f32 v8, v8, v{12+t}')
        for r in range(16):
            A(f'v_mul_f32 v{SB+16*t+r}, v{SB+16*t+r}, v8')
        for r in range(8):
            A(f'v_cvt_pk_bf16_f32 v{SB+16*t+r}, v{SB+16*t+2*r}, v{SB+16*t+2*r+1}')
        A(f'buffer_store_dwordx4 {v(SB+16*t,4)}, v2, {W}, s30 offen')
        A(f'buffer_store_dwordx4 {v(SB+16*t+4,4)}, v2, {W}, s30 offen offset:1024')
        A('s_add_u32 s30, s30, 0x20000')
    A('K2_END:')
    stamp_end(A, 1)
    A('K2_END2:')
    A('s_endpgm')
    return kd(name, 256, 80)

K3_SLOT = 16384
K3_RING = 4
K3_LDS = 98304
def k3(A):
    name = 'oproj_kernel'
    header(A, name)
    SWS, SWO, SOUT = 4, 8, 12
    A('s_cmp_ge_u32 s2, 256')
    A('s_cbranch_scc1 K3_END2')
    stamp_start(A)
    A('s_load_dwordx2 s[40:41], s[0:1], 32')
    A('s_load_dwordx2 s[42:43], s[0:1], 72')
    A('s_load_dwordx2 s[44:45], s[0:1], 88')
    A('s_load_dwordx2 s[46:47], s[0:1], 104')
    A('v_lshrrev_b32 v8, 6, v0')
    A('v_and_b32 v1, 63, v0')
    A('v_readfirstlane_b32 s24, v8')
    A('v_lshlrev_b32 v2, 4, v1')
    A('s_bfe_u32 s29, s2, 0x20001')
    A('s_lshl_b32 s29, s29, 2')
    A('s_bfe_u32 s30, s2, 0x20003')
    A('s_add_u32 s25, s29, s30')
    A('s_and_b32 s29, s2, 1')
    A('s_lshl_b32 s31, s29, 3')
    A('s_lshr_b32 s32, s2, 5')
    A('s_add_u32 s26, s31, s32')
    if 'k3rotfull' in VAR:
        A('s_lshl_b32 s27, s32, 1')
        A('s_lshl_b32 s30, s30, 2')
        A('s_add_u32 s27, s27, s30')
        A('s_add_u32 s27, s27, s29')
        A('s_and_b32 s27, s27, 15')
    else:
        A('s_and_b32 s32, s2, 6')
        A('s_add_u32 s27, s31, s32')
    A('s_cmp_lt_u32 s24, 4')
    A('s_cbranch_scc1 K3_COMPUTE')
    A('s_sub_u32 s24, s24, 4')
    A('v_lshrrev_b32 v8, 3, v1')
    A('v_lshlrev_b32 v8, 11, v8')
    A('v_lshrrev_b32 v9, 2, v1')
    A('v_lshrrev_b32 v10, 4, v1')
    A('v_xor_b32 v9, v9, v10')
    A('v_and_b32 v9, 1, v9')
    A('v_lshl_add_u32 v8, v9, 6, v8')
    A('v_and_b32 v9, 3, v1')
    A('v_lshl_add_u32 v3, v9, 4, v8')
    A('v_add_u32 v4, 15360, v3')
    A('v_add_u32 v5, 30720, v3')
    A('v_add_u32 v6, 46080, v3')
    A('s_lshl_b32 s34, s26, 7')
    A('s_lshl_b32 s29, s24, 16')
    A('s_add_u32 s34, s34, s29')
    A('s_lshl_b32 s37, s24, 12')
    A('s_mov_b32 s38, 0')
    A('s_waitcnt lgkmcnt(0)')
    A('s_and_b32 s41, s41, 0xffff')
    A('s_and_b32 s43, s43, 0xffff')
    A(f's_mov_b32 s{SWO+2}, 0x200000')
    A(f's_mov_b32 s{SWO+3}, 0x20000')
    A('K3_LLOOP:')
    A('s_bitcmp1_b32 19, s38')
    A('s_cbranch_scc1 K3_LISSUE')
    A('s_cmp_ge_u32 s38, 5')
    A('s_cbranch_scc1 K3_L8')
    A('s_waitcnt vmcnt(4)')
    A('K3_L8:')
    A('s_waitcnt vmcnt(8)')
    lstamp(A, 30, 's38')
    A('s_barrier')
    A('K3_LISSUE:')
    lstamp(A, 31, 's38')
    A('s_cmp_ge_u32 s27, 8')
    A(f's_cselect_b32 s{SWO}, s42, s40')
    A(f's_cselect_b32 s{SWO+1}, s43, s41')
    A('s_and_b32 s29, s27, 7')
    A('s_lshl_b32 s29, s29, 18')
    A('s_mov_b32 m0, s37')
    A('s_add_u32 s29, s29, s34')
    for i in range(4):
        A(f'buffer_load_dwordx4 v{3+i}, s[{SWO}:{SWO+3}], s29 offen offset:{i*1024} lds')
    A('s_add_u32 s27, s27, 1')
    A('s_and_b32 s27, s27, 15')
    A(f's_add_u32 s37, s37, {K3_SLOT}')
    A('s_and_b32 s37, s37, 0xffff')
    lstamp(A, 32, 's38')
    A('s_add_u32 s38, s38, 1')
    A('s_cmp_lt_u32 s38, 16')
    A('s_cbranch_scc1 K3_LLOOP')
    for n in range(2, -1, -1):
        A(f's_waitcnt vmcnt({4*n})')
        lstamp(A, 30, 16+2-n)
        A('s_barrier')
        lstamp(A, 31, 16+2-n)
    ldump(A, 2)
    A('s_endpgm')
    A('K3_COMPUTE:')
    A('s_lshl_b32 s35, s25, 2')
    A('s_add_u32 s35, s35, s24')
    A('s_lshl_b32 s36, s35, 17')
    A(f's_add_u32 s36, s36, {WS_OF}')
    A('s_lshl_b32 s37, s27, 13')
    A('v_add_u32 v3, 4096, v2')
    A('s_waitcnt lgkmcnt(0)')
    srd(A, SWS, 46, 47, WS_BYTES)
    OB = 128
    V = Cnt(A, 'vmcnt', 63)
    L = Cnt(A, 'lgkmcnt', 15)
    def oload(slot, st):
        return (f'buffer_load_dwordx4 {v(OB+32*slot+4*st,4)}, v{2+st//4}, s[{SWS}:{SWS+3}], s30 offen offset:{(st%4)*1024}', ('O', slot, st))
    adv = ['s_add_u32 s37, s37, 8192', 's_and_b32 s37, s37, 0x1ffff', 's_add_u32 s30, s36, s37']
    A(adv[2])
    for sl in range(3):
        for st in range(8): V.issue(*oload(sl, st))
        for x in adv: A(x)
    A('v_bfe_u32 v8, v1, 2, 2')
    A('v_lshrrev_b32 v9, 5, v1')
    A('v_lshl_add_u32 v9, v9, 2, v8')
    A('v_lshlrev_b32 v9, 7, v9')
    A('v_bfe_u32 v10, v1, 4, 1')
    A('v_lshl_add_u32 v9, v10, 5, v9')
    A('v_and_b32 v10, 3, v1')
    A('v_lshl_add_u32 v9, v10, 3, v9')
    A('v_lshrrev_b32 v8, 1, v8')
    A('v_lshl_add_u32 v5, v8, 6, v9')
    A('v_xor_b32 v8, 1, v8')
    A('v_lshl_add_u32 v6, v8, 6, v9')
    ACC = 96
    for r in range(32):
        A(f'v_mov_b32 v{ACC+r}, 0')
    A('s_mov_b32 s38, 0')
    srd(A, SOUT, 44, 45, 4 << 20)
    WB = 32
    def wr(slot, st):
        out = []
        for ct in range(2):
            for rho in range(2):
                out.append((f'ds_read_b64_tr_b16 {v(WB+8*(st%4)+4*ct+2*rho,2)}, v{5+ct} offset:{slot*16384+st*2048+rho*1024}', ('W', st%4, ct)))
        return out
    LA = 2
    stamp_mid(A, 0)
    A('s_barrier')
    for st in range(LA):
        for r in wr(0, st): L.issue(*r)
    A('K3_LOOP:')
    q0, v0 = list(L.q), list(V.q)
    for slot in range(4):
        for st in range(8):
            nst = st + LA
            if nst == 8:
                L.drain()
                A('s_barrier')
            rds = wr(slot, nst) if nst < 8 else wr((slot+1) % 4, nst-8)
            for ct in range(2):
                L.need(('W', st%4, ct))
                V.need(('O', slot, st))
                A(f'v_mfma_f32_32x32x16_bf16 {v(ACC+16*ct,16)}, {v(WB+8*(st%4)+4*ct,4)}, {v(OB+32*slot+4*st,4)}, {v(ACC+16*ct,16)}')
                L.issue(*rds[2*ct]); L.issue(*rds[2*ct+1])
                if ct == 0:
                    if slot == 1 and st == 0:
                        A('s_cmp_eq_u32 s38, 3')
                        A(f's_cselect_b32 s{SWS+2}, 0, s{SWS+2}')
                    V.issue(*oload((slot+3) % 4, st))
                elif st == 7:
                    for x in adv: A(x)
    A('s_add_u32 s38, s38, 1')
    A('s_cmp_lt_u32 s38, 4')
    assert L.q == q0, (L.q, q0)
    assert V.q == v0, (V.q, v0)
    A('s_cbranch_scc1 K3_LOOP')
    stamp_mid(A, 1)
    A('v_and_b32 v8, 31, v1')
    A('v_lshlrev_b32 v8, 11, v8')
    A('v_lshrrev_b32 v9, 5, v1')
    A('v_lshl_add_u32 v8, v9, 3, v8')
    A('s_lshl_b32 s29, s35, 16')
    A('s_lshl_b32 s30, s26, 7')
    A('s_add_u32 s29, s29, s30')
    A('s_nop 7')
    for ct in range(2):
        for g in range(4):
            b = ACC+16*ct+4*g
            d = 80+8*ct+2*g
            A(f'v_cvt_pk_bf16_f32 v{d}, v{b}, v{b+1}')
            A(f'v_cvt_pk_bf16_f32 v{d+1}, v{b+2}, v{b+3}')
            A(f'buffer_store_dwordx2 {v(d,2)}, v8, s[{SOUT}:{SOUT+3}], s29 offen offset:{ct*64+g*16}')
    A('K3_END:')
    stamp_end(A, 2)
    A('K3_END2:')
    A('s_endpgm')
    return kd(name, 256, 256)

def build():
    ref = open(f'cdna_kernels/{NAME}.s.ref').read().split('\n')
    head = [l for l in ref if l.startswith(';') and '@launch' not in l and 'Override' not in l and 'grid=ceil' not in l]
    out = '\n'.join(head) + '\n'
    out += f'; @launch kernel=qkv_kernel grid=(256,1,1) block=(512,1,1) lds={K1_LDS}\n'
    out += f'; @launch kernel=attn_kernel grid=(256,1,1) block=(256,1,1) lds=0\n'
    out += f'; @launch kernel=oproj_kernel grid=(256,1,1) block=(512,1,1) lds={K3_LDS}\n'
    out += '.amdgcn_target "amdgcn-amd-amdhsa--gfx950"\n.text\n'
    A = Asm()
    kds = [k1(A), k2(A), k3(A)]
    out += A.text()
    out += '.section .rodata,"a"\n' + ''.join(kds)
    return out

if __name__ == '__main__':
    args = [x for x in sys.argv[1:] if not x.startswith('--')]
    if '--instr' in sys.argv: INSTR = True
    if '--dbgt' in sys.argv: DBGT = True
    for x in sys.argv:
        if x.startswith('--var='): VAR = x[6:]
    dst = args[0] if args else f'cdna_kernels/{NAME}.s'
    open(dst, 'w').write(build())
```

```python
import math, sys
from asmlib import *

NAME = 'gated_mix__grouped_kv_mqa__grouped_kv_mqa__prompt'
WS_QF = 0
WS_KV = 8 << 20
WS_G = (8 << 20) + (512 << 10)
WS_OF = 16 << 20
WS_BYTES = 24 << 20
QK_SCALE = math.log2(math.e) / math.sqrt(32.0)
LOG2E = math.log2(math.e)

def srd(A, d, lo, hi, nbytes):
    A(f's_mov_b32 s{d}, s{lo}')
    A(f's_and_b32 s{d+1}, s{hi}, 0xffff')
    A(f's_mov_b32 s{d+2}, {nbytes:#x}')
    A(f's_mov_b32 s{d+3}, 0x20000')

INSTR = False
VAR = ''
WS_DBG = 32 << 20
DBGT = False
def stamp_start(A):
    if DBGT:
        A('s_memrealtime s[62:63]')
    if INSTR:
        A('s_memtime s[60:61]')
        A('s_memrealtime s[62:63]')
def stamp_mid(A, i):
    if INSTR or DBGT:
        A(f's_memrealtime s[{72+2*i}:{73+2*i}]')
def stamp_end(A, kidx):
    if DBGT:
        A('s_waitcnt vmcnt(0) lgkmcnt(0)')
        A('s_add_u32 s80, s2, s24')
        A('s_cmp_lg_u32 s80, 0')
        A(f's_cbranch_scc1 DBGT_SKIP{kidx}')
        A('s_memrealtime s[66:67]')
        A('s_load_dwordx2 s[68:69], s[0:1], 104')
        A('s_load_dwordx2 s[70:71], s[0:1], 96')
        A('s_waitcnt lgkmcnt(0)')
        A('s_mov_b64 exec, 1')
        A(f'v_mov_b32 v0, {WS_DBG}')
        A('v_mov_b32 v4, s62')
        A('v_mov_b32 v5, s72')
        A('v_mov_b32 v6, s74')
        A('v_mov_b32 v7, s66')
        if kidx < 2:
            A(f'global_store_dwordx4 v0, v[4:7], s[68:69] offset:{kidx*16}')
        else:
            A('global_load_dwordx4 v[8:11], v0, s[68:69]')
            A('global_load_dwordx4 v[12:15], v0, s[68:69] offset:16')
            A('v_mov_b32 v0, 0')
            A('s_waitcnt vmcnt(0)')
            for r in (4,5,6,7,9,10,11,12,13,14,15):
                A(f'v_sub_u32 v{r}, v{r}, v8')
            A('global_store_dwordx4 v0, v[8:11], s[70:71]')
            A('global_store_dwordx4 v0, v[12:15], s[70:71] offset:16')
            A('global_store_dwordx4 v0, v[4:7], s[70:71] offset:32')
        A('s_waitcnt vmcnt(0)')
        A(f'DBGT_SKIP{kidx}:')
    if not INSTR: return
    A('s_waitcnt vmcnt(0) lgkmcnt(0)')
    A('s_memtime s[64:65]')
    A('s_memrealtime s[66:67]')
    A('s_load_dwordx2 s[68:69], s[0:1], 104')
    A('s_getreg_b32 s70, hwreg(HW_REG_HW_ID)')
    A('s_getreg_b32 s71, hwreg(HW_REG_XCC_ID)')
    A('s_waitcnt lgkmcnt(0)')
    A('s_mov_b64 exec, 1')
    A('s_lshl_b32 s80, s2, 2')
    A('s_add_u32 s80, s80, s24')
    A('s_lshl_b32 s80, s80, 6')
    A(f's_add_u32 s80, s80, {WS_DBG + kidx*65536*4}')
    A('v_mov_b32 v0, s80')
    for i,r in enumerate([60,62,64,66,70,71,72,74,76,78]):
        A(f'v_mov_b32 v1, s{r}')
        A(f'global_store_dword v0, v1, s[68:69] offset:{4*i}')
    A('s_waitcnt vmcnt(0)')

WS_DBG2 = 40 << 20
def lstamp(A, vreg, idx):
    if not INSTR: return
    A('s_memrealtime s[60:61]')
    A('s_waitcnt lgkmcnt(0)')
    if isinstance(idx, str):
        A(f's_mov_b32 m0, {idx}')
        A(f'v_writelane_b32 v{vreg}, s60, m0')
    else:
        A(f'v_writelane_b32 v{vreg}, s60, {idx}')
def ldump(A, kidx):
    if not INSTR: return
    A('s_load_dwordx2 s[68:69], s[0:1], 104')
    A('s_lshl_b32 s80, s2, 2')
    A('s_add_u32 s80, s80, s24')
    A('s_lshl_b32 s80, s80, 10')
    A(f's_add_u32 s80, s80, {WS_DBG2 + kidx*(1<<20)}')
    A('v_lshlrev_b32 v0, 2, v1')
    A('v_add_u32 v0, s80, v0')
    A('s_waitcnt lgkmcnt(0)')
    A('global_store_dword v0, v30, s[68:69]')
    A('global_store_dword v0, v31, s[68:69] offset:256')
    A('global_store_dword v0, v32, s[68:69] offset:512')
    A('s_waitcnt vmcnt(0)')

def header(A, name):
    A(f'.globl {name}\n.p2align 8\n.type {name},@function\n{name}:')

K1_SLOT = 36864
K1_RING = 4
K1_GATE = K1_SLOT * K1_RING
K1_LDS = K1_GATE + 2048
def k1(A):
    name = 'qkv_kernel'
    header(A, name)
    SX, SW, SKV, SWS, SG = 4, 8, 12, 16, 20
    A('s_cmp_ge_u32 s2, 256')
    A('s_cbranch_scc1 K1_END2')
    stamp_start(A)
    A('s_load_dwordx4 s[40:43], s[0:1], 0')
    A('s_load_dwordx4 s[44:47], s[0:1], 16')
    A('s_load_dwordx4 s[48:51], s[0:1], 48')
    A('s_load_dwordx2 s[52:53], s[0:1], 64')
    A('s_load_dwordx2 s[54:55], s[0:1], 80')
    A('s_load_dwordx2 s[56:57], s[0:1], 104')
    A('v_lshrrev_b32 v21, 6, v0')
    A('v_and_b32 v1, 63, v0')
    A('v_readfirstlane_b32 s24, v21')
    A('s_and_b32 s29, s2, 1')
    A('s_lshl_b32 s29, s29, 3')
    A('s_bfe_u32 s30, s2, 0x30003')
    A('s_add_u32 s26, s29, s30')
    A('s_bfe_u32 s29, s2, 0x20001')
    A('s_lshl_b32 s31, s29, 2')
    A('s_lshr_b32 s32, s2, 6')
    A('s_add_u32 s25, s31, s32')
    if 'rotfull' in VAR:
        A('s_lshl_b32 s30, s30, 1')
        A('s_and_b32 s33, s2, 1')
        A('s_add_u32 s30, s30, s33')
        A('s_lshl_b32 s32, s32, 2')
        A('s_add_u32 s30, s30, s32')
        A('s_add_u32 s30, s30, s29')
        A('s_and_b32 s27, s30, 15')
    elif 'rot2' in VAR:
        A('s_and_b32 s27, s2, 7')
        A('s_bfe_u32 s30, s2, 0x10003')
        A('s_lshl_b32 s30, s30, 3')
        A('s_add_u32 s27, s27, s30')
    else:
        A('s_and_b32 s27, s2, 7')
        A('s_lshl_b32 s27, s27, 1')
    A('v_lshlrev_b32 v10, 4, v1')
    A('s_cmp_lt_u32 s24, 4')
    A('s_cbranch_scc1 K1_COMPUTE')
    A('s_sub_u32 s24, s24, 4')
    A('v_lshrrev_b32 v21, 3, v1')
    A('v_lshlrev_b32 v21, 11, v21')
    A('v_lshrrev_b32 v22, 4, v1')
    A('v_and_b32 v23, 7, v1')
    A('v_xor_b32 v23, v23, v22')
    A('v_lshl_add_u32 v2, v23, 4, v21')
    A('v_xor_b32 v23, 4, v23')
    A('v_lshl_add_u32 v3, v23, 4, v21')
    A('v_add_u32 v3, 15360, v3')
    A('v_add_u32 v4, 30720, v2')
    A('v_add_u32 v5, 30720, v3')
    A('v_bfe_u32 v23, v1, 2, 2')
    A('v_xor_b32 v23, v23, v22')
    A('v_lshlrev_b32 v23, 6, v23')
    A('v_lshl_add_u32 v23, v22, 11, v23')
    A('v_and_b32 v21, 3, v1')
    A('v_lshl_add_u32 v6, v21, 4, v23')
    A('v_add_u32 v7, 7168, v6')
    A('v_add_u32 v8, 14336, v6')
    A('v_add_u32 v9, 21504, v6')
    A('s_lshl_b32 s34, s25, 18')
    A('s_lshl_b32 s29, s24, 16')
    A('s_add_u32 s34, s34, s29')
    A('s_and_b32 s35, s26, 7')
    A('s_lshl_b32 s35, s35, 8')
    A('s_lshl_b32 s29, s24, 15')
    A('s_add_u32 s35, s35, s29')
    A('s_lshl_b32 s36, s24, 10')
    A('s_lshl_b32 s37, s24, 12')
    A('s_add_u32 s39, s36, 32768')
    A('s_mov_b32 s33, 0')
    A('s_waitcnt lgkmcnt(0)')
    srd(A, SX, 40, 41, 4 << 20)
    A('s_cmp_ge_u32 s26, 8')
    A('s_cselect_b32 s42, s48, s42')
    A('s_cselect_b32 s43, s49, s43')
    A('s_cselect_b32 s44, s50, s44')
    A('s_cselect_b32 s45, s51, s45')
    A('s_cselect_b32 s46, s52, s46')
    A('s_cselect_b32 s47, s53, s47')
    srd(A, SW, 42, 43, 2 << 20)
    A('s_bitcmp1_b32 s26, 2')
    A('s_cselect_b32 s44, s46, s44')
    A('s_cselect_b32 s45, s47, s45')
    srd(A, SKV, 44, 45, 65536)
    srd(A, SG, 54, 55, 2048)
    A('s_and_b32 s29, s36, 1024')
    A(f's_add_u32 m0, s29, {K1_GATE}')
    A('s_mov_b32 s38, 0')
    A(f'buffer_load_dwordx4 v10, s[{SG}:{SG+3}], s29 offen lds')
    A('K1_LLOOP:')
    A('s_bitcmp1_b32 19, s38')
    A('s_cbranch_scc1 K1_LISSUE')
    A('s_cmp_ge_u32 s38, 5')
    A('s_cbranch_scc1 K1_L18')
    A('s_waitcnt vmcnt(9)')
    A('K1_L18:')
    A(f's_waitcnt vmcnt({9*(K1_RING-2)})')
    lstamp(A, 30, 's38')
    A('s_barrier')
    A('K1_LISSUE:')
    lstamp(A, 31, 's38')
    A('s_lshl_b32 s29, s27, 7')
    A('s_add_u32 s29, s29, s34')
    A('s_mov_b32 m0, s37')
    A('s_lshl_b32 s30, s27, 17')
    for i in range(4):
        A(f'buffer_load_dwordx4 v{2+i}, s[{SX}:{SX+3}], s29 offen offset:{i*1024} lds')
    A('s_add_u32 m0, s37, 16384')
    A('s_add_u32 s30, s30, s35')
    A('s_lshl_b32 s31, s27, 12')
    for i in range(4):
        A(f'buffer_load_dwordx4 v{6+i}, s[{SW}:{SW+3}], s30 offen offset:{i*1024} lds')
    A('s_mov_b32 m0, s39')
    A('s_add_u32 s31, s31, s36')
    A(f'buffer_load_dwordx4 v10, s[{SKV}:{SKV+3}], s31 offen lds')
    A('s_add_u32 s27, s27, 1')
    A('s_and_b32 s27, s27, 15')
    A('s_add_u32 s33, s33, 1')
    A(f's_cmp_eq_u32 s33, {K1_RING}')
    A('s_cselect_b32 s33, 0, s33')
    A(f's_cselect_b32 s29, {K1_SLOT*K1_RING}, 0')
    A(f's_add_u32 s37, s37, {K1_SLOT}')
    A(f's_add_u32 s39, s39, {K1_SLOT}')
    A('s_sub_u32 s37, s37, s29')
    A('s_sub_u32 s39, s39, s29')
    lstamp(A, 32, 's38')
    A('s_add_u32 s38, s38, 1')
    A('s_cmp_lt_u32 s38, 16')
    A('s_cbranch_scc1 K1_LLOOP')
    for n in range(K1_RING-2, -1, -1):
        A(f's_waitcnt vmcnt({9*n})')
        lstamp(A, 30, 16+K1_RING-2-n)
        A('s_barrier')
        lstamp(A, 31, 16+K1_RING-2-n)
    ldump(A, 0)
    A('s_endpgm')
    A('K1_COMPUTE:')
    A('s_lshl_b32 s36, s24, 10')
    A('v_and_b32 v21, 31, v1')
    A('v_lshrrev_b32 v22, 5, v1')
    A('v_bfe_u32 v23, v1, 1, 3')
    A('v_xor_b32 v23, v23, v22')
    A('v_lshlrev_b32 v21, 7, v21')
    A('s_and_b32 s29, s24, 1')
    A('s_lshl_b32 s29, s29, 13')
    for st in range(4):
        A(f'v_xor_b32 v176, {2*st}, v23')
        A(f'v_lshl_add_u32 v{11+st}, v176, 4, v21')
    A('s_lshl_b32 s30, s24, 1')
    A('v_xor_b32 v176, s30, v23')
    A('v_lshl_add_u32 v18, v176, 4, v21')
    A('s_and_b32 s30, s26, 3')
    A('s_lshl_b32 s30, s30, 12')
    A('v_add_u32 v18, s30, v18')
    for st in range(4):
        A(f'v_add_u32 v{11+st}, s29, v{11+st}')
    A('v_bfe_u32 v176, v1, 2, 2')
    A('v_lshl_add_u32 v177, v22, 3, v176')
    A('v_bfe_u32 v178, v1, 4, 1')
    A('v_lshlrev_b32 v178, 5, v178')
    A('v_and_b32 v179, 3, v1')
    A('v_lshl_add_u32 v178, v179, 3, v178')
    A('s_and_b32 s30, s24, 2')
    A('v_xor_b32 v179, s30, v176')
    A('v_lshl_add_u32 v15, v179, 6, v178')
    A('v_xor_b32 v179, 1, v179')
    A('v_lshl_add_u32 v16, v179, 6, v178')
    A('v_lshlrev_b32 v179, 8, v177')
    A('v_add_u32 v15, v15, v179')
    A('v_add_u32 v16, v16, v179')
    A('v_lshl_add_u32 v17, v177, 6, v178')
    A('v_add_u32 v17, s36, v17')
    A('s_lshl_b32 s30, s24, 5')
    A(f's_add_u32 s30, s30, {K1_GATE}')
    A('v_lshlrev_b32 v19, 4, v22')
    A('v_add_u32 v19, s30, v19')
    for r in range(80, 176):
        A(f'v_mov_b32 v{r}, 0')
    A('s_mov_b32 s38, 0')
    A('s_mov_b32 s33, 0')
    A(f's_mov_b32 s58, {K1_SLOT}')
    A('s_waitcnt lgkmcnt(0)')
    srd(A, SWS, 56, 57, WS_BYTES)

    L = Cnt(A, 'lgkmcnt', 15)
    def rd_list(st, setb):
        def ra(aa, rho): return (f'ds_read_b64_tr_b16 {v(setb+4*aa+2*rho,2)}, v{15+aa} offset:{16384+st*4096+rho*1024}', (setb, 'A', aa))
        def rb(b): return (f'ds_read_b128 {v(setb+8+4*b,4)}, v{11+st} offset:{b*4096}', (setb, 'B', b))
        return [ra(0,0), ra(0,1), rb(0), rb(1), ra(1,0), ra(1,1)]
    kv_list = [(f'ds_read_b64_tr_b16 {v(56,2)}, v17 offset:32768', 'KW'), (f'ds_read_b64_tr_b16 {v(58,2)}, v17 offset:{32768+256}', 'KW'),
               ('ds_read_b128 v[60:63], v18', 'KX'), ('ds_read_b128 v[64:67], v20', 'KG')]
    def group(setb, rds, per, other=()):
        rds = list(rds); other = list(other); per = list(per)
        for aa in range(2):
            for b in range(2):
                acc = 80 + 16*(aa*2+b)
                L.need((setb, 'A', aa), (setb, 'B', b))
                A(f'v_mfma_f32_32x32x16_bf16 {v(acc,16)}, {v(setb+4*aa,4)}, {v(setb+8+4*b,4)}, {v(acc,16)}')
                for _ in range(per.pop(0)):
                    if rds: L.issue(*rds.pop(0))
                for _ in range(2):
                    if other: A(other.pop(0))
        assert not rds
        for o in other: A(o)

    stamp_mid(A, 0)
    A('s_lshl_b32 s29, s27, 7')
    A('v_add_u32 v20, s29, v19')
    A('s_barrier')
    for r in rd_list(0, 24): L.issue(*r)
    A('K1_LOOP:')
    q0 = list(L.q)
    group(24, rd_list(1, 40) + kv_list[:2], (3, 2, 2, 1),
          ['s_add_u32 s27, s27, 1', 's_and_b32 s27, s27, 15', 's_add_u32 s33, s33, 1', f's_cmp_eq_u32 s33, {K1_RING}',
           's_cselect_b32 s33, 0, s33', f's_cselect_b32 s29, {(-K1_SLOT*(K1_RING-1)) & 0xffffffff:#x}, s58', 's_lshl_b32 s30, s27, 7'])
    group(40, rd_list(2, 24) + kv_list[2:], (3, 2, 2, 1),
          [f'v_add_u32 v{r}, s29, v{r}' for r in (11, 12, 17)])
    group(24, rd_list(3, 40), (3, 3, 0, 0),
          ['', '', '', ''] + [f'v_add_u32 v{r}, s29, v{r}' for r in (13, 14, 15, 16)])
    L.need('KW', 'KX')
    A('v_mfma_f32_32x32x16_bf16 v[144:159], v[56:59], v[60:63], v[144:159]')
    A('v_add_u32 v18, s29, v18')
    A('s_add_u32 s38, s38, 1')
    L.need('KG')
    A('v_mfma_f32_32x32x16_bf16 v[160:175], v[64:67], v[60:63], v[160:175]')
    A('v_add_u32 v20, s30, v19')
    L.drain()
    A('s_barrier')
    group(40, rd_list(0, 24), (3, 3, 0, 0), ['s_cmp_lt_u32 s38, 16'])
    assert L.q == q0
    A('s_cbranch_scc1 K1_LOOP')
    stamp_mid(A, 1)

    A('s_lshl_b32 s29, s26, 2')
    A('s_and_b32 s30, s24, 2')
    A('s_add_u32 s29, s29, s30')
    A('s_lshl_b32 s29, s29, 6')
    A('s_lshl_b32 s30, s25, 2')
    A('s_add_u32 s29, s29, s30')
    A('s_and_b32 s30, s24, 1')
    A('s_lshl_b32 s30, s30, 1')
    A('s_add_u32 s29, s29, s30')
    A('s_lshl_b32 s29, s29, 11')
    A('s_add_u32 s30, s29, 0x20000')
    A('s_waitcnt lgkmcnt(0)')
    A('v_lshlrev_b32 v21, 4, v0')
    A('v_lshlrev_b32 v22, 2, v0')
    A('s_nop 7')
    for g4 in range(4):
        A(f'ds_write_b128 v21, {v(144+4*g4,4)} offset:{g4*4096}')
    A('ds_write_b32 v22, v160 offset:16384')
    for aa in range(2):
        for b in range(2):
            acc = 80 + 16*(aa*2+b)
            dst = 24 + 8*(aa*2+b)
            for i in range(8):
                A(f'v_cvt_pk_bf16_f32 v{dst+i}, v{acc+2*i}, v{acc+2*i+1}')
            for f in range(2):
                A(f'buffer_store_dwordx4 {v(dst+4*f,4)}, v10, s[{SWS}:{SWS+3}], s{29+aa} offen offset:{b*2048+f*1024}')
    A('s_waitcnt lgkmcnt(0)')
    A('s_barrier')
    A('s_cmp_ge_u32 s24, 3')
    A('s_cbranch_scc1 K1_END')
    A('s_cmp_eq_u32 s24, 2')
    A('s_cbranch_scc1 K1_GATE')
    A('s_lshr_b32 s29, s26, 3')
    A('s_lshl_b32 s29, s29, 18')
    A('s_lshl_b32 s30, s25, 2')
    A('s_and_b32 s31, s26, 3')
    A('s_add_u32 s30, s30, s31')
    A('s_lshl_b32 s30, s30, 12')
    A('s_add_u32 s29, s29, s30')
    A('s_bfe_u32 s30, s26, 0x10002')
    A('s_lshl_b32 s30, s30, 11')
    A('s_add_u32 s29, s29, s30')
    A('s_add_u32 s29, s29, s36')
    A(f's_add_u32 s29, s29, {WS_KV}')
    A('s_bitcmp1_b32 s26, 2')
    A('s_cbranch_scc1 K1_VT')
    A('s_lshl_b32 s30, s24, 13')
    A('v_add_u32 v21, s30, v10')
    for w in range(4):
        for q in range(2):
            A(f'ds_read_b128 {v(80+8*w+4*q,4)}, v21 offset:{q*4096+w*1024}')
    A(f's_mov_b32 s31, {f32bits(QK_SCALE):#x}')
    A('s_branch K1_KVSUM')
    A('K1_VT:')
    A('v_bfe_u32 v21, v1, 3, 2')
    A('v_lshlrev_b32 v21, 12, v21')
    A('v_bfe_u32 v22, v1, 2, 1')
    A('v_lshl_add_u32 v21, v22, 9, v21')
    A('v_and_b32 v22, 3, v1')
    A('v_lshl_add_u32 v21, v22, 2, v21')
    A('v_lshrrev_b32 v22, 5, v1')
    A('v_lshl_add_u32 v21, v22, 7, v21')
    A('s_lshl_b32 s30, s24, 8')
    A('v_add_u32 v21, s30, v21')
    for w in range(4):
        for i in range(8):
            A(f'ds_read_b32 v{80+8*w+i}, v21 offset:{w*1024+i*16}')
        A('s_waitcnt lgkmcnt(0)')
    A('s_mov_b32 s31, 1.0')
    A('K1_KVSUM:')
    A('s_waitcnt lgkmcnt(0)')
    for i in range(8):
        A(f'v_add_f32 v{80+i}, v{80+i}, v{88+i}')
        A(f'v_add_f32 v{96+i}, v{96+i}, v{104+i}')
    for i in range(8):
        A(f'v_add_f32 v{80+i}, v{80+i}, v{96+i}')
    for i in range(8):
        A(f'v_mul_f32 v{80+i}, s31, v{80+i}')
    for i in range(4):
        A(f'v_cvt_pk_bf16_f32 v{112+i}, v{80+2*i}, v{81+2*i}')
    A(f'buffer_store_dwordx4 v[112:115], v10, s[{SWS}:{SWS+3}], s29 offen')
    A('s_branch K1_END')
    A('K1_GATE:')
    A('s_cmp_ge_u32 s26, 4')
    A('s_cbranch_scc1 K1_END')
    A('v_lshlrev_b32 v21, 2, v1')
    for w in range(4):
        A(f'ds_read_b32 v{80+w}, v21 offset:{16384+w*256}')
    A('s_lshl_b32 s29, s25, 2')
    A('s_add_u32 s29, s29, s26')
    A('s_lshl_b32 s29, s29, 7')
    A(f's_add_u32 s29, s29, {WS_G}')
    A('s_waitcnt lgkmcnt(0)')
    A('v_add_f32 v80, v80, v81')
    A('v_add_f32 v82, v82, v83')
    A('v_add_f32 v80, v80, v82')
    A(f'v_mul_f32 v80, {f32bits(-LOG2E):#x}, v80')
    A('v_exp_f32 v80, v80')
    A('s_nop 0')
    A('v_add_f32 v80, 1.0, v80')
    A('v_rcp_f32 v80, v80')
    A('v_cmp_gt_u32 vcc, 32, v1')
    A('s_and_saveexec_b64 s[40:41], vcc')
    A(f'buffer_store_dword v80, v21, s[{SWS}:{SWS+3}], s29 offen')
    A('K1_END:')
    stamp_end(A, 0)
    A('K1_END2:')
    A('s_endpgm')
    return kd(name, 184, 184)

def k2(A):
    name = 'attn_kernel'
    header(A, name)
    SWS = 4
    SB = 16
    AO, AL, AQ, AK, AV = 0, 64, 80, 112, 144
    A('s_cmp_ge_u32 s2, 256')
    A('s_cbranch_scc1 K2_END2')
    stamp_start(A)
    A('s_load_dwordx2 s[40:41], s[0:1], 104')
    A('v_lshrrev_b32 v8, 6, v0')
    A('v_and_b32 v1, 63, v0')
    A('v_readfirstlane_b32 s24, v8')
    A('v_lshlrev_b32 v2, 4, v1')
    A('s_and_b32 s25, s2, 1')
    A('s_bfe_u32 s26, s2, 0x20001')
    A('s_lshr_b32 s27, s2, 3')
    A('s_lshl_b32 s28, s25, 5')
    A('s_add_u32 s28, s28, s27')
    A('s_lshl_b32 s29, s26, 4')
    A('s_lshl_b32 s30, s24, 2')
    A('s_add_u32 s29, s29, s30')
    A('s_lshl_b32 s30, s28, 6')
    A('s_add_u32 s30, s30, s29')
    A('s_lshl_b32 s30, s30, 11')
    A('s_add_u32 s31, s30, 4096')
    A('s_lshl_b32 s32, s25, 18')
    A(f's_add_u32 s32, s32, {WS_KV}')
    A('s_lshl_b32 s33, s27, 13')
    A('s_waitcnt lgkmcnt(0)')
    srd(A, SWS, 40, 41, WS_BYTES)
    W = f's[{SWS}:{SWS+3}]'
    def adv():
        return ['s_add_u32 s33, s33, 4096', 's_and_b32 s33, s33, 0x3ffff', 's_add_u32 s34, s32, s33']
    A('s_add_u32 s34, s32, s33')
    A(f'buffer_load_dwordx4 {a(AK,4)}, v2, {W}, s34 offen')
    A(f'buffer_load_dwordx4 {a(AK+4,4)}, v2, {W}, s34 offen offset:1024')
    for t in range(4):
        for f in range(2):
            so = 30 if t < 2 else 31
            A(f'buffer_load_dwordx4 {a(AQ+8*t+4*f,4)}, v2, {W}, s{so} offen offset:{(t%2)*2048+f*1024}')
    A(f'buffer_load_dwordx4 {a(AV,4)}, v2, {W}, s34 offen offset:2048')
    A(f'buffer_load_dwordx4 {a(AV+4,4)}, v2, {W}, s34 offen offset:3072')
    for b in (1, 2):
        for l in adv(): A(l)
        A(f'buffer_load_dwordx4 {a(AK+8*b,4)}, v2, {W}, s34 offen')
        A(f'buffer_load_dwordx4 {a(AK+8*b+4,4)}, v2, {W}, s34 offen offset:1024')
        A(f'buffer_load_dwordx4 {a(AV+8*b,4)}, v2, {W}, s34 offen offset:2048')
        A(f'buffer_load_dwordx4 {a(AV+8*b+4,4)}, v2, {W}, s34 offen offset:3072')
    for l in adv(): A(l)
    A('v_and_b32 v8, 31, v1')
    A('v_lshlrev_b32 v8, 2, v8')
    A('s_lshl_b32 s35, s29, 7')
    A(f's_add_u32 s35, s35, {WS_G}')
    for t in range(4):
        A(f'buffer_load_dword v{12+t}, v8, {W}, s35 offen offset:{t*128}')
    A('v_mov_b32 v3, 0xdddddddd')
    A('v_mov_b32 v9, 0x3f803f80')
    A('v_bfe_u32 v10, v1, 2, 1')
    A('v_cmp_eq_u32 vcc, 0, v10')
    A('s_nop 1')
    A('v_cndmask_b32 v4, 0, v9, vcc')
    A('v_cndmask_b32 v5, 0, v9, vcc')
    A('v_cndmask_b32 v6, v9, 0, vcc')
    A('v_cndmask_b32 v7, v9, 0, vcc')
    if 'sel4' in VAR:
        A('v_and_b32 v10, 3, v1')
        A('v_cmp_eq_u32 vcc, 0, v10')
        A('s_nop 1')
        for r in range(4, 8):
            A(f'v_cndmask_b32 v{r}, 0, v{r}, vcc')
    for r in range(80):
        A(f'v_accvgpr_write_b32 a{r}, 0')
    for r in range(4):
        A(f'v_accvgpr_write_b32 a{AV+28+r}, 0')
    for r in range(8):
        A(f'v_mov_b32 v{SB+48+8+r}, 0')
    A('s_mov_b32 s36, 16')
    def qk(t, kb, half):
        if 'noqk' in VAR: return 's_nop 0'
        c = '0' if half == 0 else v(SB+16*t, 16)
        return f'v_mfma_f32_32x32x16_bf16 {v(SB+16*t,16)}, {a(AK+8*kb+4*half,4)}, {a(AQ+8*t+4*half,4)}, {c}'
    def pv(t, vb, half):
        if 'nopv' in VAR: return 's_nop 0'
        return f'v_smfmac_f32_32x32x32_bf16 {a(AO+16*t,16)}, {a(AV+8*vb+4*half,4)}, {v(SB+16*t+8*half,8)}, v3'
    def sm(t, half):
        if 'nosum' in VAR: return 's_nop 0'
        return f'v_smfmac_f32_16x16x64_bf16 {a(AL+4*t,4)}, v[4:7], {v(SB+16*t+8*half,8)}, v3'
    def ex(t, i):
        if 'noexp' in VAR: return ''
        if 'sepexp' in VAR: return f'v_exp_f32 v{80+i}, v{SB+16*t+i}'
        if 'movexp' in VAR: return f'v_mov_b32 v{SB+16*t+i}, v{SB+16*t+i}'
        return f'v_exp_f32 v{SB+16*t+i}, v{SB+16*t+i}'
    A('s_waitcnt vmcnt(12)')
    A(qk(0, 0, 0))
    A(qk(0, 0, 1))
    A('s_nop 7')
    A('s_nop 3')
    stamp_mid(A,0)
    A('.p2align 6')
    A('K2_LOOP:')
    for i in range(4):
        for t in range(4):
            nt, nb = (t+1) % 4, (i if t < 3 else (i+1) % 4)
            pt, pb = (t-1) % 4, (i if t > 0 else (i-1) % 4)
            lb = (i+3) % 4
            ld = [f'buffer_load_dwordx4 {a(AK+8*lb,4)}, v2, {W}, s34 offen',
                  f'buffer_load_dwordx4 {a(AK+8*lb+4,4)}, v2, {W}, s34 offen offset:1024',
                  f'buffer_load_dwordx4 {a(AV+8*lb,4)}, v2, {W}, s34 offen offset:2048',
                  f'buffer_load_dwordx4 {a(AV+8*lb+4,4)}, v2, {W}, s34 offen offset:3072'][t]
            if 'dense' in VAR:
                PB = 80
                def cv(tt, half, i): return f'v_cvt_pk_bf16_f32 v{PB+8*(tt%2)+4*half+i}, v{SB+16*tt+8*half+2*i}, v{SB+16*tt+8*half+2*i+1}'
                def pvd(tt, vb, half): return f'v_mfma_f32_32x32x16_bf16 {a(AO+16*tt,16)}, {a(AV+8*vb+4*half,4)}, {v(PB+8*(tt%2)+4*half,4)}, {a(AO+16*tt,16)}'
                def smd(tt): return 's_nop 0' if 'nosum' in VAR else f'v_smfmac_f32_16x16x64_bf16 {a(AL+4*tt,4)}, v[4:7], {v(PB+8*(tt%2),8)}, v3'
                A(qk(nt, nb, 0))
                for e in (0, 1): A(ex(t, e))
                A(cv(pt,1,3))
                A(ex(t, 2))
                A(qk(nt, nb, 1))
                A(ex(t, 3)); A(cv(t,0,0)); A(ex(t, 4)); A(cv(t,0,1)); A(ex(t,5))
                A(pvd(pt, pb, 1))
                A(ld)
                A(ex(t, 6)); A(cv(t,0,2)); A(ex(t, 7)); A(ex(t,8))
                A(smd(pt))
                if t == 3: A(adv()[0])
                A(cv(t,0,3)); A(ex(t, 9)); A(ex(t,10))
                A(pvd(t, i, 0))
                if t == 3: A(adv()[1])
                if t == 3: A(adv()[2])
                if t == 2 and i == 3: A('s_sub_u32 s36, s36, 1')
                if t == 2: A('s_waitcnt vmcnt(7)')
                if t == 3 and i == 3: A('s_cmp_lg_u32 s36, 0')
                A(ex(t, 11)); A(cv(t,1,0)); A(ex(t, 12)); A(cv(t,1,1)); A(ex(t,13)); A(ex(t, 14)); A(cv(t,1,2)); A(ex(t,15))
                continue
            A(qk(nt, nb, 0))
            for e in (0, 1, 2): A(ex(t, e))
            A(qk(nt, nb, 1))
            for e in (3, 4, 5): A(ex(t, e))
            A(pv(pt, pb, 1))
            A(ld)
            for e in (6, 7, 8): A(ex(t, e))
            A(sm(pt, 1))
            if t == 3: A(adv()[0])
            for e in (9, 10): A(ex(t, e))
            A(pv(t, i, 0))
            if t == 3: A(adv()[1])
            if t == 2 and i == 3: A('s_sub_u32 s36, s36, 1')
            for e in (11, 12, 13): A(ex(t, e))
            A(sm(t, 0))
            if t == 3: A(adv()[2])
            if t == 2: A('s_waitcnt vmcnt(7)')
            if t == 3 and i == 3: A('s_cmp_lg_u32 s36, 0')
            for e in (14, 15): A(ex(t, e))
    A('s_cbranch_scc1 K2_LOOP')
    stamp_mid(A,1)
    A('s_nop 1')
    A(pv(3, 3, 1))
    A(sm(3, 1))
    A('s_nop 15')
    A('K2_FIN:')
    A('s_waitcnt vmcnt(0)')
    A('s_cmp_eq_u32 s25, 0')
    A('s_cbranch_scc1 K2_G0')
    for t in range(4):
        A(f'v_sub_f32 v{12+t}, 1.0, v{12+t}')
    A('K2_G0:')
    A('s_lshl_b32 s30, s29, 17')
    A('s_lshl_b32 s31, s28, 11')
    A('s_add_u32 s30, s30, s31')
    A(f's_add_u32 s30, s30, {WS_OF}')
    for t in range(4):
        A(f'v_accvgpr_read_b32 v8, a{AL+4*t}')
        for r in range(16):
            A(f'v_accvgpr_read_b32 v{SB+16*t+r}, a{AO+16*t+r}')
        A('v_rcp_f32 v8, v8')
        A('s_nop 0')
        A(f'v_mul_f32 v8, v8, v{12+t}')
        for r in range(16):
            A(f'v_mul_f32 v{SB+16*t+r}, v{SB+16*t+r}, v8')
        for r in range(8):
            A(f'v_cvt_pk_bf16_f32 v{SB+16*t+r}, v{SB+16*t+2*r}, v{SB+16*t+2*r+1}')
        A(f'buffer_store_dwordx4 {v(SB+16*t,4)}, v2, {W}, s30 offen')
        A(f'buffer_store_dwordx4 {v(SB+16*t+4,4)}, v2, {W}, s30 offen offset:1024')
        A('s_add_u32 s30, s30, 0x20000')
    A('K2_END:')
    stamp_end(A, 1)
    A('K2_END2:')
    A('s_endpgm')
    return kd(name, 256, 80)

K3_SLOT = 16384
K3_RING = 4
K3_LDS = 98304
def k3(A):
    name = 'oproj_kernel'
    header(A, name)
    SWS, SWO, SOUT = 4, 8, 12
    A('s_cmp_ge_u32 s2, 256')
    A('s_cbranch_scc1 K3_END2')
    stamp_start(A)
    A('s_load_dwordx2 s[40:41], s[0:1], 32')
    A('s_load_dwordx2 s[42:43], s[0:1], 72')
    A('s_load_dwordx2 s[44:45], s[0:1], 88')
    A('s_load_dwordx2 s[46:47], s[0:1], 104')
    A('v_lshrrev_b32 v8, 6, v0')
    A('v_and_b32 v1, 63, v0')
    A('v_readfirstlane_b32 s24, v8')
    A('v_lshlrev_b32 v2, 4, v1')
    A('s_bfe_u32 s29, s2, 0x20001')
    A('s_lshl_b32 s29, s29, 2')
    A('s_bfe_u32 s30, s2, 0x20003')
    A('s_add_u32 s25, s29, s30')
    A('s_and_b32 s29, s2, 1')
    A('s_lshl_b32 s31, s29, 3')
    A('s_lshr_b32 s32, s2, 5')
    A('s_add_u32 s26, s31, s32')
    if 'k3rotfull' in VAR:
        A('s_lshl_b32 s27, s32, 1')
        A('s_lshl_b32 s30, s30, 2')
        A('s_add_u32 s27, s27, s30')
        A('s_add_u32 s27, s27, s29')
        A('s_and_b32 s27, s27, 15')
    else:
        A('s_and_b32 s32, s2, 6')
        A('s_add_u32 s27, s31, s32')
    A('s_cmp_lt_u32 s24, 4')
    A('s_cbranch_scc1 K3_COMPUTE')
    A('s_sub_u32 s24, s24, 4')
    A('v_lshrrev_b32 v8, 3, v1')
    A('v_lshlrev_b32 v8, 11, v8')
    A('v_lshrrev_b32 v9, 2, v1')
    A('v_lshrrev_b32 v10, 4, v1')
    A('v_xor_b32 v9, v9, v10')
    A('v_and_b32 v9, 1, v9')
    A('v_lshl_add_u32 v8, v9, 6, v8')
    A('v_and_b32 v9, 3, v1')
    A('v_lshl_add_u32 v3, v9, 4, v8')
    A('v_add_u32 v4, 15360, v3')
    A('v_add_u32 v5, 30720, v3')
    A('v_add_u32 v6, 46080, v3')
    A('s_lshl_b32 s34, s26, 7')
    A('s_lshl_b32 s29, s24, 16')
    A('s_add_u32 s34, s34, s29')
    A('s_lshl_b32 s37, s24, 12')
    A('s_mov_b32 s38, 0')
    A('s_waitcnt lgkmcnt(0)')
    A('s_and_b32 s41, s41, 0xffff')
    A('s_and_b32 s43, s43, 0xffff')
    A(f's_mov_b32 s{SWO+2}, 0x200000')
    A(f's_mov_b32 s{SWO+3}, 0x20000')
    A('K3_LLOOP:')
    A('s_bitcmp1_b32 19, s38')
    A('s_cbranch_scc1 K3_LISSUE')
    A('s_cmp_ge_u32 s38, 5')
    A('s_cbranch_scc1 K3_L8')
    A('s_waitcnt vmcnt(4)')
    A('K3_L8:')
    A('s_waitcnt vmcnt(8)')
    lstamp(A, 30, 's38')
    A('s_barrier')
    A('K3_LISSUE:')
    lstamp(A, 31, 's38')
    A('s_cmp_ge_u32 s27, 8')
    A(f's_cselect_b32 s{SWO}, s42, s40')
    A(f's_cselect_b32 s{SWO+1}, s43, s41')
    A('s_and_b32 s29, s27, 7')
    A('s_lshl_b32 s29, s29, 18')
    A('s_mov_b32 m0, s37')
    A('s_add_u32 s29, s29, s34')
    for i in range(4):
        A(f'buffer_load_dwordx4 v{3+i}, s[{SWO}:{SWO+3}], s29 offen offset:{i*1024} lds')
    A('s_add_u32 s27, s27, 1')
    A('s_and_b32 s27, s27, 15')
    A(f's_add_u32 s37, s37, {K3_SLOT}')
    A('s_and_b32 s37, s37, 0xffff')
    lstamp(A, 32, 's38')
    A('s_add_u32 s38, s38, 1')
    A('s_cmp_lt_u32 s38, 16')
    A('s_cbranch_scc1 K3_LLOOP')
    for n in range(2, -1, -1):
        A(f's_waitcnt vmcnt({4*n})')
        lstamp(A, 30, 16+2-n)
        A('s_barrier')
        lstamp(A, 31, 16+2-n)
    ldump(A, 2)
    A('s_endpgm')
    A('K3_COMPUTE:')
    A('s_lshl_b32 s35, s25, 2')
    A('s_add_u32 s35, s35, s24')
    A('s_lshl_b32 s36, s35, 17')
    A(f's_add_u32 s36, s36, {WS_OF}')
    A('s_lshl_b32 s37, s27, 13')
    A('v_add_u32 v3, 4096, v2')
    A('s_waitcnt lgkmcnt(0)')
    srd(A, SWS, 46, 47, WS_BYTES)
    OB = 128
    V = Cnt(A, 'vmcnt', 63)
    L = Cnt(A, 'lgkmcnt', 15)
    def oload(slot, st):
        return (f'buffer_load_dwordx4 {v(OB+32*slot+4*st,4)}, v{2+st//4}, s[{SWS}:{SWS+3}], s30 offen offset:{(st%4)*1024}', ('O', slot, st))
    adv = ['s_add_u32 s37, s37, 8192', 's_and_b32 s37, s37, 0x1ffff', 's_add_u32 s30, s36, s37']
    A(adv[2])
    for sl in range(3):
        for st in range(8): V.issue(*oload(sl, st))
        for x in adv: A(x)
    A('v_bfe_u32 v8, v1, 2, 2')
    A('v_lshrrev_b32 v9, 5, v1')
    A('v_lshl_add_u32 v9, v9, 2, v8')
    A('v_lshlrev_b32 v9, 7, v9')
    A('v_bfe_u32 v10, v1, 4, 1')
    A('v_lshl_add_u32 v9, v10, 5, v9')
    A('v_and_b32 v10, 3, v1')
    A('v_lshl_add_u32 v9, v10, 3, v9')
    A('v_lshrrev_b32 v8, 1, v8')
    A('v_lshl_add_u32 v5, v8, 6, v9')
    A('v_xor_b32 v8, 1, v8')
    A('v_lshl_add_u32 v6, v8, 6, v9')
    ACC = 96
    for r in range(32):
        A(f'v_mov_b32 v{ACC+r}, 0')
    A('s_mov_b32 s38, 0')
    srd(A, SOUT, 44, 45, 4 << 20)
    WB = 32
    def wr(slot, st):
        out = []
        for ct in range(2):
            for rho in range(2):
                out.append((f'ds_read_b64_tr_b16 {v(WB+8*(st%4)+4*ct+2*rho,2)}, v{5+ct} offset:{slot*16384+st*2048+rho*1024}', ('W', st%4, ct)))
        return out
    LA = 2
    stamp_mid(A, 0)
    A('s_barrier')
    for st in range(LA):
        for r in wr(0, st): L.issue(*r)
    A('K3_LOOP:')
    q0, v0 = list(L.q), list(V.q)
    for slot in range(4):
        for st in range(8):
            nst = st + LA
            if nst == 8:
                L.drain()
                A('s_barrier')
            rds = wr(slot, nst) if nst < 8 else wr((slot+1) % 4, nst-8)
            for ct in range(2):
                L.need(('W', st%4, ct))
                V.need(('O', slot, st))
                A(f'v_mfma_f32_32x32x16_bf16 {v(ACC+16*ct,16)}, {v(WB+8*(st%4)+4*ct,4)}, {v(OB+32*slot+4*st,4)}, {v(ACC+16*ct,16)}')
                L.issue(*rds[2*ct]); L.issue(*rds[2*ct+1])
                if ct == 0:
                    if slot == 1 and st == 0:
                        A('s_cmp_eq_u32 s38, 3')
                        A(f's_cselect_b32 s{SWS+2}, 0, s{SWS+2}')
                    V.issue(*oload((slot+3) % 4, st))
                elif st == 7:
                    for x in adv: A(x)
    A('s_add_u32 s38, s38, 1')
    A('s_cmp_lt_u32 s38, 4')
    assert L.q == q0, (L.q, q0)
    assert V.q == v0, (V.q, v0)
    A('s_cbranch_scc1 K3_LOOP')
    stamp_mid(A, 1)
    A('v_and_b32 v8, 31, v1')
    A('v_lshlrev_b32 v8, 11, v8')
    A('v_lshrrev_b32 v9, 5, v1')
    A('v_lshl_add_u32 v8, v9, 3, v8')
    A('s_lshl_b32 s29, s35, 16')
    A('s_lshl_b32 s30, s26, 7')
    A('s_add_u32 s29, s29, s30')
    A('s_nop 7')
    for ct in range(2):
        for g in range(4):
            b = ACC+16*ct+4*g
            d = 80+8*ct+2*g
            A(f'v_cvt_pk_bf16_f32 v{d}, v{b}, v{b+1}')
            A(f'v_cvt_pk_bf16_f32 v{d+1}, v{b+2}, v{b+3}')
            A(f'buffer_store_dwordx2 {v(d,2)}, v8, s[{SOUT}:{SOUT+3}], s29 offen offset:{ct*64+g*16}')
    A('K3_END:')
    stamp_end(A, 2)
    A('K3_END2:')
    A('s_endpgm')
    return kd(name, 256, 256)

def build():
    ref = open(f'cdna_kernels/{NAME}.s.ref').read().split('\n')
    head = [l for l in ref if l.startswith(';') and '@launch' not in l and 'Override' not in l and 'grid=ceil' not in l]
    out = '\n'.join(head) + '\n'
    out += f'; @launch kernel=qkv_kernel grid=(256,1,1) block=(512,1,1) lds={K1_LDS}\n'
    out += f'; @launch kernel=attn_kernel grid=(256,1,1) block=(256,1,1) lds=0\n'
    out += f'; @launch kernel=oproj_kernel grid=(256,1,1) block=(512,1,1) lds={K3_LDS}\n'
    out += '.amdgcn_target "amdgcn-amd-amdhsa--gfx950"\n.text\n'
    A = Asm()
    kds = [k1(A), k2(A), k3(A)]
    out += A.text()
    out += '.section .rodata,"a"\n' + ''.join(kds)
    return out

if __name__ == '__main__':
    args = [x for x in sys.argv[1:] if not x.startswith('--')]
    if '--instr' in sys.argv: INSTR = True
    if '--dbgt' in sys.argv: DBGT = True
    for x in sys.argv:
        if x.startswith('--var='): VAR = x[6:]
    dst = args[0] if args else f'cdna_kernels/{NAME}.s'
    open(dst, 'w').write(build())
```

```python
import math, sys
from asmlib import *

NAME = 'gated_mix__grouped_kv_mqa__grouped_kv_mqa__prompt'
KNAME = NAME + '_kernel'
WS_KV = 0
WS_G = 512 << 10
WS_FLAG = 576 << 10
WS_OF = 1 << 20
WS_BYTES = 9 << 20
QK_SCALE = math.log2(math.e) / math.sqrt(32.0)
LOG2E = math.log2(math.e)
INSTR = False
LST = False
VAR = ''
WS_DBG = 32 << 20

SLOT = 32768
L_SCR = 4 * SLOT
L_GATE = L_SCR
LDS_BYTES = L_GATE + 2048

SX, SW, SKV, SWS, SG, = 4, 8, 12, 16, 20
SWO, SOUT = 8, 12
sW, sTB, sCB, sST = 24, 25, 26, 27
W = f's[{SWS}:{SWS+3}]'
DBG = 58

def srd(A, d, lo, hi, nbytes):
    A(f's_mov_b32 s{d}, s{lo}')
    A(f's_and_b32 s{d+1}, s{hi}, 0xffff')
    A(f's_mov_b32 s{d+2}, {nbytes:#x}')
    A(f's_mov_b32 s{d+3}, 0x20000')

def stamp(A, i):
    if INSTR:
        A(f's_memrealtime s[{64+2*i}:{65+2*i}]')
NST = 10
def stamp_end(A):
    if not INSTR: return
    A('s_waitcnt vmcnt(0) lgkmcnt(0)')
    stamp(A, NST-1)
    A('s_load_dwordx2 s[60:61], s[0:1], 104')
    A('s_getreg_b32 s62, hwreg(HW_REG_XCC_ID)')
    A('s_waitcnt lgkmcnt(0)')
    A('s_mov_b64 exec, 1')
    A('s_lshl_b32 s63, s2, 2')
    A(f's_add_u32 s63, s63, s{sW}')
    A('s_lshl_b32 s63, s63, 6')
    A(f's_add_u32 s63, s63, {WS_DBG}')
    A('v_mov_b32 v0, s63')
    for i in range(NST):
        A(f'v_mov_b32 v1, s{64+2*i}')
        A(f'global_store_dword v0, v1, s[60:61] offset:{4*i}')
    A('v_mov_b32 v1, s62')
    A(f'global_store_dword v0, v1, s[60:61] offset:{4*NST}')
    A('s_waitcnt vmcnt(0)')

WS_DBG2 = 40 << 20
def lstamp(A, vreg, idx):
    if not LST: return
    A('s_memtime s[64:65]' if ('cyc' in VAR and vreg == 32) else 's_memrealtime s[64:65]')
    A('s_waitcnt lgkmcnt(0)')
    if isinstance(idx, str):
        A(f's_mov_b32 m0, {idx}')
        A(f'v_writelane_b32 v{vreg}, s64, m0')
    else:
        A(f'v_writelane_b32 v{vreg}, s64, {idx}')
def ldump(A):
    if not LST: return
    A('s_lshl_b32 s80, s2, 2')
    A(f's_add_u32 s80, s80, s{sW}')
    A('s_lshl_b32 s80, s80, 10')
    A(f's_add_u32 s80, s80, {WS_DBG2}')
    A('v_lshlrev_b32 v0, 2, v1')
    A('v_add_u32 v0, s80, v0')
    A('global_store_dword v0, v30, s[60:61]')
    A('global_store_dword v0, v31, s[60:61] offset:256')
    A('global_store_dword v0, v32, s[60:61] offset:512')
    A('s_waitcnt vmcnt(0)')

def poll(A, tag, load, vwant, sleep):
    A('s_mov_b32 s30, 0x40000')
    A(f'POLL_{tag}:')
    A(load)
    A('s_waitcnt vmcnt(0)')
    A(f'v_cmp_ne_u32 vcc, v10, v{vwant}')
    A('s_sub_u32 s30, s30, 1')
    A(f's_cbranch_scc1 POLLD_{tag}')
    A(f's_cbranch_vccz POLLD_{tag}')
    A(f's_sleep {sleep}')
    A(f's_branch POLL_{tag}')
    A(f'POLLD_{tag}:')

def kernel(A):
    A(f'.globl {KNAME}\n.p2align 8\n.type {KNAME},@function\n{KNAME}:')
    A('s_cmp_ge_u32 s2, 256')
    A('s_cbranch_scc1 END2')
    stamp(A, 0)
    A('s_load_dwordx4 s[40:43], s[0:1], 0')
    A('s_load_dwordx4 s[44:47], s[0:1], 16')
    A('s_load_dwordx4 s[48:51], s[0:1], 48')
    A('s_load_dwordx2 s[52:53], s[0:1], 64')
    A('s_load_dwordx2 s[54:55], s[0:1], 80')
    A('s_load_dwordx4 s[56:59], s[0:1], 88')
    A('s_load_dwordx2 s[60:61], s[0:1], 104')
    A('v_lshrrev_b32 v8, 6, v0')
    A('v_and_b32 v1, 63, v0')
    A(f'v_readfirstlane_b32 s{sW}, v8')
    A('s_and_b32 s29, s2, 1')
    A('s_lshl_b32 s29, s29, 3')
    A('s_bfe_u32 s30, s2, 0x30003')
    A(f's_add_u32 s{sCB}, s29, s30')
    A('s_bfe_u32 s29, s2, 0x20001')
    A('s_lshl_b32 s31, s29, 2')
    A('s_lshr_b32 s32, s2, 6')
    A(f's_add_u32 s{sTB}, s31, s32')
    A(f's_and_b32 s{sST}, s2, 7')
    A(f's_lshl_b32 s{sST}, s{sST}, 1')
    A('s_bfe_u32 s28, s2, 0x20001')
    A('v_lshlrev_b32 v2, 4, v1')
    A(f's_cmp_lt_u32 s{sW}, 4')
    A('s_cbranch_scc1 COMPUTE')
    helper(A)
    A('COMPUTE:')
    p1_compute(A)
    attention(A)
    p3_compute(A)
    A('END:')
    stamp_end(A)
    A('END2:')
    A('s_endpgm')

def helper(A):
    A(f's_sub_u32 s{sW}, s{sW}, 4')
    A('v_lshrrev_b32 v8, 3, v1')
    A('v_lshlrev_b32 v8, 11, v8')
    A('v_lshrrev_b32 v9, 4, v1')
    A('v_and_b32 v10, 7, v1')
    A('v_xor_b32 v10, v10, v9')
    A('v_lshl_add_u32 v16, v10, 4, v8')
    A('v_xor_b32 v10, 4, v10')
    A('v_lshl_add_u32 v17, v10, 4, v8')
    A('v_add_u32 v17, 15360, v17')
    A('v_add_u32 v18, 30720, v16')
    A('v_add_u32 v19, 30720, v17')
    A(f's_lshl_b32 s34, s{sTB}, 18')
    A(f's_and_b32 s29, s{sCB}, 3')
    A('s_lshl_b32 s29, s29, 16')
    A('s_add_u32 s33, s34, s29')
    A(f's_lshl_b32 s29, s{sW}, 7')
    A('s_add_u32 s33, s33, s29')
    A(f's_lshl_b32 s36, s{sW}, 12')
    A('s_mov_b32 s37, s36')
    A('s_mov_b32 s38, 0')
    A('s_waitcnt lgkmcnt(0)')
    srd(A, SX, 40, 41, 4 << 20)
    A(f's_cmp_ge_u32 s{sCB}, 8')
    A('s_cselect_b32 s42, s48, s42')
    A('s_cselect_b32 s43, s49, s43')
    A('s_cselect_b32 s44, s50, s44')
    A('s_cselect_b32 s45, s51, s45')
    A('s_cselect_b32 s46, s52, s46')
    A('s_cselect_b32 s47, s53, s47')
    A(f's_bitcmp1_b32 s{sCB}, 2')
    A('s_cselect_b32 s44, s46, s44')
    A('s_cselect_b32 s45, s47, s45')
    srd(A, SKV, 44, 45, 65536)
    srd(A, SG, 54, 55, 2048)
    A(f's_lshl_b32 s29, s{sW}, 10')
    A('s_and_b32 s29, s29, 1024')
    A(f's_add_u32 m0, s29, {L_GATE}')
    A('s_nop 0')
    A(f'buffer_load_dwordx4 v2, s[{SG}:{SG+3}], s29 offen lds')
    def sync():
        pass
    for j in range(4):
        A('s_lshl_b32 s29, s28, 9')
        A('s_add_u32 s29, s29, s33')
        A(f's_add_u32 m0, s36, {j*SLOT}')
        A('s_lshl_b32 s30, s28, 14')
        for i in range(4):
            A(f'buffer_load_dwordx4 v{16+i}, s[{SX}:{SX+3}], s29 offen offset:{i*1024} lds')
        A(f's_add_u32 m0, s36, {j*SLOT+16384}')
        A('s_add_u32 s30, s30, s36')
        for i in range(4):
            A(f'buffer_load_dwordx4 v2, s[{SKV}:{SKV+3}], s30 offen offset:{i*1024} lds')
        A('s_add_u32 s28, s28, 1')
        A('s_and_b32 s28, s28, 3')
        if j == 0:
            A('v_bfe_u32 v10, v1, 2, 2')
            A('v_xor_b32 v10, v10, v9')
            A('v_lshlrev_b32 v10, 6, v10')
            A('v_lshl_add_u32 v10, v9, 11, v10')
            A('v_and_b32 v8, 3, v1')
            A('v_lshl_add_u32 v20, v8, 4, v10')
            A('v_add_u32 v21, 7168, v20')
            A('v_add_u32 v22, 14336, v20')
            A('v_add_u32 v23, 21504, v20')
            srd(A, SW, 42, 43, 2 << 20)
            A(f's_lshl_b32 s29, s{sW}, 16')
            A('s_add_u32 s34, s34, s29')
            A(f's_and_b32 s35, s{sCB}, 7')
            A('s_lshl_b32 s35, s35, 8')
            A(f's_lshl_b32 s29, s{sW}, 15')
            A('s_add_u32 s35, s35, s29')
    A('s_waitcnt vmcnt(24)')
    A('s_barrier')
    A('H_LOOP:')
    A('s_waitcnt vmcnt(16)')
    lstamp(A, 30, 's38')
    A('s_barrier')
    lstamp(A, 31, 's38')
    A(f's_lshl_b32 s29, s{sST}, 7')
    A('s_add_u32 s29, s29, s34')
    A('s_mov_b32 m0, s37')
    A(f's_lshl_b32 s30, s{sST}, 17')
    for i in range(4):
        A(f'buffer_load_dwordx4 v{16+i}, s[{SX}:{SX+3}], s29 offen offset:{i*1024} lds')
    A('s_add_u32 m0, s37, 16384')
    A('s_add_u32 s30, s30, s35')
    for i in range(4):
        A(f'buffer_load_dwordx4 v{20+i}, s[{SW}:{SW+3}], s30 offen offset:{i*1024} lds')
    A(f's_add_u32 s{sST}, s{sST}, 1')
    A(f's_and_b32 s{sST}, s{sST}, 15')
    A(f's_add_u32 s37, s37, {SLOT}')
    A(f's_and_b32 s37, s37, {4*SLOT-1:#x}')
    lstamp(A, 32, 's38')
    A('s_add_u32 s38, s38, 1')
    A('s_cmp_lt_u32 s38, 16')
    A('s_cbranch_scc1 H_LOOP')
    A('s_load_dwordx2 s[40:41], s[0:1], 32')
    A('s_load_dwordx2 s[42:43], s[0:1], 72')
    A('s_waitcnt vmcnt(16)')
    lstamp(A, 30, 16)
    A('s_barrier')
    lstamp(A, 31, 16)
    A('s_waitcnt vmcnt(8)')
    lstamp(A, 30, 17)
    A('s_barrier')
    lstamp(A, 31, 17)
    A('s_waitcnt vmcnt(0)')
    lstamp(A, 30, 18)
    A('s_barrier')
    lstamp(A, 31, 18)
    A('v_lshrrev_b32 v8, 3, v1')
    A('v_lshlrev_b32 v8, 11, v8')
    A('v_lshrrev_b32 v10, 2, v1')
    A('v_lshrrev_b32 v12, 4, v1')
    A('v_xor_b32 v10, v10, v12')
    A('v_and_b32 v10, 1, v10')
    A('v_lshl_add_u32 v8, v10, 6, v8')
    A('v_and_b32 v10, 3, v1')
    A('v_lshl_add_u32 v16, v10, 4, v8')
    A('v_add_u32 v17, 15360, v16')
    A('v_add_u32 v18, 30720, v16')
    A('v_add_u32 v19, 46080, v16')
    A(f's_lshl_b32 s34, s{sCB}, 7')
    A(f's_lshl_b32 s29, s{sW}, 16')
    A('s_add_u32 s34, s34, s29')
    A('s_mov_b32 s37, s36')
    A('s_and_b32 s32, s2, 6')
    A(f's_and_b32 s{sST}, s{sCB}, 8')
    A(f's_add_u32 s{sST}, s{sST}, s32')
    A('s_mov_b32 s38, 0')
    A('s_waitcnt lgkmcnt(0)')
    A('s_and_b32 s41, s41, 0xffff')
    A('s_and_b32 s43, s43, 0xffff')
    A(f's_mov_b32 s{SWO+2}, 0x200000')
    A(f's_mov_b32 s{SWO+3}, 0x20000')
    srd(A, SWS, 60, 61, WS_BYTES)
    A('v_and_b32 v9, 15, v1')
    A('v_lshlrev_b32 v9, 7, v9')
    A('v_lshlrev_b32 v12, 2, v1')
    A('v_lshlrev_b32 v14, 7, v1')
    A('v_mov_b32 v11, 1')
    A(f's_lshl_b32 s44, s{sTB}, 11')
    A(f's_add_u32 s44, s44, {WS_FLAG}')
    A(f's_lshl_b32 s45, s{sCB}, 7')
    A('s_add_u32 s45, s45, s44')
    A(f's_lshl_b32 s46, s{sTB}, 2')
    A(f's_add_u32 s46, s46, s{sW}')
    A('s_lshl_b32 s46, s46, 17')
    A(f's_add_u32 s46, s46, {WS_OF}')
    A(f's_and_b32 s29, s{sCB}, 7')
    A(f's_add_u32 s29, s29, s{sST}')
    A('s_and_b32 s29, s29, 15')
    A('s_xor_b32 s30, s29, 8')
    A('s_lshl_b32 s29, s29, 13')
    A('s_lshl_b32 s30, s30, 13')
    A('s_add_u32 s47, s46, s30')
    A('s_add_u32 s46, s46, s29')
    lstamp(A, 30, 19)
    A('s_barrier')
    lstamp(A, 31, 19)
    def wo_issue():
        A(f's_cmp_ge_u32 s{sST}, 8')
        A(f's_cselect_b32 s{SWO}, s42, s40')
        A(f's_cselect_b32 s{SWO+1}, s43, s41')
        A(f's_and_b32 s29, s{sST}, 7')
        A('s_lshl_b32 s29, s29, 18')
        A('s_mov_b32 m0, s37')
        A('s_add_u32 s29, s29, s34')
        for i in range(4):
            A(f'buffer_load_dwordx4 v{16+i}, s[{SWO}:{SWO+3}], s29 offen offset:{i*1024} lds')
        A(f's_add_u32 s{sST}, s{sST}, 1')
        A(f's_and_b32 s{sST}, s{sST}, 15')
        A('s_add_u32 s37, s37, 16384')
        A('s_and_b32 s37, s37, 0x1ffff')
        A('s_add_u32 s38, s38, 1')
    A('H_WO1:')
    wo_issue()
    A('s_cmp_lt_u32 s38, 8')
    A('s_cbranch_scc1 H_WO1')
    A('s_waitcnt vmcnt(0)')
    A('s_barrier')
    A(f's_cmp_lg_u32 s{sW}, 0')
    A('s_cbranch_scc1 H_NOPOLL2')
    A('s_mov_b32 exec_hi, 0')
    A(f'buffer_store_dword v11, v12, {W}, s45 offen sc1')
    A('s_mov_b32 exec_hi, -1')
    poll(A, 'O', f'buffer_load_dword v10, v9, {W}, s44 offen sc1', 11, 4)
    A('H_NOPOLL2:')
    A('s_barrier')
    lstamp(A, 31, 32)
    if 'opf' in VAR:
        A(f'buffer_load_dword v20, v14, {W}, s46 offen sc1')
        A(f'buffer_load_dword v21, v14, {W}, s47 offen sc1')
    A('H_WO2:')
    A('s_barrier')
    if LST: A('s_add_u32 s49, s38, 25')
    lstamp(A, 31, 's49')
    wo_issue()
    A('s_cmp_lt_u32 s38, 15')
    A('s_cbranch_scc1 H_WO2')
    A('s_waitcnt vmcnt(24)')
    lstamp(A, 30, 40)
    A('s_barrier')
    lstamp(A, 31, 40)
    wo_issue()
    for n in range(6, -1, -1):
        A(f's_waitcnt vmcnt({4*n})')
        lstamp(A, 30, 47-n)
        A('s_barrier')
        lstamp(A, 31, 47-n)
    ldump(A)
    A('s_endpgm')

SB = 16
NSIG, NPOLL, NCHK, NPF = 3, 10, 13, 14
AO, AL, AK, AV = 0, 64, 80, 112
QB = 80
def kv_adv():
    return ['s_add_u32 s33, s33, 4096', 's_and_b32 s33, s33, 0x3ffff', 's_add_u32 s34, s32, s33']
def kv_loads(b):
    sc = '' if 'kvinv' in VAR else ' sc1'
    return [f'buffer_load_dwordx4 {a(AK+8*b,4)}, v2, {W}, s34 offen{sc}',
            f'buffer_load_dwordx4 {a(AK+8*b+4,4)}, v2, {W}, s34 offen offset:1024{sc}',
            f'buffer_load_dwordx4 {a(AV+8*b,4)}, v2, {W}, s34 offen offset:2048{sc}',
            f'buffer_load_dwordx4 {a(AV+8*b+4,4)}, v2, {W}, s34 offen offset:3072{sc}']

def p1_compute(A):
    XA, WA, KWA, GA = 80, 84, 86, 87
    A('s_waitcnt lgkmcnt(0)')
    srd(A, SWS, 60, 61, WS_BYTES)
    A(f's_cmp_lg_u32 s{sW}, 3')
    A('s_cbranch_scc1 P1_NORESET')
    A(f's_lshl_b32 s29, s{sTB}, 4')
    A(f's_add_u32 s29, s29, s{sCB}')
    A('s_lshl_b32 s29, s29, 7')
    A(f's_add_u32 s29, s29, {WS_FLAG}')
    A('v_lshlrev_b32 v8, 2, v1')
    A('v_mov_b32 v9, 0')
    A('s_mov_b32 exec_hi, 0')
    A(f'buffer_store_dword v9, v8, {W}, s29 offen sc1')
    A('s_mov_b32 exec_hi, -1')
    A('P1_NORESET:')
    KXA, KAC, GAC = 88, 96, 100
    A('v_and_b32 v8, 15, v1')
    A(f's_and_b32 s29, s{sW}, 1')
    A('s_lshl_b32 s29, s29, 4')
    A('v_add_u32 v8, s29, v8')
    A('v_lshrrev_b32 v9, 4, v1')
    A('v_bfe_u32 v10, v8, 1, 3')
    A('v_xor_b32 v10, v10, v9')
    A('v_lshlrev_b32 v8, 7, v8')
    A(f'v_lshl_add_u32 v{KXA}, v10, 4, v8')
    A('v_xor_b32 v10, 4, v10')
    A(f'v_lshl_add_u32 v{KXA+1}, v10, 4, v8')
    A('v_bfe_u32 v11, v1, 2, 2')
    A('v_and_b32 v14, 3, v1')
    A('v_lshl_add_u32 v12, v9, 3, v11')
    A('v_lshlrev_b32 v12, 6, v12')
    A('v_lshl_add_u32 v12, v14, 3, v12')
    A(f's_lshr_b32 s29, s{sW}, 1')
    A('s_lshl_b32 s29, s29, 5')
    A(f'v_add_u32 v{KWA}, s29, v12')
    A('v_lshlrev_b32 v15, 4, v9')
    A(f'v_add_u32 v15, {L_GATE}, v15')
    for r in range(8):
        A(f'v_mov_b32 v{KAC+r}, 0')
    A('v_and_b32 v8, 31, v1')
    A('v_lshrrev_b32 v9, 5, v1')
    A('v_bfe_u32 v10, v1, 1, 3')
    A('v_xor_b32 v10, v10, v9')
    A('v_lshlrev_b32 v8, 7, v8')
    A(f's_and_b32 s29, s{sW}, 1')
    A('s_lshl_b32 s29, s29, 13')
    A('v_add_u32 v8, s29, v8')
    for st in range(4):
        A(f'v_xor_b32 v12, {2*st}, v10')
        A(f'v_lshl_add_u32 v{XA+st}, v12, 4, v8')
    A('v_lshl_add_u32 v12, v9, 3, v11')
    A('v_bfe_u32 v13, v1, 4, 1')
    A('v_lshlrev_b32 v13, 5, v13')
    A('v_lshl_add_u32 v13, v14, 3, v13')
    A(f's_and_b32 s30, s{sW}, 2')
    A('v_xor_b32 v14, s30, v11')
    A(f'v_lshl_add_u32 v{WA}, v14, 6, v13')
    A('v_xor_b32 v14, 1, v14')
    A(f'v_lshl_add_u32 v{WA+1}, v14, 6, v13')
    A('v_lshlrev_b32 v14, 8, v12')
    A(f'v_add_u32 v{WA}, v{WA}, v14')
    A(f'v_add_u32 v{WA+1}, v{WA+1}, v14')
    for r in range(SB, SB+64):
        A(f'v_mov_b32 v{r}, 0')
    for r in range(32, 80):
        A(f'v_accvgpr_write_b32 a{r}, 0')
    A(f's_lshr_b32 s35, s{sCB}, 3')
    A('s_lshl_b32 s35, s35, 18')
    A(f's_lshl_b32 s30, s{sTB}, 2')
    A(f's_and_b32 s31, s{sCB}, 3')
    A('s_add_u32 s30, s30, s31')
    A('s_lshl_b32 s31, s30, 12')
    A('s_add_u32 s35, s35, s31')
    A('s_lshl_b32 s36, s30, 7')
    A(f's_lshr_b32 s30, s{sCB}, 3')
    A('s_lshl_b32 s31, s30, 13')
    A('s_add_u32 s36, s36, s31')
    A(f's_and_b32 s31, s{sW}, 1')
    A('s_lshl_b32 s31, s31, 6')
    A('s_add_u32 s36, s36, s31')
    A(f's_add_u32 s36, s36, {WS_G}')
    A('s_lshl_b32 s37, s30, 31')
    A(f's_xor_b32 s37, s37, {f32bits(-LOG2E):#x}')
    stamp(A, 1)
    L = Cnt(A, 'lgkmcnt', 15)
    A('s_mov_b32 s38, 0')
    A(f's_bitcmp1_b32 s{sCB}, 2')
    A('s_cbranch_scc1 V_LOOP')
    FB = 80
    def kvloop(isv):
        tag = 'V' if isv else 'K'
        A(f'{tag}_LOOP:')
        A('s_lshl_b32 s29, s28, 9')
        A(f'v_add_u32 v{GA}, s29, v15')
        A('s_barrier')
        def rd(st):
            fb = FB + 12*(st % 4)
            for rho in range(2):
                L.issue(f'ds_read_b64_tr_b16 {a(fb+2*rho,2)}, v{KWA} offset:{16384+st*2048+rho*256}', ('k', st))
            L.issue(f'ds_read_b128 {a(fb+4,4)}, v{KXA+(st&1)} offset:{(st>>1)*4096}', ('k', st))
            if not isv:
                L.issue(f'ds_read_b128 {a(fb+8,4)}, v{GA} offset:{st*64}', ('k', st))
        def mm(st):
            fb = FB + 12*(st % 4)
            L.need(('k', st))
            if isv:
                A(f'v_mfma_f32_16x16x32_bf16 {v(KAC,4)}, {a(fb+4,4)}, {a(fb,4)}, {v(KAC,4)}')
            else:
                A(f'v_mfma_f32_16x16x32_bf16 {v(KAC,4)}, {a(fb,4)}, {a(fb+4,4)}, {v(KAC,4)}')
                A(f'v_mfma_f32_16x16x32_bf16 {v(GAC,4)}, {a(fb+8,4)}, {a(fb+4,4)}, {v(GAC,4)}')
        for st in range(3): rd(st)
        for st in range(8):
            mm(st)
            if st + 3 < 8: rd(st + 3)
            if st == 5:
                for r in (KXA, KXA+1, KWA):
                    A(f'v_add_u32 v{r}, {SLOT}, v{r}')
                A('s_add_u32 s28, s28, 1')
                A('s_and_b32 s28, s28, 3')
                A('s_add_u32 s38, s38, 1')
        A('s_cmp_lt_u32 s38, 4')
        A(f's_cbranch_scc1 {tag}_LOOP')
    kvloop(False)
    A('v_and_b32 v8, 15, v1')
    A('v_bfe_u32 v9, v1, 4, 1')
    A('v_lshl_add_u32 v8, v9, 5, v8')
    A('v_lshlrev_b32 v8, 4, v8')
    A('v_lshrrev_b32 v9, 5, v1')
    A('v_lshl_add_u32 v8, v9, 3, v8')
    A(f's_and_b32 s29, s{sW}, 1')
    A('s_lshl_b32 s29, s29, 8')
    A(f's_lshr_b32 s30, s{sW}, 1')
    A('s_lshl_b32 s30, s30, 10')
    A('s_add_u32 s29, s29, s30')
    A('s_add_u32 s35, s35, s29')
    A(f's_mov_b32 s31, {f32bits(QK_SCALE):#x}')
    A(f'v_mul_f32 v{GAC}, s37, v{GAC}')
    for r in range(4):
        A(f'v_mul_f32 v{KAC+r}, s31, v{KAC+r}')
    A(f'v_exp_f32 v{GAC}, v{GAC}')
    A('v_lshlrev_b32 v9, 2, v1')
    A(f'v_add_f32 v{GAC}, 1.0, v{GAC}')
    A(f'v_rcp_f32 v{GAC}, v{GAC}')
    A(f's_cmp_ge_u32 s{sW}, 2')
    A('s_cbranch_scc1 P1_KVST')
    A('s_mov_b64 exec, 0xffff')
    A(f'buffer_store_dword v{GAC}, v9, {W}, s36 offen sc1')
    A('s_mov_b64 exec, -1')
    A('s_branch P1_KVST')
    kvloop(True)
    A('v_and_b32 v8, 15, v1')
    A('v_lshrrev_b32 v9, 5, v1')
    A('v_lshl_add_u32 v8, v9, 5, v8')
    A('v_lshlrev_b32 v8, 4, v8')
    A('v_bfe_u32 v9, v1, 4, 1')
    A('v_lshl_add_u32 v8, v9, 3, v8')
    A(f's_and_b32 s29, s{sW}, 1')
    A('s_lshl_b32 s29, s29, 10')
    A(f's_lshr_b32 s30, s{sW}, 1')
    A('s_lshl_b32 s30, s30, 8')
    A('s_add_u32 s29, s29, s30')
    A('s_add_u32 s35, s35, s29')
    A('s_add_u32 s35, s35, 2048')
    A('P1_KVST:')
    A(f'v_cvt_pk_bf16_f32 v{KAC}, v{KAC}, v{KAC+1}')
    A(f'v_cvt_pk_bf16_f32 v{KAC+1}, v{KAC+2}, v{KAC+3}')
    A(f'buffer_store_dwordx2 {v(KAC,2)}, v8, {W}, s35 offen sc1')
    stamp(A, 2)
    A('s_barrier')
    A('P1_Q:')
    A(f's_lshr_b32 s32, s{sCB}, 3')
    A('s_lshl_b32 s32, s32, 18')
    A('s_lshr_b32 s33, s2, 3')
    A('s_lshl_b32 s33, s33, 13')
    A('s_add_u32 s34, s32, s33')
    A('s_mov_b32 s38, 0')
    A(f's_mov_b32 s39, {SLOT}')
    A(f's_mov_b32 s44, {(1<<NSIG)|(1<<NPF):#x}')
    A(f's_cmp_eq_u32 s{sW}, 3')
    A(f's_cselect_b32 s45, {(1<<NSIG)|(1<<NPOLL)|(1<<NCHK):#x}, 0')
    A(f's_or_b32 s45, s45, {1<<NPF:#x}')
    def rd_list(st, setb):
        def ra(aa, rho): return (f'ds_read_b64_tr_b16 {a(setb+4*aa+2*rho,2)}, v{WA+aa} offset:{16384+st*4096+rho*1024}', (setb, 'A', aa))
        def rb(b): return (f'ds_read_b128 {a(setb+8+4*b,4)}, v{XA+st} offset:{b*4096}', (setb, 'B', b))
        return [ra(0,0), ra(0,1), rb(0), rb(1), ra(1,0), ra(1,1)]
    def group(setb, rds, per, other=()):
        rds = list(rds); other = list(other); per = list(per)
        for aa in range(2):
            for b in range(2):
                acc = SB + 16*(aa*2+b)
                L.need((setb, 'A', aa), (setb, 'B', b))
                A(f'v_mfma_f32_32x32x16_bf16 {v(acc,16)}, {a(setb+4*aa,4)}, {a(setb+8+4*b,4)}, {v(acc,16)}')
                for _ in range(per.pop(0)):
                    if rds: L.issue(*rds.pop(0))
                for _ in range(2):
                    if other: A(other.pop(0))
        assert not rds
        for o in other: A(o)
    L.q = []
    for r in rd_list(0, 0): L.issue(*r)
    A('Q_LOOP:')
    q0 = list(L.q)
    group(0, rd_list(1, 16), (2, 2, 2, 0),
          ['s_and_b32 s29, s38, 3', 's_cmp_eq_u32 s29, 3', f's_cselect_b32 s29, {(-3*SLOT) & 0xffffffff:#x}, s39', 's_add_u32 s38, s38, 1'])
    group(16, rd_list(2, 0), (2, 2, 2, 0), [f'v_add_u32 v{r}, s29, v{r}' for r in (XA, XA+1)])
    group(0, rd_list(3, 16), (3, 3, 0, 0), ['', '', '', 's_bitcmp1_b32 s44, s38'] + [f'v_add_u32 v{r}, s29, v{r}' for r in (XA+2, XA+3, WA, WA+1)])
    A('s_cbranch_scc1 Q_PRE')
    A('Q_PRE_RET:')
    L.drain()
    A('s_barrier')
    group(16, rd_list(0, 0), (3, 3, 0, 0), ['', '', '', '', 's_bitcmp1_b32 s45, s38', 's_cbranch_scc1 Q_POST\nQ_POST_RET:'])
    assert L.q == q0
    A('s_cmp_lt_u32 s38, 16')
    A('s_cbranch_scc1 Q_LOOP')
    A('s_branch Q_DONE')
    A('Q_PRE:')
    A('s_waitcnt vmcnt(0)')
    A('s_branch Q_PRE_RET')
    A('Q_POST:')
    A(f's_cmp_eq_u32 s38, {NPF}')
    A('s_cbranch_scc1 Q_PREFETCH')
    A(f's_cmp_eq_u32 s38, {NPOLL}')
    A('s_cbranch_scc1 Q_POLL')
    A(f's_cmp_eq_u32 s38, {NCHK}')
    A('s_cbranch_scc1 Q_CHECK')
    A('s_and_b32 s30, s2, 1')
    A('s_lshl_b32 s30, s30, 7')
    A('v_mov_b32 v3, s30')
    A('v_mov_b32 v4, 1')
    A('s_mov_b64 exec, 1')
    A(f'global_atomic_add v3, v4, s[{DBG}:{DBG+1}] sc1')
    A('s_mov_b64 exec, -1')
    A('s_branch Q_POST_RET')
    A('Q_POLL:')
    A('v_and_b32 v9, 1, v1')
    A('v_lshlrev_b32 v9, 7, v9')
    A('v_mov_b32 v11, 128')
    A(f'global_load_dword v10, v9, s[{DBG}:{DBG+1}] sc1')
    A('s_branch Q_POST_RET')
    A('Q_CHECK:')
    A('s_waitcnt vmcnt(0)')
    A('v_cmp_ne_u32 vcc, v10, v11')
    A('s_nop 1')
    A('s_cbranch_vccz POLLD_KV')
    poll(A, 'KV', f'global_load_dword v10, v9, s[{DBG}:{DBG+1}] sc1', 11, 8)
    if 'kvinv' in VAR: A('buffer_inv sc1')
    A('s_branch Q_POST_RET')
    A('Q_PREFETCH:')
    for b in range(3):
        for l in kv_loads(b): A(l)
        for l in kv_adv(): A(l)
    A('s_branch Q_POST_RET')
    A('Q_DONE:')
    stamp(A, 3)

def attention(A):
    A('v_mov_b32 v3, 0xdddddddd')
    A('v_mov_b32 v9, 0x3f803f80')
    A('v_and_b32 v10, 7, v1')
    A('v_cmp_eq_u32 vcc, 0, v10')
    A('v_cmp_eq_u32 s[30:31], 4, v10')
    A('s_waitcnt lgkmcnt(0)')
    A('v_cndmask_b32 v4, 0, v9, vcc')
    A('v_cndmask_b32 v5, 0, v9, vcc')
    A('v_cndmask_b32 v6, 0, v9, s[30:31]')
    A('v_cndmask_b32 v7, 0, v9, s[30:31]')
    for r in range(32):
        A(f'v_accvgpr_write_b32 a{r}, 0')
    for r in range(4):
        A(f'v_accvgpr_write_b32 a{AV+28+r}, 0')
    for t in range(4):
        for i in range(8):
            A(f'v_cvt_pk_bf16_f32 v{QB+8*t+i}, v{SB+16*t+2*i}, v{SB+16*t+2*i+1}')
    for r in range(8):
        A(f'v_mov_b32 v{SB+48+8+r}, 0')
    A('s_mov_b32 s36, 16')
    def qk(t, kb, half):
        c = '0' if half == 0 else v(SB+16*t, 16)
        return f'v_mfma_f32_32x32x16_bf16 {v(SB+16*t,16)}, {a(AK+8*kb+4*half,4)}, {v(QB+8*t+4*half,4)}, {c}'
    def pv(t, vb, half):
        return f'v_smfmac_f32_32x32x32_bf16 {a(AO+16*t,16)}, {a(AV+8*vb+4*half,4)}, {v(SB+16*t+8*half,8)}, v3'
    def sm(t, half):
        return f'v_smfmac_f32_16x16x64_bf16 {a(AL+4*t,4)}, v[4:7], {v(SB+16*t+8*half,8)}, v3'
    def ex(t, i):
        return f'v_exp_f32 v{SB+16*t+i}, v{SB+16*t+i}'
    A('s_waitcnt vmcnt(8)')
    A(qk(0, 0, 0))
    A(qk(0, 0, 1))
    A('s_nop 7')
    A('s_nop 3')
    stamp(A, 4)
    A('.p2align 6')
    A('AT_LOOP:')
    adv = kv_adv()
    for i in range(4):
        for t in range(4):
            nt, nb = (t+1) % 4, (i if t < 3 else (i+1) % 4)
            pt, pb = (t-1) % 4, (i if t > 0 else (i-1) % 4)
            ld = kv_loads((i+3) % 4)[t]
            A(qk(nt, nb, 0))
            for e in (0, 1, 2): A(ex(t, e))
            A(qk(nt, nb, 1))
            if t == 2 and i == 3: A('s_sub_u32 s36, s36, 1')
            for e in (3, 4, 5): A(ex(t, e))
            A(pv(pt, pb, 1))
            for e in (6, 7, 8): A(ex(t, e))
            A(sm(pt, 1))
            A(ld)
            for e in (9, 10): A(ex(t, e))
            A(pv(t, i, 0))
            if t == 3: A(adv[0]); A(adv[1])
            for e in (11, 12, 13): A(ex(t, e))
            A(sm(t, 0))
            if t == 3: A(adv[2])
            if t == 2: A('s_waitcnt vmcnt(7)')
            if t == 3 and i == 3: A('s_cmp_lg_u32 s36, 0')
            for e in (14, 15): A(ex(t, e))
    A('s_cbranch_scc1 AT_LOOP')
    stamp(A, 5)
    A('v_and_b32 v8, 31, v1')
    A(pv(3, 3, 1))
    A(sm(3, 1))
    A('v_lshlrev_b32 v8, 2, v8')
    A(f's_lshl_b32 s29, s{sTB}, 2')
    A(f's_and_b32 s30, s{sW}, 1')
    A('s_lshl_b32 s30, s30, 1')
    A('s_add_u32 s29, s29, s30')
    A('s_lshl_b32 s35, s29, 7')
    A(f's_lshr_b32 s30, s{sCB}, 3')
    A('s_lshl_b32 s30, s30, 13')
    A('s_add_u32 s35, s35, s30')
    A(f's_add_u32 s35, s35, {WS_G}')
    for b in range(2):
        A(f'buffer_load_dword v{12+b}, v8, {W}, s35 offen offset:{b*128} sc1')
    A('s_lshl_b32 s30, s29, 17')
    A(f's_lshl_b32 s31, s{sCB}, 2')
    A(f's_and_b32 s29, s{sW}, 2')
    A('s_add_u32 s31, s31, s29')
    A('s_lshl_b32 s31, s31, 11')
    A('s_add_u32 s30, s30, s31')
    A(f's_add_u32 s30, s30, {WS_OF}')
    A('s_add_u32 s31, s30, 0x20000')
    A('s_nop 3')
    for t in range(4):
        A(f'v_accvgpr_read_b32 v{8+t}, a{AL+4*t}')
    for t in range(4):
        A(f'v_rcp_f32 v{8+t}, v{8+t}')
    for r in range(64):
        A(f'v_accvgpr_read_b32 v{SB+r}, a{AO+r}')
    A('s_waitcnt vmcnt(0)')
    for t in range(4):
        A(f'v_mul_f32 v{8+t}, v{8+t}, v{12+(t&1)}')
    for t in range(4):
        aa, b = t >> 1, t & 1
        for r in range(16):
            A(f'v_mul_f32 v{SB+16*t+r}, v{SB+16*t+r}, v{8+t}')
        for r in range(8):
            A(f'v_cvt_pk_bf16_f32 v{SB+16*t+r}, v{SB+16*t+2*r}, v{SB+16*t+2*r+1}')
        sc = ' sc1'
        if 'ostplain' in VAR: sc = ''
        if 'ost01' in VAR: sc = ' sc0 sc1'
        A(f'buffer_store_dwordx4 {v(SB+16*t,4)}, v2, {W}, s{30+b} offen offset:{aa*2048}{sc}')
        A(f'buffer_store_dwordx4 {v(SB+16*t+4,4)}, v2, {W}, s{30+b} offen offset:{aa*2048+1024}{sc}')

def p3_compute(A):
    ACC, WB, OB = 80, 8+8, 0
    WB = 16
    A(f's_lshl_b32 s35, s{sTB}, 2')
    A(f's_add_u32 s35, s35, s{sW}')
    A('s_lshl_b32 s36, s35, 17')
    A(f's_add_u32 s36, s36, {WS_OF}')
    A('s_and_b32 s32, s2, 6')
    A(f's_and_b32 s37, s{sCB}, 8')
    A('s_add_u32 s37, s37, s32')
    A('s_lshl_b32 s37, s37, 13')
    A('v_add_u32 v3, 4096, v2')
    A('v_bfe_u32 v8, v1, 2, 2')
    A('v_lshrrev_b32 v9, 5, v1')
    A('v_lshl_add_u32 v9, v9, 2, v8')
    A('v_lshlrev_b32 v9, 7, v9')
    A('v_bfe_u32 v10, v1, 4, 1')
    A('v_lshl_add_u32 v9, v10, 5, v9')
    A('v_and_b32 v10, 3, v1')
    A('v_lshl_add_u32 v9, v10, 3, v9')
    A('v_lshrrev_b32 v8, 1, v8')
    A('v_lshl_add_u32 v5, v8, 6, v9')
    A('v_xor_b32 v8, 1, v8')
    A('v_lshl_add_u32 v6, v8, 6, v9')
    for r in range(32):
        A(f'v_mov_b32 v{ACC+r}, 0')
    A('s_mov_b32 s38, 0')
    srd(A, SOUT, 56, 57, 4 << 20)
    V = Cnt(A, 'vmcnt', 63)
    L = Cnt(A, 'lgkmcnt', 15)
    def oload(slot, st):
        return (f'buffer_load_dwordx4 {a(OB+32*slot+4*st,4)}, v{2+st//4}, {W}, s30 offen offset:{(st%4)*1024} sc1', ('O', slot, st))
    adv = ['s_add_u32 s37, s37, 8192', 's_and_b32 s37, s37, 0x1ffff', 's_add_u32 s30, s36, s37']
    A(adv[2])
    A('s_waitcnt vmcnt(0)')
    stamp(A, 6)
    A('s_barrier')
    A('s_barrier')
    stamp(A, 7)
    for sl in range(3):
        for st in range(8): V.issue(*oload(sl, st))
        for x in adv: A(x)
    def wr(slot, st):
        out = []
        for ct in range(2):
            for rho in range(2):
                out.append((f'ds_read_b64_tr_b16 {v(WB+8*(st%4)+4*ct+2*rho,2)}, v{5+ct} offset:{slot*16384+st*2048+rho*1024}', ('W', st%4, ct)))
        return out
    LA = 2
    for st in range(LA):
        for r in wr(0, st): L.issue(*r)
    A('P3_LOOP:')
    q0, v0 = list(L.q), list(V.q)
    for slot in range(4):
        for st in range(8):
            nst = st + LA
            if nst == 8:
                L.drain()
                A('s_barrier')
                if slot == 3:
                    A('v_xor_b32 v5, 0x10000, v5')
                    A('v_xor_b32 v6, 0x10000, v6')
            rds = wr(slot, nst) if nst < 8 else wr((slot+1) % 4, nst-8)
            for ct in range(2):
                L.need(('W', st%4, ct))
                V.need(('O', slot, st))
                A(f'v_mfma_f32_32x32x16_bf16 {v(ACC+16*ct,16)}, {v(WB+8*(st%4)+4*ct,4)}, {a(OB+32*slot+4*st,4)}, {v(ACC+16*ct,16)}')
                L.issue(*rds[2*ct]); L.issue(*rds[2*ct+1])
                if ct == 0:
                    if slot == 1 and st == 0:
                        A('s_cmp_eq_u32 s38, 3')
                        A(f's_cselect_b32 s{SWS+2}, 0, s{SWS+2}')
                    V.issue(*oload((slot+3) % 4, st))
                elif st == 7:
                    for x in adv: A(x)
    A('s_add_u32 s38, s38, 1')
    A('s_cmp_lt_u32 s38, 4')
    assert L.q == q0, (L.q, q0)
    assert V.q == v0, (V.q, v0)
    A('s_cbranch_scc1 P3_LOOP')
    stamp(A, 8)
    A('v_and_b32 v8, 31, v1')
    A('v_lshlrev_b32 v8, 11, v8')
    A('v_lshrrev_b32 v9, 5, v1')
    A('v_lshl_add_u32 v8, v9, 3, v8')
    A('s_lshl_b32 s29, s35, 16')
    A(f's_lshl_b32 s30, s{sCB}, 7')
    A('s_add_u32 s29, s29, s30')
    A('s_nop 7')
    for ct in range(2):
        for g in range(4):
            b = ACC+16*ct+4*g
            d = 48+8*ct+2*g
            A(f'v_cvt_pk_bf16_f32 v{d}, v{b}, v{b+1}')
            A(f'v_cvt_pk_bf16_f32 v{d+1}, v{b+2}, v{b+3}')
            A(f'buffer_store_dwordx2 {v(d,2)}, v8, s[{SOUT}:{SOUT+3}], s29 offen offset:{ct*64+g*16}')

def build():
    ref = open(f'cdna_kernels/{NAME}.s.ref').read().split('\n')
    head = [l for l in ref if l.startswith(';') and '@launch' not in l and 'Override' not in l and 'grid=ceil' not in l]
    out = '\n'.join(head) + '\n'
    if 'aslist' in VAR:
        out += f'; @launch kernel={KNAME} grid=(256,1,1) block=(512,1,1) lds={LDS_BYTES}\n'
    else:
        out += f'; @launch grid=(256,1,1) block=(512,1,1) lds={LDS_BYTES}\n'
    out += '.amdgcn_target "amdgcn-amd-amdhsa--gfx950"\n.text\n'
    A = Asm()
    kernel(A)
    out += A.text()
    out += '.section .rodata,"a"\n' + kd(KNAME, 256, 112)
    return out

if __name__ == '__main__':
    args = [x for x in sys.argv[1:] if not x.startswith('--')]
    if '--instr' in sys.argv: INSTR = True
    if '--lst' in sys.argv: LST = True
    for x in sys.argv:
        if x.startswith('--var='): VAR = x[6:]
    dst = args[0] if args else f'cdna_kernels/{NAME}.s'
    open(dst, 'w').write(build())
```

```python
import struct

def f32bits(x):
    return struct.unpack('<I', struct.pack('<f', x))[0]

class Asm:
    def __init__(self):
        self.lines = []
    def __call__(self, s):
        for l in s.split('\n'):
            l = l.strip()
            if not l:
                continue
            if l.endswith(':') or l.startswith('.'):
                self.lines.append(l)
            else:
                self.lines.append('    ' + l)
    def c(self, s):
        self.lines.append('    ; ' + s)
    def text(self):
        return '\n'.join(self.lines) + '\n'

def v(i, n=1):
    return f'v{i}' if n == 1 else f'v[{i}:{i+n-1}]'
def a(i, n=1):
    return f'a{i}' if n == 1 else f'a[{i}:{i+n-1}]'
def s(i, n=1):
    return f's{i}' if n == 1 else f's[{i}:{i+n-1}]'

def kd(name, nvgpr, accum, nsgpr=96):
    return f""".p2align 6
.amdhsa_kernel {name}
  .amdhsa_next_free_vgpr {nvgpr}
  .amdhsa_next_free_sgpr {nsgpr}
  .amdhsa_accum_offset {accum}
  .amdhsa_group_segment_fixed_size 0
  .amdhsa_kernarg_size 112
  .amdhsa_user_sgpr_count 2
  .amdhsa_user_sgpr_kernarg_segment_ptr 1
  .amdhsa_system_sgpr_workgroup_id_x 1
.end_amdhsa_kernel
"""

class Cnt:
    def __init__(self, A, name, maxv):
        self.A, self.name, self.maxv = A, name, maxv
        self.q = []
    def issue(self, text, tag):
        if len(self.q) >= self.maxv:
            n = self.maxv - 1
            self.A(f's_waitcnt {self.name}({n})')
            self.q = self.q[len(self.q) - n:]
        self.A(text)
        self.q.append(tag)
    def need(self, *tags):
        last = -1
        for i, t in enumerate(self.q):
            if t in tags:
                last = i
        if last < 0:
            return
        n = len(self.q) - 1 - last
        n = min(n, self.maxv)
        self.A(f's_waitcnt {self.name}({n})')
        self.q = self.q[len(self.q) - n:] if n else []
    def drain(self):
        self.A(f's_waitcnt {self.name}(0)')
        self.q = []
```

```python
import math, sys
from asmlib import *

NAME = 'gated_mix__grouped_kv_mqa__grouped_kv_mqa__prompt'
KNAME = NAME + '_kernel'
WS_KV = 0
WS_G = 512 << 10
WS_FLAG = 576 << 10
WS_OF = 1 << 20
WS_BYTES = 9 << 20
QK_SCALE = math.log2(math.e) / math.sqrt(32.0)
LOG2E = math.log2(math.e)
INSTR = False
LST = False
VAR = ''
WS_DBG = 32 << 20
WS_DBG2 = 40 << 20

SLOT = 32768
L_GATE = 4 * SLOT
LDS_BYTES = L_GATE + 2048

SX, SW, SKV, SWS, SG = 4, 8, 12, 16, 20
SWO, SOUT = 8, 12
sW, sTB, sCB, sST = 24, 25, 26, 27
W = f's[{SWS}:{SWS+3}]'
DBG = 58
NARCH = 144
SB, OB = 16, 80
AL, AQ, AK, AV = 0, 16, 48, 80
IDX, SEL = 9, 12
NSIG, NPOLL, NCHK = 3, 9, 12

def opt(name, default):
    for tok in VAR.split('_'):
        if tok.startswith(name) and tok[len(name):].isdigit():
            return int(tok[len(name):])
    return default

def srd(A, d, lo, hi, nbytes):
    A(f's_mov_b32 s{d}, s{lo}')
    A(f's_and_b32 s{d+1}, s{hi}, 0xffff')
    A(f's_mov_b32 s{d+2}, {nbytes:#x}')
    A(f's_mov_b32 s{d+3}, 0x20000')

def stamp(A, i):
    if INSTR:
        A(f's_memrealtime s[{64+2*i}:{65+2*i}]')
NST = 10
def stamp_end(A):
    if not INSTR: return
    A('s_waitcnt vmcnt(0) lgkmcnt(0)')
    stamp(A, NST-1)
    A('s_getreg_b32 s62, hwreg(HW_REG_XCC_ID)')
    A('s_waitcnt lgkmcnt(0)')
    A('s_mov_b64 exec, 1')
    A('s_lshl_b32 s63, s2, 2')
    A(f's_add_u32 s63, s63, s{sW}')
    A('s_lshl_b32 s63, s63, 6')
    A(f's_add_u32 s63, s63, {WS_DBG}')
    A('v_mov_b32 v0, s63')
    for i in range(NST):
        A(f'v_mov_b32 v1, s{64+2*i}')
        A(f'global_store_dword v0, v1, s[60:61] offset:{4*i}')
    A('v_mov_b32 v1, s62')
    A(f'global_store_dword v0, v1, s[60:61] offset:{4*NST}')
    A('s_waitcnt vmcnt(0)')
def lstamp(A, vreg, idx):
    if not LST: return
    A('s_memtime s[64:65]' if ('cyc' in VAR and vreg == 32) else 's_memrealtime s[64:65]')
    A('s_waitcnt lgkmcnt(0)')
    if isinstance(idx, str):
        A(f's_mov_b32 m0, {idx}')
        A(f'v_writelane_b32 v{vreg}, s64, m0')
    else:
        A(f'v_writelane_b32 v{vreg}, s64, {idx}')
def ldump(A):
    if not LST: return
    A('s_lshl_b32 s80, s2, 2')
    A(f's_add_u32 s80, s80, s{sW}')
    A('s_lshl_b32 s80, s80, 10')
    A(f's_add_u32 s80, s80, {WS_DBG2}')
    A('v_lshlrev_b32 v0, 2, v1')
    A('v_add_u32 v0, s80, v0')
    A('global_store_dword v0, v30, s[60:61]')
    A('global_store_dword v0, v31, s[60:61] offset:256')
    A('global_store_dword v0, v32, s[60:61] offset:512')
    A('s_waitcnt vmcnt(0)')

def poll(A, tag, load, vwant, sleep, cmp='ne'):
    A('s_mov_b32 s30, 0x40000')
    A(f'POLL_{tag}:')
    A(load)
    A('s_waitcnt vmcnt(0)')
    A(f'v_cmp_{cmp}_u32 vcc, v10, v{vwant}')
    A('s_sub_u32 s30, s30, 1')
    A(f's_cbranch_scc1 POLLD_{tag}')
    A(f's_cbranch_vccz POLLD_{tag}')
    A(f's_sleep {sleep}')
    A(f's_branch POLL_{tag}')
    A(f'POLLD_{tag}:')

tail = []

def kernel(A):
    A(f'.globl {KNAME}\n.p2align 8\n.type {KNAME},@function\n{KNAME}:')
    A('s_cmp_ge_u32 s2, 256')
    A('s_cbranch_scc1 END2')
    stamp(A, 0)
    A('s_load_dwordx4 s[40:43], s[0:1], 0')
    A('s_load_dwordx4 s[44:47], s[0:1], 16')
    A('s_load_dwordx4 s[48:51], s[0:1], 48')
    A('s_load_dwordx2 s[52:53], s[0:1], 64')
    A('s_load_dwordx2 s[54:55], s[0:1], 80')
    A('s_load_dwordx4 s[56:59], s[0:1], 88')
    A('s_load_dwordx2 s[60:61], s[0:1], 104')
    A('v_lshrrev_b32 v8, 6, v0')
    A('v_and_b32 v1, 63, v0')
    A(f'v_readfirstlane_b32 s{sW}, v8')
    A('s_and_b32 s29, s2, 1')
    A('s_lshl_b32 s29, s29, 3')
    A('s_bfe_u32 s30, s2, 0x30003')
    A(f's_add_u32 s{sCB}, s29, s30')
    A('s_bfe_u32 s28, s2, 0x20001')
    A('s_lshl_b32 s31, s28, 2')
    A('s_lshr_b32 s32, s2, 6')
    A(f's_add_u32 s{sTB}, s31, s32')
    if 'norot' not in VAR:
        A('s_add_u32 s28, s28, s32')
        A('s_bfe_u32 s29, s2, 0x10005')
        A('s_lshl_b32 s29, s29, 1')
        A('s_add_u32 s28, s28, s29')
        A('s_and_b32 s28, s28, 3')
    A(f's_and_b32 s{sST}, s2, 7')
    A(f's_lshl_b32 s{sST}, s{sST}, 1')
    A('v_lshlrev_b32 v2, 4, v1')
    A(f's_cmp_lt_u32 s{sW}, 4')
    A('s_cbranch_scc1 COMPUTE')
    helper(A)
    A('COMPUTE:')
    p1_compute(A)
    attention(A)
    p3_compute(A)
    A('END:')
    stamp_end(A)
    A('END2:')
    A('s_endpgm')
    A.lines += tail

def helper(A):
    A(f's_sub_u32 s{sW}, s{sW}, 4')
    A('v_lshrrev_b32 v8, 3, v1')
    A('v_lshlrev_b32 v8, 11, v8')
    A('v_lshrrev_b32 v9, 4, v1')
    A('v_and_b32 v10, 7, v1')
    A('v_xor_b32 v10, v10, v9')
    A('v_lshl_add_u32 v16, v10, 4, v8')
    A('v_xor_b32 v10, 4, v10')
    A('v_lshl_add_u32 v17, v10, 4, v8')
    A('v_add_u32 v17, 15360, v17')
    A('v_add_u32 v18, 30720, v16')
    A('v_add_u32 v19, 30720, v17')
    A(f's_lshl_b32 s34, s{sTB}, 18')
    A(f's_and_b32 s29, s{sCB}, 3')
    A('s_lshl_b32 s29, s29, 16')
    A('s_add_u32 s33, s34, s29')
    A(f's_lshl_b32 s29, s{sW}, 7')
    A('s_add_u32 s33, s33, s29')
    A(f's_lshl_b32 s36, s{sW}, 12')
    A('s_mov_b32 s37, s36')
    A('s_mov_b32 s38, 0')
    A('s_waitcnt lgkmcnt(0)')
    srd(A, SX, 40, 41, 4 << 20)
    A(f's_cmp_ge_u32 s{sCB}, 8')
    A('s_cselect_b32 s42, s48, s42')
    A('s_cselect_b32 s43, s49, s43')
    A('s_cselect_b32 s44, s50, s44')
    A('s_cselect_b32 s45, s51, s45')
    A('s_cselect_b32 s46, s52, s46')
    A('s_cselect_b32 s47, s53, s47')
    A(f's_bitcmp1_b32 s{sCB}, 2')
    A('s_cselect_b32 s44, s46, s44')
    A('s_cselect_b32 s45, s47, s45')
    srd(A, SKV, 44, 45, 65536)
    lstamp(A, 30, 20)
    A('H_KV:')
    if 'late' not in VAR:
        A(f's_cmp_lt_u32 s37, {2*SLOT}')
        A('s_cbranch_scc1 H_KV2')
        A('s_waitcnt vmcnt(8)')
        A('s_barrier')
        A('H_KV2:')
    A('s_lshl_b32 s29, s28, 9')
    A('s_add_u32 s29, s29, s33')
    A('s_mov_b32 m0, s37')
    A('s_lshl_b32 s30, s28, 14')
    for i in range(4):
        A(f'buffer_load_dwordx4 v{16+i}, s[{SX}:{SX+3}], s29 offen offset:{i*1024} lds')
    A('s_add_u32 m0, s37, 16384')
    A('s_add_u32 s30, s30, s36')
    for i in range(4):
        A(f'buffer_load_dwordx4 v2, s[{SKV}:{SKV+3}], s30 offen offset:{i*1024} lds')
    if LST:
        A('s_lshr_b32 s49, s37, 15')
        A('s_add_u32 s49, s49, 21')
    lstamp(A, 30, 's49')
    A('s_add_u32 s28, s28, 1')
    A('s_and_b32 s28, s28, 3')
    A(f's_add_u32 s37, s37, {SLOT}')
    A(f's_cmp_lt_u32 s37, {4*SLOT}')
    A('s_cbranch_scc1 H_KV')
    A('s_mov_b32 s37, s36')
    A('v_bfe_u32 v10, v1, 2, 2')
    A('v_xor_b32 v10, v10, v9')
    A('v_lshlrev_b32 v10, 6, v10')
    A('v_lshl_add_u32 v10, v9, 11, v10')
    A('v_and_b32 v8, 3, v1')
    A('v_lshl_add_u32 v20, v8, 4, v10')
    A('v_add_u32 v21, 7168, v20')
    A('v_add_u32 v22, 14336, v20')
    A('v_add_u32 v23, 21504, v20')
    srd(A, SW, 42, 43, 2 << 20)
    A(f's_lshl_b32 s29, s{sW}, 16')
    A('s_add_u32 s34, s34, s29')
    A(f's_and_b32 s35, s{sCB}, 7')
    A('s_lshl_b32 s35, s35, 8')
    A(f's_lshl_b32 s29, s{sW}, 15')
    A('s_add_u32 s35, s35, s29')
    if 'late' in VAR:
        A('s_waitcnt vmcnt(24)')
        A('s_barrier')
    else:
        A('s_branch H_ISSUE')
    A('H_LOOP:')
    A('s_waitcnt vmcnt(16)')
    lstamp(A, 30, 's38')
    A('s_barrier')
    A('H_ISSUE:')
    lstamp(A, 31, 's38')
    A(f's_lshl_b32 s29, s{sST}, 7')
    A('s_add_u32 s29, s29, s34')
    A('s_mov_b32 m0, s37')
    A(f's_lshl_b32 s30, s{sST}, 17')
    for i in range(4):
        A(f'buffer_load_dwordx4 v{16+i}, s[{SX}:{SX+3}], s29 offen offset:{i*1024} lds')
    A('s_add_u32 m0, s37, 16384')
    A('s_add_u32 s30, s30, s35')
    for i in range(4):
        A(f'buffer_load_dwordx4 v{20+i}, s[{SW}:{SW+3}], s30 offen offset:{i*1024} lds')
    A(f's_add_u32 s{sST}, s{sST}, 1')
    A(f's_and_b32 s{sST}, s{sST}, 15')
    A(f's_add_u32 s37, s37, {SLOT}')
    A(f's_and_b32 s37, s37, {4*SLOT-1:#x}')
    lstamp(A, 32, 's38')
    A('s_add_u32 s38, s38, 1')
    A('s_cmp_lt_u32 s38, 16')
    A('s_cbranch_scc1 H_LOOP')
    A('s_load_dwordx2 s[40:41], s[0:1], 32')
    A('s_load_dwordx2 s[42:43], s[0:1], 72')
    for n, i in ((16, 16), (8, 17), (0, 18)):
        A(f's_waitcnt vmcnt({n})')
        lstamp(A, 30, i)
        A('s_barrier')
        lstamp(A, 31, i)
    A('v_lshrrev_b32 v8, 3, v1')
    A('v_lshlrev_b32 v8, 11, v8')
    A('v_lshrrev_b32 v10, 2, v1')
    A('v_lshrrev_b32 v12, 4, v1')
    A('v_xor_b32 v10, v10, v12')
    A('v_and_b32 v10, 1, v10')
    A('v_lshl_add_u32 v8, v10, 6, v8')
    A('v_and_b32 v10, 3, v1')
    A('v_lshl_add_u32 v16, v10, 4, v8')
    A('v_add_u32 v17, 15360, v16')
    A('v_add_u32 v18, 30720, v16')
    A('v_add_u32 v19, 46080, v16')
    A(f's_lshl_b32 s34, s{sCB}, 7')
    A(f's_lshl_b32 s29, s{sW}, 16')
    A('s_add_u32 s34, s34, s29')
    A('s_mov_b32 s37, s36')
    A('s_and_b32 s32, s2, 6')
    A(f's_and_b32 s{sST}, s{sCB}, 8')
    A(f's_add_u32 s{sST}, s{sST}, s32')
    A('s_waitcnt lgkmcnt(0)')
    A('s_and_b32 s41, s41, 0xffff')
    A('s_and_b32 s43, s43, 0xffff')
    A(f's_mov_b32 s{SWO+2}, 0x200000')
    A(f's_mov_b32 s{SWO+3}, 0x20000')
    srd(A, SWS, 60, 61, WS_BYTES)
    A('v_and_b32 v9, 15, v1')
    A('v_lshlrev_b32 v9, 7, v9')
    A('v_lshlrev_b32 v12, 2, v1')
    A('v_mov_b32 v11, 1')
    A('v_add_u32 v13, s36, v2')
    A('v_add_u32 v14, 0x10000, v13')
    A(f's_lshl_b32 s44, s{sTB}, 11')
    A(f's_add_u32 s44, s44, {WS_FLAG}')
    A(f's_lshl_b32 s45, s{sCB}, 7')
    A('s_add_u32 s45, s45, s44')
    lstamp(A, 30, 19)
    A('s_barrier')
    lstamp(A, 31, 19)
    def wo_addr():
        A(f's_cmp_ge_u32 s{sST}, 8')
        A(f's_cselect_b32 s{SWO}, s42, s40')
        A(f's_cselect_b32 s{SWO+1}, s43, s41')
        A(f's_and_b32 s29, s{sST}, 7')
        A('s_lshl_b32 s29, s29, 18')
        A('s_mov_b32 m0, s37')
        A('s_add_u32 s29, s29, s34')
    def wo_next():
        A(f's_add_u32 s{sST}, s{sST}, 1')
        A(f's_and_b32 s{sST}, s{sST}, 15')
    A('H_WO1:')
    wo_addr()
    for i in range(4):
        A(f'buffer_load_dwordx4 v{16+i}, s[{SWO}:{SWO+3}], s29 offen offset:{i*1024} lds')
    wo_next()
    A('s_add_u32 s37, s37, 16384')
    A(f's_cmp_lt_u32 s37, {8*16384}')
    A('s_cbranch_scc1 H_WO1')
    def hold(j, i):
        return v(80+16*j+4*i, 4) if j < 4 else a(16*(j-4)+4*i, 4)
    for j in range(8):
        wo_addr()
        for i in range(4):
            A(f'buffer_load_dwordx4 {hold(j,i)}, v{16+i}, s[{SWO}:{SWO+3}], s29 offen offset:{i*1024}')
        wo_next()
    A('s_waitcnt vmcnt(0)')
    A('s_barrier')
    A(f's_cmp_lg_u32 s{sW}, 0')
    A('s_cbranch_scc1 H_NOPOLL2')
    A('s_mov_b32 exec_hi, 0')
    A(f'buffer_store_dword v11, v12, {W}, s45 offen sc1')
    A('s_mov_b32 exec_hi, -1')
    poll(A, 'O', f'buffer_load_dword v10, v9, {W}, s44 offen sc1', 11, 4)
    A('H_NOPOLL2:')
    A('s_barrier')
    lstamp(A, 31, 32)
    for j in range(8):
        A('s_waitcnt lgkmcnt(0)')
        A('s_barrier')
        lstamp(A, 31, 33+j)
        for i in range(4):
            A(f'ds_write_b128 v{13 + j//4}, {hold(j,i)} offset:{(j%4)*16384+i*1024}')
    A('s_waitcnt lgkmcnt(0)')
    if LST:
        for j in range(7):
            A('s_barrier')
            lstamp(A, 31, 41+j)
    ldump(A)
    A('s_endpgm')

def kv_adv():
    return ['s_add_u32 s33, s33, 4096', 's_and_b32 s33, s33, 0x3ffff', 's_add_u32 s34, s32, s33']
def kv_loads(b):
    return [f'buffer_load_dwordx4 {a(AK+8*b,4)}, v2, {W}, s34 offen sc1',
            f'buffer_load_dwordx4 {a(AK+8*b+4,4)}, v2, {W}, s34 offen offset:1024 sc1',
            f'buffer_load_dwordx4 {a(AV+8*b,4)}, v2, {W}, s34 offen offset:2048 sc1',
            f'buffer_load_dwordx4 {a(AV+8*b+4,4)}, v2, {W}, s34 offen offset:3072 sc1']
sel_code = [f'v_mov_b32 v{SEL+3}, 0x3f803f80', f'v_and_b32 v{SEL+2}, 7, v1', f'v_cmp_eq_u32 vcc, 0, v{SEL+2}',
            f'v_cmp_eq_u32 s[46:47], 4, v{SEL+2}', f'v_mov_b32 v{IDX}, 0xdddddddd', 's_nop 0',
            f'v_cndmask_b32 v{SEL}, 0, v{SEL+3}, vcc', f'v_cndmask_b32 v{SEL+1}, 0, v{SEL+3}, vcc',
            f'v_cndmask_b32 v{SEL+2}, 0, v{SEL+3}, s[46:47]', f'v_cndmask_b32 v{SEL+3}, 0, v{SEL+3}, s[46:47]']

def p1_compute(A):
    XA, WA = 3, 7
    KXA, KWA, GA, GB, KAC, GAC = 80, 82, 83, 84, 88, 92
    NPQ = opt('npq', 2)
    A('v_lshlrev_b32 v3, 7, v1')
    A('s_lshr_b32 s30, s2, 3')
    A(f's_mul_i32 s30, s30, {max(NPQ//2,1)}')
    A(f's_add_u32 s30, s30, s{sW}')
    A(f's_lshl_b32 s31, s{sST}, 4')
    A('s_add_u32 s30, s30, s31')
    A('s_and_b32 s30, s30, 255')
    A('s_lshl_b32 s30, s30, 13')
    A(f's_cmp_lt_u32 s{sW}, {NPQ//2}')
    A('s_cselect_b32 s30, s30, 0x40000000')
    A(f's_lshl_b32 s29, s{sW}, 10')
    A('s_and_b32 s29, s29, 1024')
    A(f's_add_u32 m0, s29, {L_GATE}')
    A('s_waitcnt lgkmcnt(0)')
    srd(A, SG, 54, 55, 2048)
    A(f'buffer_load_dwordx4 v2, s[{SG}:{SG+3}], s29 offen lds')
    A(f's_cmp_ge_u32 s{sCB}, 8')
    A('s_cselect_b32 s42, s48, s42')
    A('s_cselect_b32 s43, s49, s43')
    srd(A, SW, 42, 43, 2 << 20)
    srd(A, SWS, 60, 61, WS_BYTES)
    A(f's_lshl_b32 s29, s{sTB}, 4')
    A(f's_add_u32 s29, s29, s{sCB}')
    A('s_lshl_b32 s29, s29, 7')
    A(f's_add_u32 s29, s29, {WS_FLAG}')
    A(f's_cmp_eq_u32 s{sW}, 3')
    A('s_cselect_b32 s29, s29, 0x40000000')
    A('v_lshlrev_b32 v8, 2, v1')
    A('v_mov_b32 v9, 0')
    A('s_mov_b32 exec_hi, 0')
    A(f'buffer_store_dword v9, v8, {W}, s29 offen sc1')
    A('s_mov_b32 exec_hi, -1')
    A(f'buffer_load_dword v0, v3, s[{SW}:{SW+3}], s30 offen')
    A('v_and_b32 v8, 15, v1')
    A(f's_and_b32 s29, s{sW}, 1')
    A('s_lshl_b32 s29, s29, 4')
    A('v_add_u32 v8, s29, v8')
    A('v_lshrrev_b32 v9, 4, v1')
    A('v_bfe_u32 v10, v8, 1, 3')
    A('v_xor_b32 v10, v10, v9')
    A('v_lshlrev_b32 v8, 7, v8')
    A(f'v_lshl_add_u32 v{KXA}, v10, 4, v8')
    A('v_xor_b32 v10, 4, v10')
    A(f'v_lshl_add_u32 v{KXA+1}, v10, 4, v8')
    A('v_bfe_u32 v11, v1, 2, 2')
    A('v_and_b32 v14, 3, v1')
    A('v_lshl_add_u32 v12, v9, 3, v11')
    A('v_lshlrev_b32 v12, 6, v12')
    A('v_lshl_add_u32 v12, v14, 3, v12')
    A(f's_lshr_b32 s29, s{sW}, 1')
    A('s_lshl_b32 s29, s29, 5')
    A(f'v_add_u32 v{KWA}, s29, v12')
    A(f'v_lshlrev_b32 v{GB}, 4, v9')
    A(f'v_add_u32 v{GB}, {L_GATE}, v{GB}')
    A('s_lshl_b32 s29, s28, 9')
    A(f'v_add_u32 v{GA}, s29, v{GB}')
    for r in range(8):
        A(f'v_mov_b32 v{KAC+r}, 0')
    A('v_and_b32 v15, 31, v1')
    A('v_lshrrev_b32 v9, 5, v1')
    A('v_bfe_u32 v10, v1, 1, 3')
    A('v_xor_b32 v10, v10, v9')
    A('v_lshlrev_b32 v15, 7, v15')
    A(f's_and_b32 s29, s{sW}, 1')
    A('s_lshl_b32 s29, s29, 13')
    A('v_add_u32 v15, s29, v15')
    for st in range(4):
        A(f'v_xor_b32 v12, {2*st}, v10')
        A(f'v_lshl_add_u32 v{XA+st}, v12, 4, v15')
    A('v_lshl_add_u32 v12, v9, 3, v11')
    A('v_bfe_u32 v13, v1, 4, 1')
    A('v_lshlrev_b32 v13, 5, v13')
    A('v_lshl_add_u32 v13, v14, 3, v13')
    A(f's_and_b32 s30, s{sW}, 2')
    A('v_xor_b32 v14, s30, v11')
    A(f'v_lshl_add_u32 v{WA}, v14, 6, v13')
    A('v_xor_b32 v14, 1, v14')
    A(f'v_lshl_add_u32 v{WA+1}, v14, 6, v13')
    A('v_lshlrev_b32 v14, 8, v12')
    A(f'v_add_u32 v{WA}, v{WA}, v14')
    A(f'v_add_u32 v{WA+1}, v{WA+1}, v14')
    for r in range(SB, SB+64):
        A(f'v_mov_b32 v{r}, 0')
    for r in range(16):
        A(f'v_accvgpr_write_b32 a{AL+r}, 0')
    for r in range(4):
        A(f'v_accvgpr_write_b32 a{AV+28+r}, 0')
    for l in sel_code: A(l)
    A(f's_lshr_b32 s32, s{sCB}, 3')
    A('s_lshl_b32 s37, s32, 31')
    A('s_lshl_b32 s31, s32, 13')
    A('s_lshl_b32 s32, s32, 18')
    A(f's_lshl_b32 s30, s{sTB}, 2')
    A(f's_and_b32 s29, s{sCB}, 3')
    A('s_add_u32 s30, s30, s29')
    A('s_lshl_b32 s35, s30, 12')
    A('s_add_u32 s35, s35, s32')
    A('s_lshl_b32 s36, s30, 7')
    A('s_add_u32 s36, s36, s31')
    A(f's_and_b32 s31, s{sW}, 1')
    A('s_lshl_b32 s31, s31, 6')
    A('s_add_u32 s36, s36, s31')
    A(f's_add_u32 s36, s36, {WS_G}')
    A(f's_xor_b32 s37, s37, {f32bits(-LOG2E):#x}')
    A('s_lshr_b32 s33, s2, 3')
    A('s_lshl_b32 s33, s33, 13')
    A('s_add_u32 s34, s32, s33')
    A(f's_mov_b32 s39, {SLOT}')
    A(f's_cmp_eq_u32 s{sW}, 3')
    A(f's_cselect_b32 s45, {(1<<NSIG)|(1<<NPOLL)|(1<<NCHK):#x}, 0')
    stamp(A, 1)
    L = Cnt(A, 'lgkmcnt', 15)
    A('s_mov_b32 s38, 0')
    A('s_waitcnt vmcnt(2)')
    A('s_barrier')
    A(f's_bitcmp1_b32 s{sCB}, 2')
    A('s_cbranch_scc1 V_START')
    FB = AQ
    def kvloop(isv):
        tag = 'V' if isv else 'K'
        def rd(st):
            fb = FB + 12*(st % 4)
            for rho in range(2):
                L.issue(f'ds_read_b64_tr_b16 {a(fb+2*rho,2)}, v{KWA} offset:{16384+st*2048+rho*256}', ('k', st))
            L.issue(f'ds_read_b128 {a(fb+4,4)}, v{KXA+(st&1)} offset:{(st>>1)*4096}', ('k', st))
            if not isv:
                L.issue(f'ds_read_b128 {a(fb+8,4)}, v{GA} offset:{st*64}', ('k', st))
        def mm(st):
            fb = FB + 12*(st % 4)
            L.need(('k', st))
            if isv:
                A(f'v_mfma_f32_16x16x32_bf16 {v(KAC,4)}, {a(fb+4,4)}, {a(fb,4)}, {v(KAC,4)}')
            else:
                A(f'v_mfma_f32_16x16x32_bf16 {v(KAC,4)}, {a(fb,4)}, {a(fb+4,4)}, {v(KAC,4)}')
                A(f'v_mfma_f32_16x16x32_bf16 {v(GAC,4)}, {a(fb+8,4)}, {a(fb+4,4)}, {v(GAC,4)}')
        A(f'{tag}_START:')
        L.q = []
        for st in range(3): rd(st)
        A(f'{tag}_LOOP:')
        q0 = list(L.q)
        for st in range(5):
            mm(st)
            rd(st + 3)
        for r in (KXA, KXA+1, KWA):
            A(f'v_add_u32 v{r}, {SLOT}, v{r}')
        A('s_add_u32 s28, s28, 1')
        A('s_and_b32 s28, s28, 3')
        A('s_lshl_b32 s29, s28, 9')
        A(f'v_add_u32 v{GA}, s29, v{GB}')
        A('s_add_u32 s38, s38, 1')
        A('s_cmp_lt_u32 s38, 4')
        L.drain()
        A('s_barrier')
        A(f's_cbranch_scc0 {tag}_TAIL')
        for st in range(5, 8):
            mm(st)
            rd(st - 5)
        assert L.q == q0
        A(f's_branch {tag}_LOOP')
        A(f'{tag}_TAIL:')
        L.q = []
        for st in range(5, 8): mm(st)
    kvloop(False)
    A('v_and_b32 v10, 15, v1')
    A('v_bfe_u32 v11, v1, 4, 1')
    A('v_lshl_add_u32 v10, v11, 5, v10')
    A('v_lshlrev_b32 v10, 4, v10')
    A('v_lshrrev_b32 v11, 5, v1')
    A('v_lshl_add_u32 v10, v11, 3, v10')
    A(f's_and_b32 s29, s{sW}, 1')
    A('s_lshl_b32 s29, s29, 8')
    A(f's_lshr_b32 s30, s{sW}, 1')
    A('s_lshl_b32 s30, s30, 10')
    A('s_add_u32 s29, s29, s30')
    A('s_add_u32 s35, s35, s29')
    A(f's_mov_b32 s31, {f32bits(QK_SCALE):#x}')
    A(f'v_mul_f32 v{GAC}, s37, v{GAC}')
    for r in range(4):
        A(f'v_mul_f32 v{KAC+r}, s31, v{KAC+r}')
    A(f'v_exp_f32 v{GAC}, v{GAC}')
    A('v_lshlrev_b32 v11, 2, v1')
    A(f'v_add_f32 v{GAC}, 1.0, v{GAC}')
    A(f'v_rcp_f32 v{GAC}, v{GAC}')
    A(f's_cmp_ge_u32 s{sW}, 2')
    A('s_cbranch_scc1 P1_KVST')
    A('s_mov_b64 exec, 0xffff')
    A(f'buffer_store_dword v{GAC}, v11, {W}, s36 offen sc1')
    A('s_mov_b64 exec, -1')
    A('s_branch P1_KVST')
    kvloop(True)
    A('v_and_b32 v10, 15, v1')
    A('v_lshrrev_b32 v11, 5, v1')
    A('v_lshl_add_u32 v10, v11, 5, v10')
    A('v_lshlrev_b32 v10, 4, v10')
    A('v_bfe_u32 v11, v1, 4, 1')
    A('v_lshl_add_u32 v10, v11, 3, v10')
    A(f's_and_b32 s29, s{sW}, 1')
    A('s_lshl_b32 s29, s29, 10')
    A(f's_lshr_b32 s30, s{sW}, 1')
    A('s_lshl_b32 s30, s30, 8')
    A('s_add_u32 s29, s29, s30')
    A('s_add_u32 s35, s35, s29')
    A('s_add_u32 s35, s35, 2048')
    A('P1_KVST:')
    A(f'v_cvt_pk_bf16_f32 v{KAC+8}, v{KAC}, v{KAC+1}')
    A(f'v_cvt_pk_bf16_f32 v{KAC+9}, v{KAC+2}, v{KAC+3}')
    A(f'buffer_store_dwordx2 {v(KAC+8,2)}, v10, {W}, s35 offen sc1')
    stamp(A, 2)
    def rd_list(st):
        sb = OB + 16*st
        def ra(aa, rho): return (f'ds_read_b64_tr_b16 {v(sb+4*aa+2*rho,2)}, v{WA+aa} offset:{16384+st*4096+rho*1024}', (st, 'A', aa))
        def rb(b): return (f'ds_read_b128 {v(sb+8+4*b,4)}, v{XA+st} offset:{b*4096}', (st, 'B', b))
        return [ra(0,0), ra(0,1), rb(0), rb(1), ra(1,0), ra(1,1)]
    allr = [r for st in range(4) for r in rd_list(st)]
    def group(st, rds, other=(), nother=2):
        rds = list(rds); other = list(other)
        sb = OB + 16*st
        for aa in range(2):
            for b in range(2):
                acc = SB + 16*(aa*2+b)
                L.need((st, 'A', aa), (st, 'B', b))
                A(f'v_mfma_f32_32x32x16_bf16 {v(acc,16)}, {v(sb+4*aa,4)}, {v(sb+8+4*b,4)}, {v(acc,16)}')
                for _ in range(2):
                    if rds: L.issue(*rds.pop(0))
                for _ in range(nother):
                    if other: A(other.pop(0))
        assert not rds
        for o in other: A(o)
    L.q = []
    A('s_mov_b32 s38, 0')
    A('s_nop 1')
    for r in allr[:16]: L.issue(*r)
    adr = [f'v_add_u32 v{r}, s29, v{r}' for r in (XA, XA+1, XA+2, XA+3, WA, WA+1)]
    def stage(mode, extra=()):
        L.need(*[r[1] for r in allr[:8]])
        group(0, allr[16:24], ['s_and_b32 s29, s38, 3', 's_cmp_eq_u32 s29, 3', f's_cselect_b32 s29, {(-3*SLOT) & 0xffffffff:#x}, s39',
                               's_add_u32 s38, s38, 1', f's_cmp_eq_u32 s38, {NSIG}' if mode == 'loop' else ''])
        if mode == 'last':
            z = [f'v_mov_b32 v{OB+r}, 0' for r in range(64)]
            ex = list(extra); zz = z[:12]
            ex = [e if e else zz.pop(0) for e in ex] + zz
            L.need(*[r[1] for r in allr[8:16]])
            group(1, [], ex, 4)
            L.drain()
            A('s_barrier')
            group(2, [], z[12:32], 5)
            group(3, [], z[32:48], 4)
            for l in z[48:]: A(l)
            return
        L.need(*[r[1] for r in allr[8:16]])
        group(1, [], list(extra) + adr, 3)
        if mode == 'loop':
            A('s_cbranch_scc1 Q_PRE')
            A('Q_PRE_RET:')
        L.drain()
        A('s_barrier')
        group(2, allr[0:8], ['', '', '', '', '', '', 's_bitcmp1_b32 s45, s38', 's_cbranch_scc1 Q_POST\nQ_POST_RET:'] if mode == 'loop' else [])
        group(3, allr[8:16])
    A('Q_LOOP:')
    q0 = list(L.q)
    stage('loop')
    assert L.q == q0, (L.q, q0)
    A('s_cmp_lt_u32 s38, 13')
    A('s_cbranch_scc1 Q_LOOP')
    for b in range(3):
        ex = []
        for i, l in enumerate(kv_loads(b)):
            ex += [l, '', ''] if b < 2 else [l]
        if b < 2:
            ex = [kv_loads(b)[0], adr[0], adr[1], kv_loads(b)[1], adr[2], adr[3], kv_loads(b)[2], adr[4], adr[5], kv_loads(b)[3]] + kv_adv()
            sv = adr; adr = []
            stage('peel', ex)
            adr = sv
        else:
            stage('last', [kv_loads(b)[0], '', '', '', kv_loads(b)[1], '', '', '', kv_loads(b)[2], '', '', '', kv_loads(b)[3]] + kv_adv())
    T = Asm()
    T('Q_PRE:')
    T('s_waitcnt vmcnt(0)')
    T('s_branch Q_PRE_RET')
    T('Q_POST:')
    T(f's_cmp_eq_u32 s38, {NPOLL}')
    T('s_cbranch_scc1 Q_POLL')
    T(f's_cmp_eq_u32 s38, {NCHK}')
    T('s_cbranch_scc1 Q_CHECK')
    T('s_and_b32 s30, s2, 1')
    T('s_lshl_b32 s30, s30, 7')
    T('v_mov_b32 v0, s30')
    T('v_mov_b32 v11, 1')
    T('s_mov_b64 exec, 1')
    T(f'global_atomic_add v0, v11, s[{DBG}:{DBG+1}] sc1')
    T('s_mov_b64 exec, -1')
    T('s_branch Q_POST_RET')
    T('Q_POLL:')
    T('v_and_b32 v0, 1, v1')
    T('v_lshlrev_b32 v0, 7, v0')
    T('v_mov_b32 v11, 128')
    T(f'global_load_dword v10, v0, s[{DBG}:{DBG+1}] sc1')
    T('s_branch Q_POST_RET')
    T('Q_CHECK:')
    T('s_waitcnt vmcnt(0)')
    T('v_cmp_lt_u32 vcc, v10, v11')
    T('s_nop 1')
    T('s_cbranch_vccz Q_POST_RET')
    poll(T, 'KV', f'global_load_dword v10, v0, s[{DBG}:{DBG+1}] sc1', 11, 8, 'lt')
    T('s_branch Q_POST_RET')
    tail.extend(T.lines)
    stamp(A, 3)

def attention(A):
    def qk(t, kb, half):
        c = '0' if half == 0 else v(SB+16*t, 16)
        return f'v_mfma_f32_32x32x16_bf16 {v(SB+16*t,16)}, {a(AK+8*kb+4*half,4)}, {a(AQ+8*t+4*half,4)}, {c}'
    def pv(t, vb, half):
        return f'v_smfmac_f32_32x32x32_bf16 {v(OB+16*t,16)}, {a(AV+8*vb+4*half,4)}, {v(SB+16*t+8*half,8)}, v{IDX}'
    def sm(t, half):
        return f'v_smfmac_f32_16x16x64_bf16 {a(AL+4*t,4)}, {v(SEL,4)}, {v(SB+16*t+8*half,8)}, v{IDX}'
    def ex(t, i):
        return f'v_exp_f32 v{SB+16*t+i}, v{SB+16*t+i}'
    A('v_and_b32 v8, 31, v1')
    A('v_lshlrev_b32 v8, 2, v8')
    A(f's_lshl_b32 s29, s{sTB}, 2')
    A(f's_and_b32 s30, s{sW}, 1')
    A('s_lshl_b32 s30, s30, 1')
    A('s_add_u32 s29, s29, s30')
    A('s_lshl_b32 s35, s29, 7')
    A(f's_lshr_b32 s30, s{sCB}, 3')
    A('s_lshl_b32 s30, s30, 13')
    A('s_add_u32 s35, s35, s30')
    A(f's_add_u32 s35, s35, {WS_G}')
    for b in range(2):
        A(f'buffer_load_dword v{10+b}, v8, {W}, s35 offen offset:{b*128} sc1')
    for t in range(4):
        for i in range(8):
            A(f'v_cvt_pk_bf16_f32 v{SB+16*t+i}, v{SB+16*t+2*i}, v{SB+16*t+2*i+1}')
        for i in range(8):
            A(f'v_accvgpr_write_b32 a{AQ+8*t+i}, v{SB+16*t+i}')
        if t == 1:
            A('s_waitcnt vmcnt(10)')
            A(qk(0, 0, 0))
            A(qk(0, 0, 1))
    for r in range(8):
        A(f'v_mov_b32 v{SB+48+8+r}, 0')
    A('s_lshl_b32 s50, s29, 17')
    A(f's_lshl_b32 s31, s{sCB}, 2')
    A(f's_and_b32 s29, s{sW}, 2')
    A('s_add_u32 s31, s31, s29')
    A('s_lshl_b32 s31, s31, 11')
    A('s_add_u32 s50, s50, s31')
    A(f's_add_u32 s50, s50, {WS_OF}')
    A('s_add_u32 s51, s50, 0x20000')
    A('s_mov_b32 s49, 0')
    A('s_mov_b32 s36, 16')
    stamp(A, 4)
    A('.p2align 6')
    A('AT_LOOP:')
    adv = kv_adv()
    for i in range(4):
        for t in range(4):
            nt, nb = (t+1) % 4, (i if t < 3 else (i+1) % 4)
            pt, pb = (t-1) % 4, (i if t > 0 else (i-1) % 4)
            ld = kv_loads((i+3) % 4)[t]
            A(qk(nt, nb, 0))
            for e in (0, 1, 2): A(ex(t, e))
            A(qk(nt, nb, 1))
            if t == 2 and i == 3: A('s_sub_u32 s36, s36, 1')
            for e in (3, 4, 5): A(ex(t, e))
            A(pv(pt, pb, 1))
            for e in (6, 7, 8): A(ex(t, e))
            A(sm(pt, 1))
            A(ld)
            for e in (9, 10): A(ex(t, e))
            A(pv(t, i, 0))
            if t == 3: A(adv[0]); A(adv[1])
            for e in (11, 12, 13): A(ex(t, e))
            A(sm(t, 0))
            if t == 3: A(adv[2])
            if t == 2: A('s_waitcnt vmcnt(7)')
            if t == 3 and i == 3: A('s_cmp_lg_u32 s36, 0')
            for e in (14, 15): A(ex(t, e))
    A('s_cbranch_scc1 AT_LOOP')
    stamp(A, 5)
    A('s_nop 1')
    A(sm(3, 1))
    A(pv(3, 3, 1))
    A('s_nop 4')
    A('AT_FIN:')
    C = SB
    for t in range(4):
        A(f'v_accvgpr_read_b32 v{4+t}, a{AL+4*t}')
    A(f'v_pk_mul_f32 {v(C,2)}, {v(OB,2)}, 0')
    A(f'v_pk_mul_f32 {v(C+2,2)}, {v(OB+2,2)}, 0')
    for r in range(4, 64, 2):
        c = C + (r & 2)
        A(f'v_pk_fma_f32 {v(c,2)}, {v(OB+r,2)}, 0, {v(c,2)}')
    A(f'v_min3_f32 v{C+4}, v4, v5, v6')
    A(f'v_max3_f32 v{C+5}, v4, v5, v6')
    A(f'v_pk_fma_f32 {v(C,2)}, v[4:5], 0, {v(C,2)}')
    A(f'v_pk_fma_f32 {v(C+2,2)}, v[6:7], 0, {v(C+2,2)}')
    A(f'v_min_f32 v{C+4}, v{C+4}, v7')
    A(f'v_max_f32 v{C+5}, v{C+5}, v7')
    A(f'v_pk_add_f32 {v(C,2)}, {v(C,2)}, {v(C+2,2)}')
    A(f'v_cmp_gt_f32 vcc, {f32bits(2.0**-16):#x}, v{C+4}')
    A(f's_mov_b32 s29, {f32bits(2.0**64):#x}')
    A(f'v_cmp_lt_f32 s[46:47], s29, v{C+5}')
    A(f'v_cmp_u_f32 s[52:53], v{C}, v{C+1}')
    for t in range(4):
        A(f'v_rcp_f32 v{4+t}, v{4+t}')
    A('s_or_b64 s[46:47], s[46:47], vcc')
    A('s_or_b64 s[46:47], s[46:47], s[52:53]')
    A('s_cselect_b32 s29, 1, 0')
    if 'forceslow' in VAR:
        A('s_mov_b32 s29, 1')
    A('s_andn2_b32 s29, s29, s49')
    A('s_cbranch_scc1 AT_SLOW')
    A('v_pk_mul_f32 v[4:5], v[4:5], v[10:11]')
    A('v_pk_mul_f32 v[6:7], v[6:7], v[10:11]')
    for t in range(4):
        aa, b = t >> 1, t & 1
        f = v(4 + (t & 2), 2)
        sel = 'op_sel:[0,1] op_sel_hi:[1,1]' if b else 'op_sel_hi:[1,0]'
        for r in range(0, 16, 2):
            A(f'v_pk_mul_f32 {v(OB+16*t+r,2)}, {v(OB+16*t+r,2)}, {f} {sel}')
        for r in range(8):
            A(f'v_cvt_pk_bf16_f32 v{SB+8*t+r}, v{OB+16*t+2*r}, v{OB+16*t+2*r+1}')
        A(f'buffer_store_dwordx4 {v(SB+8*t,4)}, v2, {W}, s{50+b} offen offset:{aa*2048} sc1')
        A(f'buffer_store_dwordx4 {v(SB+8*t+4,4)}, v2, {W}, s{50+b} offen offset:{aa*2048+1024} sc1')
    S = Asm()
    S('AT_SLOW:')
    S('s_mov_b32 s49, 1')
    S('s_waitcnt vmcnt(0)')
    for t in range(4):
        S(f'v_mov_b32 v{4+t}, 0xff800000')
    S('s_mov_b32 s34, s32')
    S('s_mov_b32 s36, 64')
    S('SL_MAX:')
    for l in kv_loads(0)[:2]: S(l)
    S('s_waitcnt vmcnt(0)')
    for t in range(4):
        S(qk(t, 0, 0)); S(qk(t, 0, 1))
    S('s_nop 15')
    for t in range(4):
        for r in range(0, 16, 2):
            S(f'v_max3_f32 v{4+t}, v{4+t}, v{SB+16*t+r}, v{SB+16*t+r+1}')
    S('s_add_u32 s34, s34, 4096')
    S('s_sub_u32 s36, s36, 1')
    S('s_cmp_lg_u32 s36, 0')
    S('s_cbranch_scc1 SL_MAX')
    for t in range(4):
        S(f'v_mov_b32 v8, v{4+t}')
        S('s_nop 1')
        S(f'v_permlane32_swap_b32 v8, v{4+t}')
        S('s_nop 1')
        S(f'v_max_f32 v{4+t}, v{4+t}, v8')
    for r in range(16):
        S(f'v_accvgpr_write_b32 a{AL+r}, 0')
    for r in range(64):
        S(f'v_mov_b32 v{OB+r}, 0')
    S('s_mov_b32 s34, s32')
    S('s_mov_b32 s36, 64')
    S('SL_ACC:')
    for l in kv_loads(0): S(l)
    S('s_waitcnt vmcnt(0)')
    for t in range(4):
        S(qk(t, 0, 0)); S(qk(t, 0, 1))
    S('s_nop 15')
    for t in range(4):
        for r in range(16):
            S(f'v_sub_f32 v{SB+16*t+r}, v{SB+16*t+r}, v{4+t}')
        for r in range(16):
            S(ex(t, r))
    S('s_nop 3')
    for t in range(4):
        for h in range(2):
            S(pv(t, 0, h)); S(sm(t, h))
    S('s_add_u32 s34, s34, 4096')
    S('s_sub_u32 s36, s36, 1')
    S('s_cmp_lg_u32 s36, 0')
    S('s_cbranch_scc1 SL_ACC')
    S('s_nop 15')
    S('s_branch AT_FIN')
    tail.extend(S.lines)

def p3_compute(A):
    WB, ACC = 16, 48
    def oreg(slot, st):
        i = 32*slot + 4*st
        return v(80+i, 4) if i < 64 else a(i-64, 4)
    A(f's_lshl_b32 s35, s{sTB}, 2')
    A(f's_add_u32 s35, s35, s{sW}')
    A('s_lshl_b32 s36, s35, 17')
    A(f's_add_u32 s36, s36, {WS_OF}')
    A('s_and_b32 s32, s2, 6')
    A(f's_and_b32 s37, s{sCB}, 8')
    A('s_add_u32 s37, s37, s32')
    A('s_lshl_b32 s37, s37, 13')
    A('v_add_u32 v3, 4096, v2')
    A('v_bfe_u32 v8, v1, 2, 2')
    A('v_lshrrev_b32 v9, 5, v1')
    A('v_lshl_add_u32 v9, v9, 2, v8')
    A('v_lshlrev_b32 v9, 7, v9')
    A('v_bfe_u32 v10, v1, 4, 1')
    A('v_lshl_add_u32 v9, v10, 5, v9')
    A('v_and_b32 v10, 3, v1')
    A('v_lshl_add_u32 v9, v10, 3, v9')
    A('v_lshrrev_b32 v8, 1, v8')
    A('v_lshl_add_u32 v5, v8, 6, v9')
    A('v_xor_b32 v8, 1, v8')
    A('v_lshl_add_u32 v6, v8, 6, v9')
    for r in range(32):
        A(f'v_mov_b32 v{ACC+r}, 0')
    A('s_mov_b32 s38, 0')
    srd(A, SOUT, 56, 57, 4 << 20)
    V = Cnt(A, 'vmcnt', 63)
    L = Cnt(A, 'lgkmcnt', 15)
    LK = opt('lk', 2)
    def oload(slot, st):
        return (f'buffer_load_dwordx4 {oreg(slot,st)}, v{2+st//4}, {W}, s30 offen offset:{(st%4)*1024} sc1', ('O', slot, st))
    adv = ['s_add_u32 s37, s37, 8192', 's_and_b32 s37, s37, 0x1ffff', 's_add_u32 s30, s36, s37']
    A(adv[2])
    def wr(slot, st):
        out = []
        for ct in range(2):
            for rho in range(2):
                out.append((f'ds_read_b64_tr_b16 {v(WB+8*(st%4)+4*ct+2*rho,2)}, v{5+ct} offset:{slot*16384+st*2048+rho*1024}', ('W', st%4, ct)))
        return out
    LA = 2
    A('s_waitcnt vmcnt(0)')
    stamp(A, 6)
    A('s_barrier')
    for st in range(LA):
        for r in wr(0, st): L.issue(*r)
    A('s_barrier')
    stamp(A, 7)
    for sl in range(LK):
        for st in range(8): V.issue(*oload(sl, st))
        for x in adv: A(x)
    A('P3_LOOP:')
    q0, v0 = list(L.q), list(V.q)
    for slot in range(4):
        for st in range(8):
            nst = st + LA
            if nst == 8:
                L.drain()
                A('s_barrier')
                if slot == 3:
                    A('v_xor_b32 v5, 0x10000, v5')
                    A('v_xor_b32 v6, 0x10000, v6')
            rds = wr(slot, nst) if nst < 8 else wr((slot+1) % 4, nst-8)
            for ct in range(2):
                L.need(('W', st%4, ct))
                V.need(('O', slot, st))
                A(f'v_mfma_f32_32x32x16_bf16 {v(ACC+16*ct,16)}, {v(WB+8*(st%4)+4*ct,4)}, {oreg(slot,st)}, {v(ACC+16*ct,16)}')
                L.issue(*rds[2*ct]); L.issue(*rds[2*ct+1])
                if ct == 0:
                    if slot == 4-LK and st == 0:
                        A('s_cmp_eq_u32 s38, 3')
                        A(f's_cselect_b32 s{SWS+2}, 0, s{SWS+2}')
                    V.issue(*oload((slot+LK) % 4, st))
                elif st == 7:
                    for x in adv: A(x)
    A('s_add_u32 s38, s38, 1')
    A('s_cmp_lt_u32 s38, 4')
    assert L.q == q0, (L.q, q0)
    assert V.q == v0, (V.q, v0)
    A('s_cbranch_scc1 P3_LOOP')
    stamp(A, 8)
    A('v_and_b32 v8, 31, v1')
    A('v_lshlrev_b32 v8, 11, v8')
    A('v_lshrrev_b32 v9, 5, v1')
    A('v_lshl_add_u32 v8, v9, 4, v8')
    A('s_lshl_b32 s29, s35, 16')
    A(f's_lshl_b32 s30, s{sCB}, 7')
    A('s_add_u32 s29, s29, s30')
    A('s_nop 6')
    D = 80
    A('s_waitcnt vmcnt(0)')
    for ct in range(2):
        for g in range(4):
            b = ACC+16*ct+4*g
            d = D+8*ct+2*g
            A(f'v_cvt_pk_bf16_f32 v{d}, v{b}, v{b+1}')
            A(f'v_cvt_pk_bf16_f32 v{d+1}, v{b+2}, v{b+3}')
    A('s_nop 1')
    for j in range(4):
        d = D+4*j
        A(f'v_permlane32_swap_b32 v{d}, v{d+2}')
        A(f'v_permlane32_swap_b32 v{d+1}, v{d+3}')
        A(f'buffer_store_dwordx4 {v(d,4)}, v8, s[{SOUT}:{SOUT+3}], s29 offen offset:{j*32}')

def build():
    ref = open(f'cdna_kernels/{NAME}.s.ref').read().split('\n')
    head = [l for l in ref if l.startswith(';') and '@launch' not in l and 'Override' not in l and 'grid=ceil' not in l]
    out = '\n'.join(head) + '\n'
    if 'aslist' in VAR:
        out += f'; @launch kernel={KNAME} grid=(256,1,1) block=(512,1,1) lds={LDS_BYTES}\n'
    else:
        out += f'; @launch grid=(256,1,1) block=(512,1,1) lds={LDS_BYTES}\n'
    out += '.amdgcn_target "amdgcn-amd-amdhsa--gfx950"\n.text\n'
    A = Asm()
    kernel(A)
    out += A.text()
    out += '.section .rodata,"a"\n' + kd(KNAME, 256, NARCH)
    return out

if __name__ == '__main__':
    args = [x for x in sys.argv[1:] if not x.startswith('--')]
    if '--instr' in sys.argv: INSTR = True
    if '--lst' in sys.argv: LST = True
    for x in sys.argv:
        if x.startswith('--var='): VAR = x[6:]
    dst = args[0] if args else f'cdna_kernels/{NAME}.s'
    open(dst, 'w').write(build())
```

```python
import math, sys
from asmlib import *

NAME = 'gated_mix__grouped_kv_mqa__grouped_kv_mqa__prompt'
KNAME = NAME + '_kernel'
WS_KV = 0
WS_G = 512 << 10
WS_FLAG = 576 << 10
WS_OF = 1 << 20
WS_BYTES = 9 << 20
QK_SCALE = math.log2(math.e) / math.sqrt(32.0)
LOG2E = math.log2(math.e)
INSTR = False
LST = False
VAR = ''
WS_DBG = 32 << 20
WS_DBG2 = 40 << 20

SLOT = 32768
L_GATE = 4 * SLOT
LDS_BYTES = 163840
L_KVR = 98304

SX, SW, SKV, SWS, SG = 4, 8, 12, 16, 20
SWO, SOUT = 8, 12
sW, sTB, sCB, sST = 24, 25, 26, 27
W = f's[{SWS}:{SWS+3}]'
DBG = 58
NARCH = 176
SB, OB = 16, 80
AL, AK, AV = 0, 16, 32
QB = 144
IDX, SEL = 9, 12
NSIG, NPOLL, NCHK = 2, 11, 13

def opt(name, default):
    for tok in VAR.split('_'):
        if tok.startswith(name) and tok[len(name):].isdigit():
            return int(tok[len(name):])
    return default

def srd(A, d, lo, hi, nbytes):
    A(f's_mov_b32 s{d}, s{lo}')
    A(f's_and_b32 s{d+1}, s{hi}, 0xffff')
    A(f's_mov_b32 s{d+2}, {nbytes:#x}')
    A(f's_mov_b32 s{d+3}, 0x20000')

def stamp(A, i):
    if INSTR:
        A(f's_mem{"time" if "allcyc" in VAR else "realtime"} s[{64+2*i}:{65+2*i}]')
NST = 10
def stamp_end(A):
    if not INSTR: return
    A('s_waitcnt vmcnt(0) lgkmcnt(0)')
    stamp(A, NST-1)
    A('s_getreg_b32 s62, hwreg(HW_REG_XCC_ID)')
    A('s_waitcnt lgkmcnt(0)')
    A('s_mov_b64 exec, 1')
    A('s_lshl_b32 s63, s2, 2')
    A(f's_add_u32 s63, s63, s{sW}')
    A('s_lshl_b32 s63, s63, 6')
    A(f's_add_u32 s63, s63, {WS_DBG}')
    A('v_mov_b32 v0, s63')
    for i in range(NST):
        A(f'v_mov_b32 v1, s{64+2*i}')
        A(f'global_store_dword v0, v1, s[60:61] offset:{4*i}')
    A('v_mov_b32 v1, s62')
    A(f'global_store_dword v0, v1, s[60:61] offset:{4*NST}')
    A('s_waitcnt vmcnt(0)')
def lstamp(A, vreg, idx):
    if not LST: return
    A('s_memtime s[64:65]' if ('cyc' in VAR and vreg == 32) else 's_memrealtime s[64:65]')
    A('s_waitcnt lgkmcnt(0)')
    if isinstance(idx, str):
        A(f's_mov_b32 m0, {idx}')
        A(f'v_writelane_b32 v{vreg}, s64, m0')
    else:
        A(f'v_writelane_b32 v{vreg}, s64, {idx}')
def ldump(A):
    if not LST: return
    A('s_lshl_b32 s80, s2, 2')
    A(f's_add_u32 s80, s80, s{sW}')
    A('s_lshl_b32 s80, s80, 10')
    A(f's_add_u32 s80, s80, {WS_DBG2}')
    A('v_lshlrev_b32 v0, 2, v1')
    A('v_add_u32 v0, s80, v0')
    A('global_store_dword v0, v30, s[60:61]')
    A('global_store_dword v0, v31, s[60:61] offset:256')
    A('global_store_dword v0, v32, s[60:61] offset:512')
    A('s_waitcnt vmcnt(0)')

def poll(A, tag, load, vwant, sleep, cmp='ne'):
    A('s_mov_b32 s30, 0x40000')
    A(f'POLL_{tag}:')
    A(load)
    A('s_waitcnt vmcnt(0)')
    A(f'v_cmp_{cmp}_u32 vcc, v10, v{vwant}')
    A('s_sub_u32 s30, s30, 1')
    A(f's_cbranch_scc1 POLLD_{tag}')
    A(f's_cbranch_vccz POLLD_{tag}')
    A(f's_sleep {sleep}')
    A(f's_branch POLL_{tag}')
    A(f'POLLD_{tag}:')

tail = []

def kernel(A):
    A(f'.globl {KNAME}\n.p2align 8\n.type {KNAME},@function\n{KNAME}:')
    A('s_cmp_ge_u32 s2, 256')
    A('s_cbranch_scc1 END2')
    stamp(A, 0)
    if 'flip' in VAR: A('s_xor_b32 s2, s2, 1')
    A('s_load_dwordx4 s[40:43], s[0:1], 0')
    A('s_load_dwordx4 s[44:47], s[0:1], 16')
    A('s_load_dwordx4 s[48:51], s[0:1], 48')
    A('s_load_dwordx2 s[52:53], s[0:1], 64')
    A('s_load_dwordx2 s[54:55], s[0:1], 80')
    A('s_load_dwordx4 s[56:59], s[0:1], 88')
    A('s_load_dwordx2 s[60:61], s[0:1], 104')
    A('v_lshrrev_b32 v8, 6, v0')
    A('v_and_b32 v1, 63, v0')
    A(f'v_readfirstlane_b32 s{sW}, v8')
    A('s_and_b32 s29, s2, 1')
    A('s_lshl_b32 s29, s29, 3')
    A('s_bfe_u32 s30, s2, 0x30003')
    A(f's_add_u32 s{sCB}, s29, s30')
    A('s_bfe_u32 s28, s2, 0x20001')
    A('s_lshl_b32 s31, s28, 2')
    A('s_lshr_b32 s32, s2, 6')
    A(f's_add_u32 s{sTB}, s31, s32')
    A('s_lshl_b32 s29, s32, 1')
    A('s_add_u32 s28, s28, s29')
    A('s_and_b32 s29, s30, 4')
    A('s_add_u32 s28, s28, s29')
    A('s_and_b32 s28, s28, 7')
    A(f's_and_b32 s{sST}, s2, 7')
    A(f's_lshl_b32 s{sST}, s{sST}, 1')
    A('v_lshlrev_b32 v2, 4, v1')
    A(f's_cmp_lt_u32 s{sW}, 4')
    A('s_cbranch_scc1 COMPUTE')
    helper(A)
    A('COMPUTE:')
    p1_compute(A)
    attention(A)
    p3_compute(A)
    A('END:')
    stamp_end(A)
    A('END2:')
    A('s_endpgm')
    A.lines += tail

def helper(A):
    A(f's_sub_u32 s{sW}, s{sW}, 4')
    A('v_lshrrev_b32 v8, 3, v1')
    A('v_lshlrev_b32 v8, 11, v8')
    A('v_lshrrev_b32 v9, 4, v1')
    A('v_and_b32 v10, 7, v1')
    A('v_xor_b32 v10, v10, v9')
    A('v_lshl_add_u32 v16, v10, 4, v8')
    A('v_xor_b32 v10, 4, v10')
    A('v_lshl_add_u32 v17, v10, 4, v8')
    A('v_add_u32 v17, 15360, v17')
    A('v_add_u32 v18, 30720, v16')
    A('v_add_u32 v19, 30720, v17')
    A(f's_lshl_b32 s34, s{sTB}, 18')
    A(f's_lshl_b32 s36, s{sW}, 12')
    A('s_mov_b32 s38, 0')
    A('s_bitcmp1_b32 s2, 0')
    A('s_cbranch_scc1 H_ODD')
    A(f's_and_b32 s29, s{sCB}, 3')
    A('s_lshl_b32 s29, s29, 16')
    A('s_add_u32 s33, s34, s29')
    A(f's_and_b32 s29, s{sW}, 1')
    A('s_lshl_b32 s29, s29, 15')
    A('s_add_u32 s33, s33, s29')
    A(f's_lshr_b32 s29, s{sW}, 1')
    A('s_lshl_b32 s29, s29, 7')
    A('s_add_u32 s33, s33, s29')
    A(f's_lshl_b32 s35, s{sW}, 11')
    A('s_mov_b32 s37, s35')
    A('s_waitcnt lgkmcnt(0)')
    srd(A, SX, 40, 41, 4 << 20)
    A(f's_bitcmp1_b32 s{sCB}, 2')
    A('s_cselect_b32 s44, s50, s44')
    A('s_cselect_b32 s45, s51, s45')
    A('s_cselect_b32 s46, s52, s46')
    A('s_cselect_b32 s47, s53, s47')
    srd(A, SKV, 44, 45, 65536)
    srd(A, SG, 46, 47, 65536)
    lstamp(A, 30, 20)
    A('H_KV:')
    A('s_cmp_lt_u32 s38, 3')
    A('s_cbranch_scc1 H_KV2')
    A('s_waitcnt vmcnt(12)')
    A('s_barrier')
    A('H_KV2:')
    A('s_lshl_b32 s29, s28, 8')
    A('s_add_u32 s29, s29, s33')
    A('s_mov_b32 m0, s37')
    A('s_lshl_b32 s30, s28, 13')
    for i in range(2):
        A(f'buffer_load_dwordx4 v{16+i}, s[{SX}:{SX+3}], s29 offen offset:{i*1024} lds')
    A('s_add_u32 m0, s37, 8192')
    A('s_add_u32 s30, s30, s35')
    for i in range(2):
        A(f'buffer_load_dwordx4 v2, s[{SKV}:{SKV+3}], s30 offen offset:{i*1024} lds')
    A('s_add_u32 m0, s37, 16384')
    A('s_add_u32 s28, s28, 1')
    for i in range(2):
        A(f'buffer_load_dwordx4 v2, s[{SG}:{SG+3}], s30 offen offset:{i*1024} lds')
    A('s_and_b32 s28, s28, 7')
    A(f's_add_u32 s37, s37, {SLOT}')
    A(f's_and_b32 s37, s37, {4*SLOT-1:#x}')
    A('s_add_u32 s38, s38, 1')
    A('s_cmp_lt_u32 s38, 8')
    A('s_cbranch_scc1 H_KV')
    A('s_mov_b32 s38, 0')
    A('s_mov_b32 s62, 0')
    A('s_mov_b32 s63, 1')
    A('s_branch H_Q')
    A('H_ODD:')
    A('s_mov_b32 s62, 19')
    A('s_mov_b32 s63, 12')
    A('s_waitcnt lgkmcnt(0)')
    srd(A, SX, 40, 41, 4 << 20)
    A('s_mov_b32 s42, s48')
    A('s_mov_b32 s43, s49')
    A('H_Q:')
    A('s_mov_b32 s37, s36')
    A('v_bfe_u32 v10, v1, 2, 2')
    A('v_xor_b32 v10, v10, v9')
    A('v_lshlrev_b32 v10, 6, v10')
    A('v_lshl_add_u32 v10, v9, 11, v10')
    A('v_and_b32 v8, 3, v1')
    A('v_lshl_add_u32 v20, v8, 4, v10')
    A('v_add_u32 v21, 7168, v20')
    A('v_add_u32 v22, 14336, v20')
    A('v_add_u32 v23, 21504, v20')
    srd(A, SW, 42, 43, 2 << 20)
    A(f's_lshl_b32 s29, s{sW}, 16')
    A('s_add_u32 s34, s34, s29')
    A(f's_and_b32 s35, s{sCB}, 7')
    A('s_lshl_b32 s35, s35, 8')
    A(f's_lshl_b32 s29, s{sW}, 15')
    A('s_add_u32 s35, s35, s29')
    A('H_LOOP:')
    A('s_bitcmp1_b32 s62, s38')
    A('s_cbranch_scc1 H_ISSUE')
    A('s_cmp_ge_u32 s38, 5')
    A('s_cbranch_scc1 H_W16')
    A('s_waitcnt vmcnt(14)')
    A('s_bitcmp0_b32 s63, s38')
    A('s_cbranch_scc1 H_W16')
    A('s_waitcnt vmcnt(8)')
    A('H_W16:')
    A('s_waitcnt vmcnt(16)')
    lstamp(A, 30, 's38')
    A('s_barrier')
    A('H_ISSUE:')
    lstamp(A, 31, 's38')
    A(f's_lshl_b32 s29, s{sST}, 7')
    A('s_add_u32 s29, s29, s34')
    A('s_mov_b32 m0, s37')
    A(f's_lshl_b32 s30, s{sST}, 17')
    for i in range(4):
        A(f'buffer_load_dwordx4 v{16+i}, s[{SX}:{SX+3}], s29 offen offset:{i*1024} lds')
    A('s_add_u32 m0, s37, 16384')
    A('s_add_u32 s30, s30, s35')
    for i in range(4):
        A(f'buffer_load_dwordx4 v{20+i}, s[{SW}:{SW+3}], s30 offen offset:{i*1024} lds')
    A(f's_add_u32 s{sST}, s{sST}, 1')
    A(f's_and_b32 s{sST}, s{sST}, 15')
    A(f's_add_u32 s37, s37, {SLOT}')
    A(f's_and_b32 s37, s37, {4*SLOT-1:#x}')
    lstamp(A, 32, 's38')
    A('s_add_u32 s38, s38, 1')
    A('s_cmp_lt_u32 s38, 16')
    A('s_cbranch_scc1 H_LOOP')
    A('s_load_dwordx2 s[40:41], s[0:1], 32')
    A('s_load_dwordx2 s[42:43], s[0:1], 72')
    srd(A, SWS, 60, 61, WS_BYTES)
    A(f's_lshr_b32 s32, s{sCB}, 3')
    A('s_lshl_b32 s32, s32, 18')
    A('s_add_u32 s32, s32, s36')
    A('s_lshr_b32 s33, s2, 4')
    A('s_lshl_b32 s33, s33, 14')
    def kv_chunk(c):
        A(f's_add_u32 m0, s36, {L_KVR + ((c+2)&3)*16384}')
        A('s_add_u32 s31, s32, s33')
        for i in range(4):
            A(f'buffer_load_dwordx4 v2, {W}, s31 offen offset:{i*1024} sc1 lds')
        A('s_add_u32 s33, s33, 16384')
        A('s_and_b32 s33, s33, 0x3ffff')
    for n, i in ((16, 16), (8, 17), (8, 18)):
        A(f's_waitcnt vmcnt({n})')
        lstamp(A, 30, i)
        A('s_barrier')
        lstamp(A, 31, i)
        if i == 17:
            kv_chunk(0)
            kv_chunk(1)
    A('v_lshrrev_b32 v8, 3, v1')
    A('v_lshlrev_b32 v8, 11, v8')
    A('v_lshrrev_b32 v10, 2, v1')
    A('v_lshrrev_b32 v12, 4, v1')
    A('v_xor_b32 v10, v10, v12')
    A('v_and_b32 v10, 1, v10')
    A('v_lshl_add_u32 v8, v10, 6, v8')
    A('v_and_b32 v10, 3, v1')
    A('v_lshl_add_u32 v16, v10, 4, v8')
    A('v_add_u32 v17, 15360, v16')
    A('v_add_u32 v18, 30720, v16')
    A('v_add_u32 v19, 46080, v16')
    A(f's_lshl_b32 s34, s{sCB}, 7')
    A(f's_lshl_b32 s29, s{sW}, 16')
    A('s_add_u32 s34, s34, s29')
    A('s_and_b32 s29, s2, 6')
    A(f's_and_b32 s{sST}, s{sCB}, 8')
    A(f's_add_u32 s{sST}, s{sST}, s29')
    A('s_waitcnt lgkmcnt(0)')
    A('s_and_b32 s41, s41, 0xffff')
    A('s_and_b32 s43, s43, 0xffff')
    A(f's_mov_b32 s{SWO+2}, 0x200000')
    A(f's_mov_b32 s{SWO+3}, 0x20000')
    A('v_and_b32 v9, 15, v1')
    A('v_lshlrev_b32 v9, 7, v9')
    A('v_lshlrev_b32 v12, 2, v1')
    A('v_mov_b32 v11, 1')
    A('v_add_u32 v13, s36, v2')
    A('v_add_u32 v14, 0x10000, v13')
    A(f's_lshl_b32 s44, s{sTB}, 11')
    A(f's_add_u32 s44, s44, {WS_FLAG}')
    A(f's_lshl_b32 s45, s{sCB}, 7')
    A('s_add_u32 s45, s45, s44')
    A('s_waitcnt vmcnt(4)')
    lstamp(A, 30, 19)
    A('s_barrier')
    lstamp(A, 31, 19)
    def hold(j, i):
        return v(48+16*j+4*i, 4) if j < 8 else a(16*(j-8)+4*i, 4)
    def wo_stage(n):
        A(f's_cmp_ge_u32 s{sST}, 8')
        A(f's_cselect_b32 s{SWO}, s42, s40')
        A(f's_cselect_b32 s{SWO+1}, s43, s41')
        A(f's_and_b32 s29, s{sST}, 7')
        A('s_lshl_b32 s29, s29, 18')
        if n < 6: A(f's_add_u32 m0, s36, {n*16384}')
        A('s_add_u32 s29, s29, s34')
        for i in range(4):
            if n < 6:
                A(f'buffer_load_dwordx4 v{16+i}, s[{SWO}:{SWO+3}], s29 offen offset:{i*1024} lds')
            else:
                A(f'buffer_load_dwordx4 {hold(n-6,i)}, v{16+i}, s[{SWO}:{SWO+3}], s29 offen offset:{i*1024}')
        A(f's_add_u32 s{sST}, s{sST}, 1')
        A(f's_and_b32 s{sST}, s{sST}, 15')
    V = Cnt(A, 'vmcnt', 63)
    def track(tag, n=4):
        V.q += [tag]*n
    track(('c', 1))
    kv_chunk(2); track(('c', 2))
    kv_chunk(3); track(('c', 3))
    nwo = 0
    for i in range(16):
        V.need(('c', i+1))
        A('s_barrier')
        if i + 4 < 16:
            kv_chunk(i+4); track(('c', i+4))
        for _ in range(2 if i < 4 else 1):
            if nwo < 16:
                wo_stage(nwo); track(('w', nwo)); nwo += 1
    assert nwo == 16
    A('s_waitcnt vmcnt(0)')
    A('s_barrier')
    A(f's_cmp_lg_u32 s{sW}, 0')
    A('s_cbranch_scc1 H_NOFLAG')
    A('s_mov_b32 exec_hi, 0')
    A(f'buffer_store_dword v11, v12, {W}, s45 offen sc1')
    A('s_mov_b32 exec_hi, -1')
    A('H_NOFLAG:')
    for j in range(2):
        for i in range(4):
            A(f'ds_write_b128 v14, {hold(j,i)} offset:{(2+j)*16384+i*1024}')
    A('s_cbranch_scc1 H_NOPOLL2')
    poll(A, 'O', f'buffer_load_dword v10, v9, {W}, s44 offen sc1', 11, 4)
    A('H_NOPOLL2:')
    A('s_barrier')
    lstamp(A, 31, 32)
    for j in range(8):
        A('s_waitcnt lgkmcnt(0)')
        A('s_barrier')
        lstamp(A, 31, 33+j)
        for i in range(4):
            A(f'ds_write_b128 v{13 + j//4}, {hold(j+2,i)} offset:{(j%4)*16384+i*1024}')
    A('s_waitcnt lgkmcnt(0)')
    if LST:
        for j in range(7):
            A('s_barrier')
            lstamp(A, 31, 41+j)
    ldump(A)
    A('s_endpgm')

def kv_adv():
    return ['s_add_u32 s33, s33, 4096', 's_and_b32 s33, s33, 0x3ffff', 's_add_u32 s34, s32, s33']
def kv_loads(b):
    return [f'buffer_load_dwordx4 {a(AK+8*b,4)}, v2, {W}, s34 offen sc1',
            f'buffer_load_dwordx4 {a(AK+8*b+4,4)}, v2, {W}, s34 offen offset:1024 sc1',
            f'buffer_load_dwordx4 {a(AV+8*b,4)}, v2, {W}, s34 offen offset:2048 sc1',
            f'buffer_load_dwordx4 {a(AV+8*b+4,4)}, v2, {W}, s34 offen offset:3072 sc1']
def kvr(st, b):
    return [f'ds_read_b128 {a(AK+8*b,4)}, v0 offset:{st*4096}',
            f'ds_read_b128 {a(AK+8*b+4,4)}, v0 offset:{st*4096+1024}',
            f'ds_read_b128 {a(AV+8*b,4)}, v0 offset:{st*4096+2048}',
            f'ds_read_b128 {a(AV+8*b+4,4)}, v0 offset:{st*4096+3072}']
sel_code = [f'v_mov_b32 v{SEL+3}, 0x3f803f80', f'v_and_b32 v{SEL+2}, 7, v1', f'v_cmp_eq_u32 vcc, 0, v{SEL+2}',
            f'v_cmp_eq_u32 s[46:47], 4, v{SEL+2}', f'v_mov_b32 v{IDX}, 0xdddddddd', 's_nop 0',
            f'v_cndmask_b32 v{SEL}, 0, v{SEL+3}, vcc', f'v_cndmask_b32 v{SEL+1}, 0, v{SEL+3}, vcc',
            f'v_cndmask_b32 v{SEL+2}, 0, v{SEL+3}, s[46:47]', f'v_cndmask_b32 v{SEL+3}, 0, v{SEL+3}, s[46:47]']

def p1_compute(A):
    XA, WA = 3, 7
    KXA, KWA, GA, GB, KST, KAC, VAC, GAC = 144, 146, 147, 148, 149, 152, 156, 160
    NPQ = opt('npq', 0)
    A('v_lshlrev_b32 v3, 7, v1')
    A('s_lshr_b32 s30, s2, 3')
    A(f's_mul_i32 s30, s30, {max(NPQ//2,1)}')
    A(f's_add_u32 s30, s30, s{sW}')
    A(f's_lshl_b32 s31, s{sST}, 4')
    A('s_add_u32 s30, s30, s31')
    A('s_and_b32 s30, s30, 255')
    A('s_lshl_b32 s30, s30, 13')
    A(f's_cmp_lt_u32 s{sW}, {NPQ//2}')
    A('s_cselect_b32 s30, s30, 0x40000000')
    A(f's_lshl_b32 s29, s{sW}, 10')
    A('s_and_b32 s29, s29, 1024')
    A(f's_add_u32 m0, s29, {L_GATE}')
    A('s_waitcnt lgkmcnt(0)')
    srd(A, SG, 54, 55, 2048)
    A(f'buffer_load_dwordx4 v2, s[{SG}:{SG+3}], s29 offen lds')
    A(f's_cmp_ge_u32 s{sCB}, 8')
    A('s_cselect_b32 s42, s48, s42')
    A('s_cselect_b32 s43, s49, s43')
    srd(A, SW, 42, 43, 2 << 20)
    srd(A, SWS, 60, 61, WS_BYTES)
    A(f's_lshl_b32 s29, s{sTB}, 4')
    A(f's_add_u32 s29, s29, s{sCB}')
    A('s_lshl_b32 s29, s29, 7')
    A(f's_add_u32 s29, s29, {WS_FLAG}')
    A(f's_cmp_eq_u32 s{sW}, 3')
    A('s_cselect_b32 s29, s29, 0x40000000')
    A('v_lshlrev_b32 v8, 2, v1')
    A('v_mov_b32 v9, 0')
    A('s_mov_b32 exec_hi, 0')
    A(f'buffer_store_dword v9, v8, {W}, s29 offen sc1')
    A('s_mov_b32 exec_hi, -1')
    A(f'buffer_load_dword v0, v3, s[{SW}:{SW+3}], s30 offen')
    A('v_and_b32 v8, 15, v1')
    A(f's_and_b32 s29, s{sW}, 1')
    A('s_lshl_b32 s29, s29, 4')
    A('v_add_u32 v8, s29, v8')
    A('v_lshrrev_b32 v9, 4, v1')
    A('v_bfe_u32 v10, v8, 1, 3')
    A('v_xor_b32 v10, v10, v9')
    A('v_lshlrev_b32 v8, 7, v8')
    A(f'v_lshl_add_u32 v{KXA}, v10, 4, v8')
    A('v_xor_b32 v10, 4, v10')
    A(f'v_lshl_add_u32 v{KXA+1}, v10, 4, v8')
    A('v_bfe_u32 v11, v1, 2, 2')
    A('v_and_b32 v14, 3, v1')
    A('v_lshl_add_u32 v12, v9, 3, v11')
    A('v_lshlrev_b32 v12, 6, v12')
    A('v_lshl_add_u32 v12, v14, 3, v12')
    A(f's_lshr_b32 s29, s{sW}, 1')
    A('s_lshl_b32 s29, s29, 5')
    A(f'v_add_u32 v{KWA}, s29, v12')
    A(f'v_lshlrev_b32 v{GB}, 4, v9')
    A(f'v_add_u32 v{GB}, {L_GATE}, v{GB}')
    A('s_lshl_b32 s29, s28, 8')
    A(f'v_add_u32 v{GA}, s29, v{GB}')
    for r in range(12):
        A(f'v_mov_b32 v{KAC+r}, 0')
    A('v_and_b32 v8, 15, v1')
    A('v_bfe_u32 v9, v1, 4, 1')
    A('v_lshrrev_b32 v10, 5, v1')
    A('v_lshl_add_u32 v12, v9, 5, v8')
    A('v_lshlrev_b32 v12, 4, v12')
    A('v_lshl_add_u32 v12, v10, 3, v12')
    A('v_lshl_add_u32 v13, v10, 5, v8')
    A('v_lshlrev_b32 v13, 4, v13')
    A('v_lshl_add_u32 v13, v9, 3, v13')
    A(f's_and_b32 s29, s{sW}, 1')
    A(f's_lshr_b32 s30, s{sW}, 1')
    A('s_lshl_b32 s31, s29, 8')
    A('s_lshl_b32 s32, s30, 10')
    A('s_add_u32 s31, s31, s32')
    A(f'v_add_u32 v{KST}, s31, v12')
    A('s_lshl_b32 s31, s29, 10')
    A('s_lshl_b32 s32, s30, 8')
    A('s_add_u32 s31, s31, s32')
    A(f'v_add_u32 v{KST+1}, s31, v13')
    A(f'v_lshlrev_b32 v{KST+2}, 2, v1')
    A('v_and_b32 v15, 31, v1')
    A('v_lshrrev_b32 v9, 5, v1')
    A('v_bfe_u32 v10, v1, 1, 3')
    A('v_xor_b32 v10, v10, v9')
    A('v_lshlrev_b32 v15, 7, v15')
    A(f's_and_b32 s29, s{sW}, 1')
    A('s_lshl_b32 s29, s29, 13')
    A('v_add_u32 v15, s29, v15')
    for st in range(4):
        A(f'v_xor_b32 v12, {2*st}, v10')
        A(f'v_lshl_add_u32 v{XA+st}, v12, 4, v15')
    A('v_lshl_add_u32 v12, v9, 3, v11')
    A('v_bfe_u32 v13, v1, 4, 1')
    A('v_lshlrev_b32 v13, 5, v13')
    A('v_lshl_add_u32 v13, v14, 3, v13')
    A(f's_and_b32 s30, s{sW}, 2')
    A('v_xor_b32 v14, s30, v11')
    A(f'v_lshl_add_u32 v{WA}, v14, 6, v13')
    A('v_xor_b32 v14, 1, v14')
    A(f'v_lshl_add_u32 v{WA+1}, v14, 6, v13')
    A('v_lshlrev_b32 v14, 8, v12')
    A(f'v_add_u32 v{WA}, v{WA}, v14')
    A(f'v_add_u32 v{WA+1}, v{WA+1}, v14')
    for r in range(SB, SB+64):
        A(f'v_mov_b32 v{r}, 0')
    for r in range(16):
        A(f'v_accvgpr_write_b32 a{AL+r}, 0')
    for r in range(4):
        A(f'v_accvgpr_write_b32 a{AV+12+r}, 0')
    for l in sel_code: A(l)
    A(f's_bfe_u32 s32, s{sCB}, 0x10002')
    A('s_lshl_b32 s37, s32, 31')
    A('s_lshl_b32 s31, s32, 13')
    A('s_lshl_b32 s32, s32, 18')
    A(f's_lshl_b32 s30, s{sTB}, 2')
    A(f's_and_b32 s29, s{sCB}, 3')
    A('s_add_u32 s30, s30, s29')
    A('s_lshl_b32 s35, s30, 12')
    A('s_add_u32 s35, s35, s32')
    A('s_lshl_b32 s36, s30, 7')
    A('s_add_u32 s36, s36, s31')
    A(f's_and_b32 s31, s{sW}, 1')
    A('s_lshl_b32 s31, s31, 6')
    A('s_add_u32 s36, s36, s31')
    A(f's_add_u32 s36, s36, {WS_G}')
    A(f's_cmp_lt_u32 s{sW}, 2')
    A('s_cselect_b32 s36, s36, 0x40000000')
    A(f's_xor_b32 s37, s37, {f32bits(-LOG2E):#x}')
    A(f's_lshr_b32 s32, s{sCB}, 3')
    A('s_lshl_b32 s32, s32, 18')
    A(f's_mov_b32 s39, {SLOT}')
    A(f's_cmp_eq_u32 s{sW}, 3')
    A(f's_cselect_b32 s45, {(1<<NSIG)|(1<<NPOLL)|(1<<NCHK):#x}, 0')
    A(f's_lshl_b32 s29, s{sTB}, 2')
    A(f's_and_b32 s30, s{sW}, 1')
    A('s_lshl_b32 s30, s30, 1')
    A('s_add_u32 s29, s29, s30')
    A('s_lshl_b32 s48, s29, 7')
    A('s_lshr_b32 s30, s32, 5')
    A('s_add_u32 s48, s48, s30')
    A(f's_add_u32 s48, s48, {WS_G}')
    A('s_lshl_b32 s50, s29, 17')
    A(f's_lshl_b32 s31, s{sCB}, 2')
    A(f's_and_b32 s29, s{sW}, 2')
    A('s_add_u32 s31, s31, s29')
    A('s_lshl_b32 s31, s31, 11')
    A('s_add_u32 s50, s50, s31')
    A(f's_add_u32 s50, s50, {WS_OF}')
    A('s_add_u32 s51, s50, 0x20000')
    A('s_mov_b32 s49, 0')
    A('s_mov_b32 s33, 32768')
    stamp(A, 1)
    L = Cnt(A, 'lgkmcnt', 15)
    A('s_mov_b32 s38, 0')
    A('s_waitcnt vmcnt(2)')
    A('s_barrier')
    A('s_bitcmp1_b32 s2, 0')
    A('s_cbranch_scc1 P1_Q')
    FB = OB
    def rd(st):
        fb = FB + 16*st
        for rho in range(2):
            L.issue(f'ds_read_b64_tr_b16 {v(fb+2*rho,2)}, v{KWA} offset:{8192+st*2048+rho*256}', ('k', st))
        L.issue(f'ds_read_b128 {v(fb+8,4)}, v{KXA+(st&1)} offset:{(st>>1)*4096}', ('k', st))
        for rho in range(2):
            L.issue(f'ds_read_b64_tr_b16 {v(fb+4+2*rho,2)}, v{KWA} offset:{16384+st*2048+rho*256}', ('k', st))
        L.issue(f'ds_read_b128 {v(fb+12,4)}, v{GA} offset:{st*64}', ('k', st))
    def mm(st):
        fb = FB + 16*st
        L.need(('k', st))
        A(f'v_mfma_f32_16x16x32_bf16 {v(KAC,4)}, {v(fb,4)}, {v(fb+8,4)}, {v(KAC,4)}')
        A(f'v_mfma_f32_16x16x32_bf16 {v(VAC,4)}, {v(fb+8,4)}, {v(fb+4,4)}, {v(VAC,4)}')
        A(f'v_mfma_f32_16x16x32_bf16 {v(GAC,4)}, {v(fb+12,4)}, {v(fb+8,4)}, {v(GAC,4)}')
    for st in range(2): rd(st)
    A('KV_LOOP:')
    q0 = list(L.q)
    for st in range(2):
        mm(st)
        rd(st + 2)
    A('s_and_b32 s29, s38, 3')
    A('s_cmp_eq_u32 s29, 3')
    A(f's_cselect_b32 s29, {(-3*SLOT) & 0xffffffff:#x}, s39')
    for r in (KXA, KXA+1, KWA):
        A(f'v_add_u32 v{r}, s29, v{r}')
    A('s_add_u32 s28, s28, 1')
    A('s_and_b32 s28, s28, 7')
    A('s_lshl_b32 s29, s28, 8')
    A(f'v_add_u32 v{GA}, s29, v{GB}')
    A('s_add_u32 s38, s38, 1')
    A('s_cmp_lt_u32 s38, 8')
    L.drain()
    A('s_barrier')
    A('s_cbranch_scc0 KV_TAIL')
    for st in range(2, 4):
        rd(st - 2)
        mm(st)
    assert L.q == q0
    A('s_branch KV_LOOP')
    A('KV_TAIL:')
    L.q = []
    for st in range(2, 4): mm(st)
    A(f's_mov_b32 s31, {f32bits(QK_SCALE):#x}')
    A('s_nop 6')
    for r in range(4):
        A(f'v_mul_f32 v{KAC+r}, s31, v{KAC+r}')
    A(f'v_mul_f32 v{GAC}, s37, v{GAC}')
    A(f'v_cvt_pk_bf16_f32 v{VAC}, v{VAC}, v{VAC+1}')
    A(f'v_exp_f32 v{GAC}, v{GAC}')
    A(f'v_cvt_pk_bf16_f32 v{VAC+1}, v{VAC+2}, v{VAC+3}')
    A(f'v_add_f32 v{GAC}, 1.0, v{GAC}')
    A(f'v_cvt_pk_bf16_f32 v{KAC}, v{KAC}, v{KAC+1}')
    A(f'v_rcp_f32 v{GAC}, v{GAC}')
    A(f'v_cvt_pk_bf16_f32 v{KAC+1}, v{KAC+2}, v{KAC+3}')
    A(f'buffer_store_dwordx2 {v(VAC,2)}, v{KST+1}, {W}, s35 offen offset:2048 sc1')
    A(f'buffer_store_dwordx2 {v(KAC,2)}, v{KST}, {W}, s35 offen sc1')
    A('s_mov_b64 exec, 0xffff')
    A(f'buffer_store_dword v{GAC}, v{KST+2}, {W}, s36 offen sc1')
    A('s_mov_b64 exec, -1')
    A('P1_Q:')
    stamp(A, 2)
    def rd_list(st):
        sb = OB + 16*st
        def ra(aa, rho): return (f'ds_read_b64_tr_b16 {v(sb+4*aa+2*rho,2)}, v{WA+aa} offset:{16384+st*4096+rho*1024}', (st, 'A', aa))
        def rb(b): return (f'ds_read_b128 {v(sb+8+4*b,4)}, v{XA+st} offset:{b*4096}', (st, 'B', b))
        return [ra(0,0), ra(0,1), rb(0), rb(1), ra(1,0), ra(1,1)]
    allr = [r for st in range(4) for r in rd_list(st)]
    def group(st, rds, other=(), nother=2):
        rds = list(rds); other = list(other)
        sb = OB + 16*st
        for aa in range(2):
            for b in range(2):
                acc = SB + 16*(aa*2+b)
                L.need((st, 'A', aa), (st, 'B', b))
                if 'hack16' in VAR:
                    q = acc + 8*(st&1)
                    A(f'v_mfma_f32_16x16x32_bf16 {v(q,4)}, {v(sb+4*aa,4)}, {v(sb+8+4*b,4)}, {v(q,4)}')
                    if rds: L.issue(*rds.pop(0))
                    A(f'v_mfma_f32_16x16x32_bf16 {v(q+4,4)}, {v(sb+8+4*b,4)}, {v(sb+4*aa,4)}, {v(q+4,4)}')
                    if rds: L.issue(*rds.pop(0))
                else:
                  A(f'v_mfma_f32_32x32x16_bf16 {v(acc,16)}, {v(sb+4*aa,4)}, {v(sb+8+4*b,4)}, {v(acc,16)}')
                  for _ in range(2):
                    if rds: L.issue(*rds.pop(0))
                for _ in range(nother):
                    if other: A(other.pop(0))
        assert not rds
        for o in other: A(o)
    L.q = []
    A('s_mov_b32 s38, 0')
    A('s_nop 1')
    for r in allr[:16]: L.issue(*r)
    adr = [f'v_add_u32 v{r}, s29, v{r}' for r in (XA, XA+1, XA+2, XA+3, WA, WA+1)]
    def stage(mode, extra=()):
        L.need(*[r[1] for r in allr[:8]])
        group(0, allr[16:24], ['s_and_b32 s29, s38, 3', 's_cmp_eq_u32 s29, 3', f's_cselect_b32 s29, {(-3*SLOT) & 0xffffffff:#x}, s39',
                               's_add_u32 s38, s38, 1', f's_cmp_eq_u32 s38, {NSIG}' if mode == 'loop' else ''])
        if mode == 'last':
            z = [f'v_mov_b32 v{OB+r}, 0' for r in range(64)]
            L.need(*[r[1] for r in allr[8:16]])
            group(1, [], list(extra) + z[:16], 5)
            L.drain()
            A('s_barrier')
            for r in kvr(0, 0): A(r)
            cv = [[f'v_cvt_pk_bf16_f32 v{QB+8*t+i}, v{SB+16*t+2*i}, v{SB+16*t+2*i+1}' for i in range(8)] for t in range(4)]
            fill = z[16:32] + ['', '', '', ''] + cv[0] + ['', ''] + cv[1] + ['', '']
            for t in range(4):
                aa, b = t >> 1, t & 1
                for st in (2, 3):
                    sb = OB + 16*st
                    A(f'v_mfma_f32_32x32x16_bf16 {v(SB+16*t,16)}, {v(sb+4*aa,4)}, {v(sb+8+4*b,4)}, {v(SB+16*t,16)}')
                    for _ in range(5):
                        if fill: A(fill.pop(0))
            assert not fill
            A('s_waitcnt lgkmcnt(0)')
            A(qk(0, 0, 0))
            for l in cv[2]: A(l)
            A(qk(0, 0, 1))
            for l in z[32:]: A(l)
            for l in cv[3]: A(l)
            for r in range(8):
                A(f'v_mov_b32 v{SB+48+8+r}, 0')
            return
        L.need(*[r[1] for r in allr[8:16]])
        group(1, [], list(extra) + adr, 3)
        if mode == 'loop':
            A('s_cbranch_scc1 Q_PRE')
            A('Q_PRE_RET:')
        L.drain()
        A('s_barrier')
        group(2, allr[0:8], ['', '', '', '', '', '', 's_bitcmp1_b32 s45, s38', 's_cbranch_scc1 Q_POST\nQ_POST_RET:'] if mode == 'loop' else [])
        group(3, allr[8:16])
    A('Q_LOOP:')
    q0 = list(L.q)
    stage('loop')
    assert L.q == q0, (L.q, q0)
    A('s_cmp_lt_u32 s38, 15')
    A('s_cbranch_scc1 Q_LOOP')
    stage('last', [f'v_add_u32 v0, {L_KVR+32768}, v2', 'v_and_b32 v10, 31, v1', 'v_lshlrev_b32 v10, 2, v10',
                   f'buffer_load_dword v11, v10, {W}, s48 offen offset:128 sc1', f'buffer_load_dword v10, v10, {W}, s48 offen sc1'])
    T = Asm()
    T('Q_PRE:')
    T('s_waitcnt vmcnt(0)')
    T('s_branch Q_PRE_RET')
    T('Q_POST:')
    T(f's_cmp_eq_u32 s38, {NPOLL}')
    T('s_cbranch_scc1 Q_POLL')
    T(f's_cmp_eq_u32 s38, {NCHK}')
    T('s_cbranch_scc1 Q_CHECK')
    T('s_and_b32 s30, s2, 1')
    T('s_lshl_b32 s30, s30, 7')
    T('v_mov_b32 v0, s30')
    T('v_mov_b32 v11, 1')
    T('s_mov_b64 exec, 1')
    T(f'global_atomic_add v0, v11, s[{DBG}:{DBG+1}] sc1')
    T('s_mov_b64 exec, -1')
    T('s_branch Q_POST_RET')
    T('Q_POLL:')
    T('v_and_b32 v0, 1, v1')
    T('v_lshlrev_b32 v0, 7, v0')
    T('v_mov_b32 v11, 128')
    T(f'global_load_dword v10, v0, s[{DBG}:{DBG+1}] sc1')
    T('s_branch Q_POST_RET')
    T('Q_CHECK:')
    T('s_waitcnt vmcnt(0)')
    T('v_cmp_lt_u32 vcc, v10, v11')
    T('s_nop 1')
    T('s_cbranch_vccz Q_POST_RET')
    poll(T, 'KV', f'global_load_dword v10, v0, s[{DBG}:{DBG+1}] sc1', 11, 8, 'lt')
    T('s_branch Q_POST_RET')
    tail.extend(T.lines)
    stamp(A, 3)

def qk(t, kb, half):
    c = '0' if half == 0 else v(SB+16*t, 16)
    return f'v_mfma_f32_32x32x16_bf16 {v(SB+16*t,16)}, {a(AK+8*kb+4*half,4)}, {v(QB+8*t+4*half,4)}, {c}'
def pv(t, vb, half):
    return f'v_smfmac_f32_32x32x32_bf16 {v(OB+16*t,16)}, {a(AV+8*vb+4*half,4)}, {v(SB+16*t+8*half,8)}, v{IDX}'
def sm(t, half):
    return f'v_smfmac_f32_16x16x64_bf16 {a(AL+4*t,4)}, {v(SEL,4)}, {v(SB+16*t+8*half,8)}, v{IDX}'
def ex(t, i):
    return f'v_exp_f32 v{SB+16*t+i}, v{SB+16*t+i}'

def attention(A):
    A('s_mov_b32 s36, 16')
    A(f'v_add_u32 v3, {L_KVR}, v2')
    stamp(A, 4)
    A('.p2align 6')
    A('AT_LOOP:')
    for i in range(4):
        for t in range(4):
            nt, nb = (t+1) % 4, ((i if t < 3 else i+1) % 2)
            pt, pb = (t-1) % 4, ((i if t > 0 else i-1) % 2)
            ld = kvr((i+1) % 4, (i+1) % 2)[t]
            if 'adj' in VAR:
                A(qk(nt, nb, 0))
                if t == 0: A('s_waitcnt lgkmcnt(0)')
                if t == 0 and i == 3: A('s_barrier')
                for e in (0, 1, 2): A(ex(t, e))
                A(qk(nt, nb, 1))
                if t == 2 and i == 3: A('s_sub_u32 s36, s36, 1')
                if t == 1 and i == 2: A('s_add_u32 s33, s33, 16384')
                if t == 2 and i == 2: A('s_and_b32 s33, s33, 0xffff')
                for e in (3, 4, 5): A(ex(t, e))
                A(sm(pt, 1))
                if t == 0 and i == 3: A('v_add_u32 v0, s33, v3')
                A(pv(pt, pb, 1))
                A(ld)
                for e in (6, 7, 8, 9, 10): A(ex(t, e))
                A(sm(t, 0))
                A(pv(t, i % 2, 0))
                if t == 2: A('s_waitcnt lgkmcnt(1)')
                if t == 3 and i == 3: A('s_cmp_lg_u32 s36, 0')
                for e in (11, 12, 13, 14, 15): A(ex(t, e))
                continue
            A(qk(nt, nb, 0))
            if t == 0: A('s_waitcnt lgkmcnt(0)')
            if t == 0 and i == 3: A('s_barrier')
            for e in (0, 1, 2): A(ex(t, e))
            A(qk(nt, nb, 1))
            if t == 2 and i == 3: A('s_sub_u32 s36, s36, 1')
            if t == 1 and i == 2: A('s_add_u32 s33, s33, 16384')
            if t == 2 and i == 2: A('s_and_b32 s33, s33, 0xffff')
            for e in (3, 4, 5): A(ex(t, e))
            A(pv(pt, pb, 1))
            if t == 0 and i == 3: A('v_add_u32 v0, s33, v3')
            for e in (6, 7, 8): A(ex(t, e))
            A(sm(pt, 1))
            if 'ldp1' not in VAR: A(ld)
            for e in (9, 10): A(ex(t, e))
            A(pv(t, i % 2, 0))
            if 'ldp1' in VAR: A(ld)
            for e in (11, 12, 13): A(ex(t, e))
            A(sm(t, 0))
            if t == 2: A('s_waitcnt lgkmcnt(1)')
            if t == 3 and i == 3: A('s_cmp_lg_u32 s36, 0')
            for e in (14, 15): A(ex(t, e))
            if opt('pad', 0): A(f's_nop {opt("pad", 0)-1}')
    A('s_cbranch_scc1 AT_LOOP')
    stamp(A, 5)
    A('s_nop 1')
    A(sm(3, 1))
    A(pv(3, 1, 1))
    A('s_waitcnt vmcnt(0) lgkmcnt(0)')
    A('s_nop 3')
    A('AT_FIN:')
    C = SB + 32
    for t in range(4):
        A(f'v_accvgpr_read_b32 v{C+8+t}, a{AL+4*t}')
    for t in range(4):
        A(f'v_rcp_f32 v{4+t}, v{C+8+t}')
    A(f'v_min3_f32 v{C+4}, v{C+8}, v{C+9}, v{C+10}')
    A('v_pk_mul_f32 v[4:5], v[4:5], v[10:11]')
    A('v_pk_mul_f32 v[6:7], v[6:7], v[10:11]')
    for t in range(4):
        aa, b = t >> 1, t & 1
        f = v(4 + (t & 2), 2)
        sel = 'op_sel:[0,1] op_sel_hi:[1,1]' if b else 'op_sel_hi:[1,0]'
        for h in range(2):
            for r in range(8*h, 8*h+8, 2):
                A(f'v_pk_mul_f32 {v(OB+16*t+r,2)}, {v(OB+16*t+r,2)}, {f} {sel}')
            for r in range(4*h, 4*h+4):
                A(f'v_cvt_pk_bf16_f32 v{SB+8*t+r}, v{OB+16*t+2*r}, v{OB+16*t+2*r+1}')
            A(f'buffer_store_dwordx4 {v(SB+8*t+4*h,4)}, v2, {W}, s{50+b} offen offset:{aa*2048+h*1024} sc1')
    A(f'v_pk_mul_f32 {v(C,2)}, {v(OB,2)}, 0')
    A(f'v_pk_mul_f32 {v(C+2,2)}, {v(OB+2,2)}, 0')
    for r in range(4, 64, 2):
        c = C + (r & 2)
        A(f'v_pk_fma_f32 {v(c,2)}, {v(OB+r,2)}, 0, {v(c,2)}')
    A(f'v_max3_f32 v{C+5}, v{C+8}, v{C+9}, v{C+10}')
    A(f'v_pk_fma_f32 {v(C,2)}, {v(C+8,2)}, 0, {v(C,2)}')
    A(f'v_pk_fma_f32 {v(C+2,2)}, {v(C+10,2)}, 0, {v(C+2,2)}')
    A(f'v_min_f32 v{C+4}, v{C+4}, v{C+11}')
    A(f'v_max_f32 v{C+5}, v{C+5}, v{C+11}')
    A(f'v_pk_add_f32 {v(C,2)}, {v(C,2)}, {v(C+2,2)}')
    A(f'v_cmp_gt_f32 vcc, {f32bits(2.0**-16):#x}, v{C+4}')
    A(f's_mov_b32 s29, {f32bits(2.0**64):#x}')
    A(f'v_cmp_lt_f32 s[46:47], s29, v{C+5}')
    A(f'v_cmp_u_f32 s[52:53], v{C}, v{C+1}')
    A('s_nop 1')
    A('s_or_b64 s[46:47], s[46:47], vcc')
    A('s_or_b64 s[46:47], s[46:47], s[52:53]')
    A('s_cselect_b32 s29, 1, 0')
    if 'forceslow' in VAR:
        A('s_mov_b32 s29, 1')
    A('s_andn2_b32 s29, s29, s49')
    A('s_cbranch_scc1 AT_SLOW')
    S = Asm()
    S('AT_SLOW:')
    S('s_mov_b32 s49, 1')
    S('s_waitcnt vmcnt(0)')
    for t in range(4):
        S(f'v_mov_b32 v{4+t}, 0xff800000')
    S('s_mov_b32 s34, s32')
    S('s_mov_b32 s36, 64')
    S('SL_MAX:')
    for l in kv_loads(0)[:2]: S(l)
    S('s_waitcnt vmcnt(0)')
    for t in range(4):
        S(qk(t, 0, 0)); S(qk(t, 0, 1))
    S('s_nop 15')
    for t in range(4):
        for r in range(0, 16, 2):
            S(f'v_max3_f32 v{4+t}, v{4+t}, v{SB+16*t+r}, v{SB+16*t+r+1}')
    S('s_add_u32 s34, s34, 4096')
    S('s_sub_u32 s36, s36, 1')
    S('s_cmp_lg_u32 s36, 0')
    S('s_cbranch_scc1 SL_MAX')
    for t in range(4):
        S(f'v_mov_b32 v8, v{4+t}')
        S('s_nop 1')
        S(f'v_permlane32_swap_b32 v8, v{4+t}')
        S('s_nop 1')
        S(f'v_max_f32 v{4+t}, v{4+t}, v8')
    for r in range(16):
        S(f'v_accvgpr_write_b32 a{AL+r}, 0')
    for r in range(64):
        S(f'v_mov_b32 v{OB+r}, 0')
    S('s_mov_b32 s34, s32')
    S('s_mov_b32 s36, 64')
    S('SL_ACC:')
    for l in kv_loads(0): S(l)
    S('s_waitcnt vmcnt(0)')
    for t in range(4):
        S(qk(t, 0, 0)); S(qk(t, 0, 1))
    S('s_nop 15')
    for t in range(4):
        for r in range(16):
            S(f'v_sub_f32 v{SB+16*t+r}, v{SB+16*t+r}, v{4+t}')
        for r in range(16):
            S(ex(t, r))
    S('s_nop 3')
    for t in range(4):
        for h in range(2):
            S(pv(t, 0, h)); S(sm(t, h))
    S('s_add_u32 s34, s34, 4096')
    S('s_sub_u32 s36, s36, 1')
    S('s_cmp_lg_u32 s36, 0')
    S('s_cbranch_scc1 SL_ACC')
    S('s_nop 15')
    S('s_branch AT_FIN')
    tail.extend(S.lines)

def p3_compute(A):
    WB, ACC = 16, 48
    def oreg(slot, st):
        i = 32*slot + 4*st
        return v(80+i, 4) if i < 96 else a(i-96, 4)
    A(f's_lshl_b32 s35, s{sTB}, 2')
    A(f's_add_u32 s35, s35, s{sW}')
    A('s_lshl_b32 s36, s35, 17')
    A(f's_add_u32 s36, s36, {WS_OF}')
    A('s_and_b32 s32, s2, 6')
    A(f's_and_b32 s37, s{sCB}, 8')
    A('s_add_u32 s37, s37, s32')
    A('s_lshl_b32 s37, s37, 13')
    A('v_add_u32 v3, 4096, v2')
    A('v_bfe_u32 v8, v1, 2, 2')
    A('v_lshrrev_b32 v9, 5, v1')
    A('v_lshl_add_u32 v9, v9, 2, v8')
    A('v_lshlrev_b32 v9, 7, v9')
    A('v_bfe_u32 v10, v1, 4, 1')
    A('v_lshl_add_u32 v9, v10, 5, v9')
    A('v_and_b32 v10, 3, v1')
    A('v_lshl_add_u32 v9, v10, 3, v9')
    A('v_lshrrev_b32 v8, 1, v8')
    A('v_lshl_add_u32 v5, v8, 6, v9')
    A('v_xor_b32 v8, 1, v8')
    A('v_lshl_add_u32 v6, v8, 6, v9')
    for r in range(32):
        A(f'v_mov_b32 v{ACC+r}, 0')
    A('s_mov_b32 s38, 0')
    srd(A, SOUT, 56, 57, 4 << 20)
    V = Cnt(A, 'vmcnt', 63)
    L = Cnt(A, 'lgkmcnt', 15)
    LK = opt('lk', 2)
    def oload(slot, st):
        return (f'buffer_load_dwordx4 {oreg(slot,st)}, v{2+st//4}, {W}, s30 offen offset:{(st%4)*1024} sc1', ('O', slot, st))
    adv = ['s_add_u32 s37, s37, 8192', 's_and_b32 s37, s37, 0x1ffff', 's_add_u32 s30, s36, s37']
    A(adv[2])
    def wr(slot, st):
        out = []
        for ct in range(2):
            for rho in range(2):
                out.append((f'ds_read_b64_tr_b16 {v(WB+8*(st%4)+4*ct+2*rho,2)}, v{5+ct} offset:{slot*16384+st*2048+rho*1024}', ('W', st%4, ct)))
        return out
    LA = 2
    A('s_waitcnt vmcnt(0)')
    stamp(A, 6)
    A('s_barrier')
    for st in range(LA):
        for r in wr(0, st): L.issue(*r)
    A('s_barrier')
    stamp(A, 7)
    for sl in range(LK):
        for st in range(8): V.issue(*oload(sl, st))
        for x in adv: A(x)
    A('P3_LOOP:')
    q0, v0 = list(L.q), list(V.q)
    for slot in range(4):
        for st in range(8):
            nst = st + LA
            if nst == 8:
                L.drain()
                A('s_barrier')
                if slot == 3:
                    A('v_xor_b32 v5, 0x10000, v5')
                    A('v_xor_b32 v6, 0x10000, v6')
            rds = wr(slot, nst) if nst < 8 else wr((slot+1) % 4, nst-8)
            for ct in range(2):
                L.need(('W', st%4, ct))
                V.need(('O', slot, st))
                if 'hack16' in VAR:
                    q = ACC+16*ct+8*(st&1)
                    A(f'v_mfma_f32_16x16x32_bf16 {v(q,4)}, {v(WB+8*(st%4)+4*ct,4)}, {oreg(slot,st)}, {v(q,4)}')
                    L.issue(*rds[2*ct])
                    A(f'v_mfma_f32_16x16x32_bf16 {v(q+4,4)}, {oreg(slot,st)}, {v(WB+8*(st%4)+4*ct,4)}, {v(q+4,4)}')
                    L.issue(*rds[2*ct+1])
                else:
                    A(f'v_mfma_f32_32x32x16_bf16 {v(ACC+16*ct,16)}, {v(WB+8*(st%4)+4*ct,4)}, {oreg(slot,st)}, {v(ACC+16*ct,16)}')
                    L.issue(*rds[2*ct]); L.issue(*rds[2*ct+1])
                if ct == 0:
                    if slot == 4-LK and st == 0:
                        A('s_cmp_eq_u32 s38, 3')
                        A(f's_cselect_b32 s{SWS+2}, 0, s{SWS+2}')
                    V.issue(*oload((slot+LK) % 4, st))
                elif st == 7:
                    for x in adv: A(x)
    A('s_add_u32 s38, s38, 1')
    A('s_cmp_lt_u32 s38, 4')
    assert L.q == q0, (L.q, q0)
    assert V.q == v0, (V.q, v0)
    A('s_cbranch_scc1 P3_LOOP')
    stamp(A, 8)
    A('v_and_b32 v8, 31, v1')
    A('v_lshlrev_b32 v8, 11, v8')
    A('v_lshrrev_b32 v9, 5, v1')
    A('v_lshl_add_u32 v8, v9, 4, v8')
    A('s_lshl_b32 s29, s35, 16')
    A(f's_lshl_b32 s30, s{sCB}, 7')
    A('s_add_u32 s29, s29, s30')
    A('s_nop 6')
    D = 80
    A('s_waitcnt vmcnt(0)')
    for ct in range(2):
        for g in range(4):
            b = ACC+16*ct+4*g
            d = D+8*ct+2*g
            A(f'v_cvt_pk_bf16_f32 v{d}, v{b}, v{b+1}')
            A(f'v_cvt_pk_bf16_f32 v{d+1}, v{b+2}, v{b+3}')
    A('s_nop 1')
    for j in range(4):
        d = D+4*j
        A(f'v_permlane32_swap_b32 v{d}, v{d+2}')
        A(f'v_permlane32_swap_b32 v{d+1}, v{d+3}')
        A(f'buffer_store_dwordx4 {v(d,4)}, v8, s[{SOUT}:{SOUT+3}], s29 offen offset:{j*32}' + (' sc1' if 'outsc1' in VAR else '') + (' nt' if 'outnt' in VAR else ''))

def build():
    ref = open(f'cdna_kernels/{NAME}.s.ref').read().split('\n')
    head = [l for l in ref if l.startswith(';') and '@launch' not in l and 'Override' not in l and 'grid=ceil' not in l]
    out = '\n'.join(head) + '\n'
    if 'aslist' in VAR:
        out += f'; @launch kernel={KNAME} grid=(256,1,1) block=(512,1,1) lds={LDS_BYTES}\n'
    else:
        out += f'; @launch grid=(256,1,1) block=(512,1,1) lds={LDS_BYTES}\n'
    out += '.amdgcn_target "amdgcn-amd-amdhsa--gfx950"\n.text\n'
    A = Asm()
    kernel(A)
    out += A.text()
    out += '.section .rodata,"a"\n' + kd(KNAME, 256, NARCH)
    return out

if __name__ == '__main__':
    args = [x for x in sys.argv[1:] if not x.startswith('--')]
    if '--instr' in sys.argv: INSTR = True
    if '--lst' in sys.argv: LST = True
    for x in sys.argv:
        if x.startswith('--var='): VAR = x[6:]
    dst = args[0] if args else f'cdna_kernels/{NAME}.s'
    open(dst, 'w').write(build())
```

```python
import math, sys
from asmlib import *

NAME = 'gated_mix__grouped_kv_mqa__grouped_kv_mqa__prompt'
KNAME = NAME + '_kernel'
WS_KV = 0
WS_G = 512 << 10
WS_FLAG = 576 << 10
WS_OF = 1 << 20
WS_BYTES = 9 << 20
QK_SCALE = math.log2(math.e) / math.sqrt(32.0)
LOG2E = math.log2(math.e)
INSTR = False
LST = False
VAR = ''
WS_DBG = 32 << 20
WS_DBG2 = 40 << 20

SLOT = 32768
L_GATE = 4 * SLOT
LDS_BYTES = 163840
L_KVR = 98304

SX, SW, SKV, SWS, SG = 4, 8, 12, 16, 20
SWO, SOUT = 8, 12
sW, sTB, sCB, sST = 24, 25, 26, 27
W = f's[{SWS}:{SWS+3}]'
DBG = 58
NARCH = 176
SB, OB = 16, 80
AL, AK, AV = 0, 16, 48
QB = 144
IDX, SEL = 9, 12
NSIG, NPOLL, NCHK = 2, 11, 13

def opt(name, default):
    for tok in VAR.split('_'):
        if tok.startswith(name) and tok[len(name):].isdigit():
            return int(tok[len(name):])
    return default

def srd(A, d, lo, hi, nbytes):
    A(f's_mov_b32 s{d}, s{lo}')
    A(f's_and_b32 s{d+1}, s{hi}, 0xffff')
    A(f's_mov_b32 s{d+2}, {nbytes:#x}')
    A(f's_mov_b32 s{d+3}, 0x20000')

def stamp(A, i):
    if INSTR:
        A(f's_mem{"time" if "allcyc" in VAR else "realtime"} s[{64+2*i}:{65+2*i}]')
NST = 10
def stamp_end(A):
    if not INSTR: return
    A('s_waitcnt vmcnt(0) lgkmcnt(0)')
    stamp(A, NST-1)
    A('s_getreg_b32 s62, hwreg(HW_REG_XCC_ID)')
    A('s_waitcnt lgkmcnt(0)')
    A('s_mov_b64 exec, 1')
    A('s_lshl_b32 s63, s2, 2')
    A(f's_add_u32 s63, s63, s{sW}')
    A('s_lshl_b32 s63, s63, 6')
    A(f's_add_u32 s63, s63, {WS_DBG}')
    A('v_mov_b32 v0, s63')
    for i in range(NST):
        A(f'v_mov_b32 v1, s{64+2*i}')
        A(f'global_store_dword v0, v1, s[60:61] offset:{4*i}')
    A('v_mov_b32 v1, s62')
    A(f'global_store_dword v0, v1, s[60:61] offset:{4*NST}')
    A('s_waitcnt vmcnt(0)')
def lstamp(A, vreg, idx):
    if not LST: return
    A('s_memtime s[64:65]' if ('cyc' in VAR and vreg == 32) else 's_memrealtime s[64:65]')
    A('s_waitcnt lgkmcnt(0)')
    if isinstance(idx, str):
        A(f's_mov_b32 m0, {idx}')
        A(f'v_writelane_b32 v{vreg}, s64, m0')
    else:
        A(f'v_writelane_b32 v{vreg}, s64, {idx}')
def ldump(A):
    if not LST: return
    A('s_lshl_b32 s80, s2, 2')
    A(f's_add_u32 s80, s80, s{sW}')
    A('s_lshl_b32 s80, s80, 10')
    A(f's_add_u32 s80, s80, {WS_DBG2}')
    A('v_lshlrev_b32 v0, 2, v1')
    A('v_add_u32 v0, s80, v0')
    A('global_store_dword v0, v30, s[60:61]')
    A('global_store_dword v0, v31, s[60:61] offset:256')
    A('global_store_dword v0, v32, s[60:61] offset:512')
    A('s_waitcnt vmcnt(0)')

def poll(A, tag, load, vwant, sleep, cmp='ne'):
    A('s_mov_b32 s30, 0x40000')
    A(f'POLL_{tag}:')
    A(load)
    A('s_waitcnt vmcnt(0)')
    A(f'v_cmp_{cmp}_u32 vcc, v10, v{vwant}')
    A('s_sub_u32 s30, s30, 1')
    A(f's_cbranch_scc1 POLLD_{tag}')
    A(f's_cbranch_vccz POLLD_{tag}')
    A(f's_sleep {sleep}')
    A(f's_branch POLL_{tag}')
    A(f'POLLD_{tag}:')

tail = []

def kernel(A):
    A(f'.globl {KNAME}\n.p2align 8\n.type {KNAME},@function\n{KNAME}:')
    A('s_cmp_ge_u32 s2, 256')
    A('s_cbranch_scc1 END2')
    stamp(A, 0)
    if 'flip' in VAR: A('s_xor_b32 s2, s2, 1')
    A('s_load_dwordx4 s[40:43], s[0:1], 0')
    A('s_load_dwordx4 s[44:47], s[0:1], 16')
    A('s_load_dwordx4 s[48:51], s[0:1], 48')
    A('s_load_dwordx2 s[52:53], s[0:1], 64')
    A('s_load_dwordx2 s[54:55], s[0:1], 80')
    A('s_load_dwordx4 s[56:59], s[0:1], 88')
    A('s_load_dwordx2 s[60:61], s[0:1], 104')
    A('v_lshrrev_b32 v8, 6, v0')
    A('v_and_b32 v1, 63, v0')
    A(f'v_readfirstlane_b32 s{sW}, v8')
    A('s_and_b32 s29, s2, 1')
    A('s_lshl_b32 s29, s29, 3')
    A('s_bfe_u32 s30, s2, 0x30003')
    A(f's_add_u32 s{sCB}, s29, s30')
    A('s_bfe_u32 s28, s2, 0x20001')
    A('s_lshl_b32 s31, s28, 2')
    A('s_lshr_b32 s32, s2, 6')
    A(f's_add_u32 s{sTB}, s31, s32')
    A('s_lshl_b32 s29, s32, 1')
    A('s_add_u32 s28, s28, s29')
    A('s_and_b32 s29, s30, 4')
    A('s_add_u32 s28, s28, s29')
    A('s_and_b32 s28, s28, 7')
    A(f's_and_b32 s{sST}, s2, 7')
    A(f's_lshl_b32 s{sST}, s{sST}, 1')
    A('v_lshlrev_b32 v2, 4, v1')
    A(f's_cmp_lt_u32 s{sW}, 4')
    A('s_cbranch_scc1 COMPUTE')
    helper(A)
    A('COMPUTE:')
    p1_compute(A)
    attention(A)
    p3_compute(A)
    A('END:')
    stamp_end(A)
    A('END2:')
    A('s_endpgm')
    A.lines += tail

def helper(A):
    A(f's_sub_u32 s{sW}, s{sW}, 4')
    A('v_lshrrev_b32 v8, 3, v1')
    A('v_lshlrev_b32 v8, 11, v8')
    A('v_lshrrev_b32 v9, 4, v1')
    A('v_and_b32 v10, 7, v1')
    A('v_xor_b32 v10, v10, v9')
    A('v_lshl_add_u32 v16, v10, 4, v8')
    A('v_xor_b32 v10, 4, v10')
    A('v_lshl_add_u32 v17, v10, 4, v8')
    A('v_add_u32 v17, 15360, v17')
    A('v_add_u32 v18, 30720, v16')
    A('v_add_u32 v19, 30720, v17')
    A(f's_lshl_b32 s34, s{sTB}, 18')
    A(f's_lshl_b32 s36, s{sW}, 12')
    A('s_mov_b32 s38, 0')
    A('s_bitcmp1_b32 s2, 0')
    A('s_cbranch_scc1 H_ODD')
    A(f's_and_b32 s29, s{sCB}, 3')
    A('s_lshl_b32 s29, s29, 16')
    A('s_add_u32 s33, s34, s29')
    A(f's_and_b32 s29, s{sW}, 1')
    A('s_lshl_b32 s29, s29, 15')
    A('s_add_u32 s33, s33, s29')
    A(f's_lshr_b32 s29, s{sW}, 1')
    A('s_lshl_b32 s29, s29, 7')
    A('s_add_u32 s33, s33, s29')
    A(f's_lshl_b32 s35, s{sW}, 11')
    A('s_mov_b32 s37, s35')
    A('s_waitcnt lgkmcnt(0)')
    srd(A, SX, 40, 41, 4 << 20)
    A(f's_bitcmp1_b32 s{sCB}, 2')
    A('s_cselect_b32 s44, s50, s44')
    A('s_cselect_b32 s45, s51, s45')
    A('s_cselect_b32 s46, s52, s46')
    A('s_cselect_b32 s47, s53, s47')
    srd(A, SKV, 44, 45, 65536)
    srd(A, SG, 46, 47, 65536)
    lstamp(A, 30, 20)
    A('H_KV:')
    A('s_cmp_lt_u32 s38, 3')
    A('s_cbranch_scc1 H_KV2')
    A('s_waitcnt vmcnt(12)')
    A('s_barrier')
    A('H_KV2:')
    if LST: A('s_add_u32 s49, s38, 48')
    lstamp(A, 31, 's49')
    A('s_lshl_b32 s29, s28, 8')
    A('s_add_u32 s29, s29, s33')
    A('s_mov_b32 m0, s37')
    A('s_lshl_b32 s30, s28, 13')
    for i in range(2):
        A(f'buffer_load_dwordx4 v{16+i}, s[{SX}:{SX+3}], s29 offen offset:{i*1024} lds')
    A('s_add_u32 m0, s37, 8192')
    A('s_add_u32 s30, s30, s35')
    for i in range(2):
        A(f'buffer_load_dwordx4 v2, s[{SKV}:{SKV+3}], s30 offen offset:{i*1024} lds')
    A('s_add_u32 m0, s37, 16384')
    A('s_add_u32 s28, s28, 1')
    for i in range(2):
        A(f'buffer_load_dwordx4 v2, s[{SG}:{SG+3}], s30 offen offset:{i*1024} lds')
    lstamp(A, 30, 's49')
    A('s_and_b32 s28, s28, 7')
    A(f's_add_u32 s37, s37, {SLOT}')
    A(f's_and_b32 s37, s37, {4*SLOT-1:#x}')
    A('s_add_u32 s38, s38, 1')
    A('s_cmp_lt_u32 s38, 8')
    A('s_cbranch_scc1 H_KV')
    A('s_mov_b32 s38, 0')
    A('s_mov_b32 s62, 1')
    A('s_waitcnt vmcnt(12)')
    A('s_barrier')
    A('s_branch H_Q')
    A('H_ODD:')
    A('s_mov_b32 s62, 99')
    A('s_waitcnt lgkmcnt(0)')
    srd(A, SX, 40, 41, 4 << 20)
    A('s_mov_b32 s42, s48')
    A('s_mov_b32 s43, s49')
    A('H_Q:')
    A('s_mov_b32 s37, s36')
    A('v_bfe_u32 v10, v1, 2, 2')
    A('v_xor_b32 v10, v10, v9')
    A('v_lshlrev_b32 v10, 6, v10')
    A('v_lshl_add_u32 v10, v9, 11, v10')
    A('v_and_b32 v8, 3, v1')
    A('v_lshl_add_u32 v20, v8, 4, v10')
    A('v_add_u32 v21, 7168, v20')
    A('v_add_u32 v22, 14336, v20')
    A('v_add_u32 v23, 21504, v20')
    srd(A, SW, 42, 43, 2 << 20)
    A(f's_lshl_b32 s29, s{sW}, 16')
    A('s_add_u32 s34, s34, s29')
    A(f's_and_b32 s35, s{sCB}, 7')
    A('s_lshl_b32 s35, s35, 8')
    A(f's_lshl_b32 s29, s{sW}, 15')
    A('s_add_u32 s35, s35, s29')
    A('H_LOOP:')
    A('s_cmp_ge_u32 s38, 5')
    A('s_cbranch_scc1 H_W16')
    A('s_cmp_lg_u32 s38, s62')
    A('s_cbranch_scc1 H_NX')
    A('s_waitcnt vmcnt(14)')
    A('s_barrier')
    A('s_waitcnt vmcnt(8)')
    A('s_barrier')
    A('H_NX:')
    A('s_bitcmp1_b32 19, s38')
    A('s_cbranch_scc1 H_ISSUE')
    A('s_waitcnt vmcnt(8)')
    A('H_W16:')
    A('s_waitcnt vmcnt(16)')
    lstamp(A, 30, 's38')
    A('s_barrier')
    A('H_ISSUE:')
    lstamp(A, 31, 's38')
    A(f's_lshl_b32 s29, s{sST}, 7')
    A('s_add_u32 s29, s29, s34')
    A('s_mov_b32 m0, s37')
    A(f's_lshl_b32 s30, s{sST}, 17')
    for i in range(4):
        A(f'buffer_load_dwordx4 v{16+i}, s[{SX}:{SX+3}], s29 offen offset:{i*1024} lds')
    A('s_add_u32 m0, s37, 16384')
    A('s_add_u32 s30, s30, s35')
    for i in range(4):
        A(f'buffer_load_dwordx4 v{20+i}, s[{SW}:{SW+3}], s30 offen offset:{i*1024} lds')
    A(f's_add_u32 s{sST}, s{sST}, 1')
    A(f's_and_b32 s{sST}, s{sST}, 15')
    A(f's_add_u32 s37, s37, {SLOT}')
    A(f's_and_b32 s37, s37, {4*SLOT-1:#x}')
    lstamp(A, 32, 's38')
    A('s_add_u32 s38, s38, 1')
    A('s_cmp_lt_u32 s38, 16')
    A('s_cbranch_scc1 H_LOOP')
    A('s_load_dwordx2 s[40:41], s[0:1], 32')
    A('s_load_dwordx2 s[42:43], s[0:1], 72')
    srd(A, SWS, 60, 61, WS_BYTES)
    A(f's_lshr_b32 s32, s{sCB}, 3')
    A('s_lshl_b32 s32, s32, 18')
    A('s_add_u32 s32, s32, s36')
    A('s_lshr_b32 s33, s2, 4')
    A('s_lshl_b32 s33, s33, 14')
    def kv_chunk(c):
        A(f's_add_u32 m0, s36, {L_KVR + ((c+2)&3)*16384}')
        A('s_add_u32 s31, s32, s33')
        for i in range(4):
            A(f'buffer_load_dwordx4 v2, {W}, s31 offen offset:{i*1024} sc1 lds')
        A('s_add_u32 s33, s33, 16384')
        A('s_and_b32 s33, s33, 0x3ffff')
    for n, i in ((16, 16), (8, 17), (8, 18)):
        A(f's_waitcnt vmcnt({n})')
        lstamp(A, 30, i)
        A('s_barrier')
        lstamp(A, 31, i)
        if i == 17:
            kv_chunk(0)
            kv_chunk(1)
    A('v_lshrrev_b32 v8, 3, v1')
    A('v_lshlrev_b32 v8, 11, v8')
    A('v_lshrrev_b32 v10, 2, v1')
    A('v_lshrrev_b32 v12, 4, v1')
    A('v_xor_b32 v10, v10, v12')
    A('v_and_b32 v10, 1, v10')
    A('v_lshl_add_u32 v8, v10, 6, v8')
    A('v_and_b32 v10, 3, v1')
    A('v_lshl_add_u32 v16, v10, 4, v8')
    A('v_add_u32 v17, 15360, v16')
    A('v_add_u32 v18, 30720, v16')
    A('v_add_u32 v19, 46080, v16')
    A(f's_lshl_b32 s34, s{sCB}, 7')
    A(f's_lshl_b32 s29, s{sW}, 16')
    A('s_add_u32 s34, s34, s29')
    A('s_and_b32 s29, s2, 6')
    A(f's_and_b32 s{sST}, s{sCB}, 8')
    A(f's_add_u32 s{sST}, s{sST}, s29')
    A('s_waitcnt lgkmcnt(0)')
    A('s_and_b32 s41, s41, 0xffff')
    A('s_and_b32 s43, s43, 0xffff')
    A(f's_mov_b32 s{SWO+2}, 0x200000')
    A(f's_mov_b32 s{SWO+3}, 0x20000')
    A('v_and_b32 v9, 15, v1')
    A('v_lshlrev_b32 v9, 7, v9')
    A('v_lshlrev_b32 v12, 2, v1')
    A('v_mov_b32 v11, 1')
    A('v_add_u32 v13, s36, v2')
    A('v_add_u32 v14, 0x10000, v13')
    A(f's_lshl_b32 s44, s{sTB}, 11')
    A(f's_add_u32 s44, s44, {WS_FLAG}')
    A(f's_lshl_b32 s45, s{sCB}, 7')
    A('s_add_u32 s45, s45, s44')
    A('s_waitcnt vmcnt(4)')
    lstamp(A, 30, 19)
    A('s_barrier')
    lstamp(A, 31, 19)
    def hold(j, i):
        return v(48+16*j+4*i, 4) if j < 8 else a(16*(j-8)+4*i, 4)
    def wo_stage(n):
        A(f's_cmp_ge_u32 s{sST}, 8')
        A(f's_cselect_b32 s{SWO}, s42, s40')
        A(f's_cselect_b32 s{SWO+1}, s43, s41')
        A(f's_and_b32 s29, s{sST}, 7')
        A('s_lshl_b32 s29, s29, 18')
        if n < 6: A(f's_add_u32 m0, s36, {n*16384}')
        A('s_add_u32 s29, s29, s34')
        for i in range(4):
            if n < 6:
                A(f'buffer_load_dwordx4 v{16+i}, s[{SWO}:{SWO+3}], s29 offen offset:{i*1024} lds')
            else:
                A(f'buffer_load_dwordx4 {hold(n-6,i)}, v{16+i}, s[{SWO}:{SWO+3}], s29 offen offset:{i*1024}')
        A(f's_add_u32 s{sST}, s{sST}, 1')
        A(f's_and_b32 s{sST}, s{sST}, 15')
    V = Cnt(A, 'vmcnt', 63)
    def track(tag, n=4):
        V.q += [tag]*n
    track(('c', 1))
    kv_chunk(2); track(('c', 2))
    kv_chunk(3); track(('c', 3))
    nwo = 0
    for i in range(15):
        V.need(('c', i+1))
        A('s_barrier')
        if i + 4 < 16:
            kv_chunk(i+4); track(('c', i+4))
        for _ in range(2 if i < 4 else 1):
            if nwo < 16:
                wo_stage(nwo); track(('w', nwo)); nwo += 1
    assert nwo == 16
    A('s_waitcnt vmcnt(0)')
    A('s_barrier')
    A(f's_cmp_lg_u32 s{sW}, 0')
    A('s_cbranch_scc1 H_NOFLAG')
    A('s_mov_b32 exec_hi, 0')
    A(f'buffer_store_dword v11, v12, {W}, s45 offen sc1')
    A('s_mov_b32 exec_hi, -1')
    A('H_NOFLAG:')
    for j in range(2):
        for i in range(4):
            A(f'ds_write_b128 v14, {hold(j,i)} offset:{(2+j)*16384+i*1024}')
    A('s_cbranch_scc1 H_NOPOLL2')
    poll(A, 'O', f'buffer_load_dword v10, v9, {W}, s44 offen sc1', 11, opt('slp', 1))
    A('H_NOPOLL2:')
    A('s_barrier')
    lstamp(A, 31, 32)
    for j in range(8):
        A('s_waitcnt lgkmcnt(0)')
        A('s_barrier')
        lstamp(A, 31, 33+j)
        for i in range(4):
            A(f'ds_write_b128 v{13 + j//4}, {hold(j+2,i)} offset:{(j%4)*16384+i*1024}')
    A('s_waitcnt lgkmcnt(0)')
    if LST:
        for j in range(7):
            A('s_barrier')
            lstamp(A, 31, 41+j)
    ldump(A)
    A('s_endpgm')

def kv_adv():
    return ['s_add_u32 s33, s33, 4096', 's_and_b32 s33, s33, 0x3ffff', 's_add_u32 s34, s32, s33']
def kv_loads(b):
    return [f'buffer_load_dwordx4 {a(AK+8*b,4)}, v2, {W}, s34 offen sc1',
            f'buffer_load_dwordx4 {a(AK+8*b+4,4)}, v2, {W}, s34 offen offset:1024 sc1',
            f'buffer_load_dwordx4 {a(AV+8*b,4)}, v2, {W}, s34 offen offset:2048 sc1',
            f'buffer_load_dwordx4 {a(AV+8*b+4,4)}, v2, {W}, s34 offen offset:3072 sc1']
def kvr(st, b):
    return [f'ds_read_b128 {a(AK+8*b,4)}, v0 offset:{st*4096}',
            f'ds_read_b128 {a(AK+8*b+4,4)}, v0 offset:{st*4096+1024}',
            f'ds_read_b128 {a(AV+8*b,4)}, v0 offset:{st*4096+2048}',
            f'ds_read_b128 {a(AV+8*b+4,4)}, v0 offset:{st*4096+3072}']
sel_code = [f'v_mov_b32 v{SEL+3}, 0x3f803f80', f'v_and_b32 v{SEL+2}, 7, v1', f'v_cmp_eq_u32 vcc, 0, v{SEL+2}',
            f'v_cmp_eq_u32 s[46:47], 4, v{SEL+2}', f'v_mov_b32 v{IDX}, 0xdddddddd', 's_nop 0',
            f'v_cndmask_b32 v{SEL}, 0, v{SEL+3}, vcc', f'v_cndmask_b32 v{SEL+1}, 0, v{SEL+3}, vcc',
            f'v_cndmask_b32 v{SEL+2}, 0, v{SEL+3}, s[46:47]', f'v_cndmask_b32 v{SEL+3}, 0, v{SEL+3}, s[46:47]']

def p1_compute(A):
    XA, WA = 3, 7
    KXA, KWA, GA, GB, KST, KAC, VAC, GAC = 144, 146, 147, 148, 149, 152, 156, 160
    A('v_lshlrev_b32 v3, 7, v1')
    A('s_and_b32 s30, s2, 0xfe')
    A(f's_add_u32 s30, s30, s{sW}')
    A('s_lshl_b32 s30, s30, 13')
    A(f's_lshr_b32 s29, s{sW}, 1')
    A('s_andn2_b32 s29, s2, s29')
    A('s_bitcmp1_b32 s29, 0')
    A('s_cselect_b32 s30, s30, 0x40000000')
    if 'nopf' in VAR: A('s_mov_b32 s30, 0x40000000')
    A(f's_lshl_b32 s29, s{sW}, 10')
    A('s_and_b32 s29, s29, 1024')
    A(f's_add_u32 m0, s29, {L_GATE}')
    A('s_waitcnt lgkmcnt(0)')
    srd(A, SG, 54, 55, 2048)
    A(f'buffer_load_dwordx4 v2, s[{SG}:{SG+3}], s29 offen lds')
    if 'cpf' in VAR:
        A('s_getpc_b64 s[62:63]')
        A('CPF_PC:')
        A(f's_lshl_b32 s29, s{sW}, 13')
        A('v_add_u32 v4, s29, v3')
        A('v_min_u32 v4, END2-CPF_PC+3584, v4')
        A('global_load_dword v175, v4, s[62:63] offset:-3584')
    srd(A, SW, 42, 43, 2 << 20)
    srd(A, SWS, 60, 61, WS_BYTES)
    A(f's_lshl_b32 s29, s{sTB}, 4')
    A(f's_add_u32 s29, s29, s{sCB}')
    A('s_lshl_b32 s29, s29, 7')
    A(f's_add_u32 s29, s29, {WS_FLAG}')
    A(f's_cmp_eq_u32 s{sW}, 3')
    A('s_cselect_b32 s29, s29, 0x40000000')
    A('v_lshlrev_b32 v8, 2, v1')
    A('v_mov_b32 v9, 0')
    A('s_mov_b32 exec_hi, 0')
    A(f'buffer_store_dword v9, v8, {W}, s29 offen sc1')
    A('s_mov_b32 exec_hi, -1')
    A(f'buffer_load_dword v0, v3, s[{SW}:{SW+3}], s30 offen')
    A('v_and_b32 v8, 15, v1')
    A(f's_and_b32 s29, s{sW}, 1')
    A('s_lshl_b32 s29, s29, 4')
    A('v_add_u32 v8, s29, v8')
    A('v_lshrrev_b32 v9, 4, v1')
    A('v_bfe_u32 v10, v8, 1, 3')
    A('v_xor_b32 v10, v10, v9')
    A('v_lshlrev_b32 v8, 7, v8')
    A(f'v_lshl_add_u32 v{KXA}, v10, 4, v8')
    A('v_xor_b32 v10, 4, v10')
    A(f'v_lshl_add_u32 v{KXA+1}, v10, 4, v8')
    A('v_bfe_u32 v11, v1, 2, 2')
    A('v_and_b32 v14, 3, v1')
    A('v_lshl_add_u32 v12, v9, 3, v11')
    A('v_lshlrev_b32 v12, 6, v12')
    A('v_lshl_add_u32 v12, v14, 3, v12')
    A(f's_lshr_b32 s29, s{sW}, 1')
    A('s_lshl_b32 s29, s29, 5')
    A(f'v_add_u32 v{KWA}, s29, v12')
    A(f'v_lshlrev_b32 v{GB}, 4, v9')
    A(f'v_add_u32 v{GB}, {L_GATE}, v{GB}')
    A('s_lshl_b32 s29, s28, 8')
    A(f'v_add_u32 v{GA}, s29, v{GB}')
    for r in range(12):
        A(f'v_mov_b32 v{KAC+r}, 0')
    A('v_and_b32 v8, 15, v1')
    A('v_bfe_u32 v9, v1, 4, 1')
    A('v_lshrrev_b32 v10, 5, v1')
    A('v_lshl_add_u32 v12, v9, 5, v8')
    A('v_lshlrev_b32 v12, 4, v12')
    A('v_lshl_add_u32 v12, v10, 3, v12')
    A('v_lshl_add_u32 v13, v10, 5, v8')
    A('v_lshlrev_b32 v13, 4, v13')
    A('v_lshl_add_u32 v13, v9, 3, v13')
    A(f's_and_b32 s29, s{sW}, 1')
    A(f's_lshr_b32 s30, s{sW}, 1')
    A('s_lshl_b32 s31, s29, 8')
    A('s_lshl_b32 s32, s30, 10')
    A('s_add_u32 s31, s31, s32')
    A(f'v_add_u32 v{KST}, s31, v12')
    A('s_lshl_b32 s31, s29, 10')
    A('s_lshl_b32 s32, s30, 8')
    A('s_add_u32 s31, s31, s32')
    A(f'v_add_u32 v{KST+1}, s31, v13')
    A(f'v_lshlrev_b32 v{KST+2}, 2, v1')
    A('v_and_b32 v15, 31, v1')
    A('v_lshrrev_b32 v9, 5, v1')
    A('v_bfe_u32 v10, v1, 1, 3')
    A('v_xor_b32 v10, v10, v9')
    A('v_lshlrev_b32 v15, 7, v15')
    A(f's_and_b32 s29, s{sW}, 1')
    A('s_lshl_b32 s29, s29, 13')
    A('v_add_u32 v15, s29, v15')
    for st in range(4):
        A(f'v_xor_b32 v12, {2*st}, v10')
        A(f'v_lshl_add_u32 v{XA+st}, v12, 4, v15')
    A('v_lshl_add_u32 v12, v9, 3, v11')
    A('v_bfe_u32 v13, v1, 4, 1')
    A('v_lshlrev_b32 v13, 5, v13')
    A('v_lshl_add_u32 v13, v14, 3, v13')
    A(f's_and_b32 s30, s{sW}, 2')
    A('v_xor_b32 v14, s30, v11')
    A(f'v_lshl_add_u32 v{WA}, v14, 6, v13')
    A('v_xor_b32 v14, 1, v14')
    A(f'v_lshl_add_u32 v{WA+1}, v14, 6, v13')
    A('v_lshlrev_b32 v14, 8, v12')
    A(f'v_add_u32 v{WA}, v{WA}, v14')
    A(f'v_add_u32 v{WA+1}, v{WA+1}, v14')
    for r in range(SB, SB+64):
        A(f'v_mov_b32 v{r}, 0')
    for r in range(16):
        A(f'v_accvgpr_write_b32 a{AL+r}, 0')
    for r in range(4):
        A(f'v_accvgpr_write_b32 a{AV+12+r}, 0')
    for l in sel_code: A(l)
    A(f's_bfe_u32 s32, s{sCB}, 0x10002')
    A('s_lshl_b32 s37, s32, 31')
    A('s_lshl_b32 s31, s32, 13')
    A('s_lshl_b32 s32, s32, 18')
    A(f's_lshl_b32 s30, s{sTB}, 2')
    A(f's_and_b32 s29, s{sCB}, 3')
    A('s_add_u32 s30, s30, s29')
    A('s_lshl_b32 s35, s30, 12')
    A('s_add_u32 s35, s35, s32')
    A('s_lshl_b32 s36, s30, 7')
    A('s_add_u32 s36, s36, s31')
    A(f's_and_b32 s31, s{sW}, 1')
    A('s_lshl_b32 s31, s31, 6')
    A('s_add_u32 s36, s36, s31')
    A(f's_add_u32 s36, s36, {WS_G}')
    A(f's_cmp_lt_u32 s{sW}, 2')
    A('s_cselect_b32 s36, s36, 0x40000000')
    A(f's_xor_b32 s37, s37, {f32bits(-LOG2E):#x}')
    A(f's_lshr_b32 s32, s{sCB}, 3')
    A('s_lshl_b32 s32, s32, 18')
    A(f's_mov_b32 s39, {SLOT}')
    A(f's_cmp_eq_u32 s{sW}, 3')
    A(f's_cselect_b32 s45, {(1<<NSIG)|(1<<NPOLL)|(1<<NCHK):#x}, 0')
    A(f's_lshl_b32 s29, s{sTB}, 2')
    A(f's_and_b32 s30, s{sW}, 1')
    A('s_lshl_b32 s30, s30, 1')
    A('s_add_u32 s29, s29, s30')
    A('s_lshl_b32 s48, s29, 7')
    A('s_lshr_b32 s30, s32, 5')
    A('s_add_u32 s48, s48, s30')
    A(f's_add_u32 s48, s48, {WS_G}')
    A('s_lshl_b32 s50, s29, 17')
    A(f's_lshl_b32 s31, s{sCB}, 2')
    A(f's_and_b32 s29, s{sW}, 2')
    A('s_add_u32 s31, s31, s29')
    A('s_lshl_b32 s31, s31, 11')
    A('s_add_u32 s50, s50, s31')
    A(f's_add_u32 s50, s50, {WS_OF}')
    A('s_add_u32 s51, s50, 0x20000')
    A('s_mov_b32 s49, 0')
    A('s_mov_b32 s33, 32768')
    stamp(A, 1)
    def rd_list(st):
        sb = OB + 16*st
        def ra(aa, rho): return (f'ds_read_b64_tr_b16 {v(sb+4*aa+2*rho,2)}, v{WA+aa} offset:{16384+st*4096+rho*1024}', (st, 'A', aa))
        def rb(b): return (f'ds_read_b128 {v(sb+8+4*b,4)}, v{XA+st} offset:{b*4096}', (st, 'B', b))
        return [ra(0,0), ra(0,1), rb(0), rb(1), ra(1,0), ra(1,1)]
    allr = [r for st in range(4) for r in rd_list(st)]
    L = Cnt(A, 'lgkmcnt', 15)
    A('s_mov_b32 s38, 0')
    A('s_waitcnt vmcnt(3)' if 'cpf' in VAR else 's_waitcnt vmcnt(2)')
    A('s_barrier')
    A('s_bitcmp1_b32 s2, 0')
    A('s_cbranch_scc1 P1_Q0')
    FB = 16
    def rd(st):
        fb = FB + 16*st
        for rho in range(2):
            L.issue(f'ds_read_b64_tr_b16 {a(fb+2*rho,2)}, v{KWA} offset:{8192+st*2048+rho*256}', ('k', st))
        L.issue(f'ds_read_b128 {a(fb+8,4)}, v{KXA+(st&1)} offset:{(st>>1)*4096}', ('k', st))
        for rho in range(2):
            L.issue(f'ds_read_b64_tr_b16 {a(fb+4+2*rho,2)}, v{KWA} offset:{16384+st*2048+rho*256}', ('k', st))
        L.issue(f'ds_read_b128 {a(fb+12,4)}, v{GA} offset:{st*64}', ('k', st))
    def mm(st):
        fb = FB + 16*st
        L.need(('k', st))
        A(f'v_mfma_f32_16x16x32_bf16 {v(KAC,4)}, {a(fb,4)}, {a(fb+8,4)}, {v(KAC,4)}')
        A(f'v_mfma_f32_16x16x32_bf16 {v(VAC,4)}, {a(fb+8,4)}, {a(fb+4,4)}, {v(VAC,4)}')
        A(f'v_mfma_f32_16x16x32_bf16 {v(GAC,4)}, {a(fb+12,4)}, {a(fb+8,4)}, {v(GAC,4)}')
    for st in range(2): rd(st)
    A('KV_LOOP:')
    q0 = list(L.q)
    for st in range(2):
        mm(st)
        rd(st + 2)
    A('s_and_b32 s29, s38, 3')
    A('s_cmp_eq_u32 s29, 3')
    A(f's_cselect_b32 s29, {(-3*SLOT) & 0xffffffff:#x}, s39')
    for r in (KXA, KXA+1, KWA):
        A(f'v_add_u32 v{r}, s29, v{r}')
    A('s_add_u32 s28, s28, 1')
    A('s_and_b32 s28, s28, 7')
    A('s_lshl_b32 s29, s28, 8')
    A(f'v_add_u32 v{GA}, s29, v{GB}')
    A('s_add_u32 s38, s38, 1')
    A('s_cmp_lt_u32 s38, 8')
    L.drain()
    A('s_cbranch_scc0 KV_TAIL')
    A('s_barrier')
    for st in range(2, 4):
        rd(st - 2)
        mm(st)
    assert L.q == q0
    A('s_branch KV_LOOP')
    A('KV_TAIL:')
    L.q = []
    mm(2)
    mm(3)
    for r in range(4):
        A(f'v_accvgpr_write_b32 a{AV+12+r}, 0')
    A('s_nop 1')
    A(f's_mov_b32 s31, {f32bits(QK_SCALE):#x}')
    for r in range(4):
        A(f'v_mul_f32 v{KAC+r}, s31, v{KAC+r}')
    A(f'v_mul_f32 v{GAC}, s37, v{GAC}')
    A(f'v_cvt_pk_bf16_f32 v{VAC}, v{VAC}, v{VAC+1}')
    A(f'v_exp_f32 v{GAC}, v{GAC}')
    A(f'v_cvt_pk_bf16_f32 v{VAC+1}, v{VAC+2}, v{VAC+3}')
    A(f'v_add_f32 v{GAC}, 1.0, v{GAC}')
    A(f'v_cvt_pk_bf16_f32 v{KAC}, v{KAC}, v{KAC+1}')
    A(f'v_rcp_f32 v{GAC}, v{GAC}')
    A(f'v_cvt_pk_bf16_f32 v{KAC+1}, v{KAC+2}, v{KAC+3}')
    A(f'buffer_store_dwordx2 {v(VAC,2)}, v{KST+1}, {W}, s35 offen offset:2048 sc1')
    A(f'buffer_store_dwordx2 {v(KAC,2)}, v{KST}, {W}, s35 offen sc1')
    A('s_mov_b64 exec, 0xffff')
    A(f'buffer_store_dword v{GAC}, v{KST+2}, {W}, s36 offen sc1')
    A('s_mov_b64 exec, -1')
    A('s_barrier')
    A('P1_Q0:')
    for r in allr[:15]: A(r[0])
    A('P1_Q:')
    stamp(A, 2)
    def group(st, rds, other=(), nother=2):
        rds = list(rds); other = list(other)
        sb = OB + 16*st
        for aa in range(2):
            for b in range(2):
                acc = SB + 16*(aa*2+b)
                L.need((st, 'A', aa), (st, 'B', b))
                if 'hack16' in VAR:
                    q = acc + 8*(st&1)
                    A(f'v_mfma_f32_16x16x32_bf16 {v(q,4)}, {v(sb+4*aa,4)}, {v(sb+8+4*b,4)}, {v(q,4)}')
                    if rds: L.issue(*rds.pop(0))
                    A(f'v_mfma_f32_16x16x32_bf16 {v(q+4,4)}, {v(sb+8+4*b,4)}, {v(sb+4*aa,4)}, {v(q+4,4)}')
                    if rds: L.issue(*rds.pop(0))
                else:
                  A(f'v_mfma_f32_32x32x16_bf16 {v(acc,16)}, {v(sb+4*aa,4)}, {v(sb+8+4*b,4)}, {v(acc,16)}')
                  for _ in range(2):
                    if rds: L.issue(*rds.pop(0))
                for _ in range(nother):
                    if other: A(other.pop(0))
        assert not rds
        for o in other: A(o)
    L.q = []
    A('s_mov_b32 s38, 0')
    L.q = [r[1] for r in allr[:15]]
    L.issue(*allr[15])
    adr = [f'v_add_u32 v{r}, s29, v{r}' for r in (XA, XA+1, XA+2, XA+3, WA, WA+1)]
    def stage(mode, extra=()):
        L.need(*[r[1] for r in allr[:8]])
        group(0, allr[16:24], ['s_and_b32 s29, s38, 3', 's_cmp_eq_u32 s29, 3', f's_cselect_b32 s29, {(-3*SLOT) & 0xffffffff:#x}, s39',
                               's_add_u32 s38, s38, 1', f's_cmp_eq_u32 s38, {NSIG}' if mode == 'loop' else ''])
        if mode == 'last':
            z = [f'v_mov_b32 v{OB+r}, 0' for r in range(64)]
            L.need(*[r[1] for r in allr[8:16]])
            group(1, [], list(extra) + z[:16], 5)
            L.drain()
            A('s_barrier')
            for r in kvr(0, 0): A(r)
            cv = [[f'v_cvt_pk_bf16_f32 v{QB+8*t+i}, v{SB+16*t+2*i}, v{SB+16*t+2*i+1}' for i in range(8)] for t in range(4)]
            fill = z[16:32] + ['', '', '', ''] + cv[0] + ['', ''] + cv[1] + ['', '']
            for t in range(4):
                aa, b = t >> 1, t & 1
                for st in (2, 3):
                    sb = OB + 16*st
                    A(f'v_mfma_f32_32x32x16_bf16 {v(SB+16*t,16)}, {v(sb+4*aa,4)}, {v(sb+8+4*b,4)}, {v(SB+16*t,16)}')
                    for _ in range(5):
                        if fill: A(fill.pop(0))
            assert not fill
            A('s_waitcnt lgkmcnt(0)')
            A(qk(0, 0, 0))
            for l in cv[2]: A(l)
            A(qk(0, 0, 1))
            for l in z[32:]: A(l)
            for l in cv[3]: A(l)
            for r in range(8):
                A(f'v_mov_b32 v{SB+48+8+r}, 0')
            return
        L.need(*[r[1] for r in allr[8:16]])
        group(1, [], list(extra) + adr, 3)
        if mode == 'loop':
            A('s_cbranch_scc1 Q_PRE')
            A('Q_PRE_RET:')
        L.drain()
        A('s_barrier')
        group(2, allr[0:8], ['', '', '', '', '', '', 's_bitcmp1_b32 s45, s38', 's_cbranch_scc1 Q_POST\nQ_POST_RET:'] if mode == 'loop' else [])
        group(3, allr[8:16])
    A('Q_LOOP:')
    q0 = list(L.q)
    stage('loop')
    assert L.q == q0, (L.q, q0)
    A('s_cmp_lt_u32 s38, 15')
    A('s_cbranch_scc1 Q_LOOP')
    stage('last', [f'v_add_u32 v0, {L_KVR+32768}, v2', 'v_and_b32 v10, 31, v1', 'v_lshlrev_b32 v10, 2, v10',
                   f'buffer_load_dword v11, v10, {W}, s48 offen offset:128 sc1', f'buffer_load_dword v10, v10, {W}, s48 offen sc1'])
    T = Asm()
    T('Q_PRE:')
    T('s_waitcnt vmcnt(0)')
    T('s_branch Q_PRE_RET')
    T('Q_POST:')
    T(f's_cmp_eq_u32 s38, {NPOLL}')
    T('s_cbranch_scc1 Q_POLL')
    T(f's_cmp_eq_u32 s38, {NCHK}')
    T('s_cbranch_scc1 Q_CHECK')
    T('s_and_b32 s30, s2, 1')
    T('s_lshl_b32 s30, s30, 7')
    T('v_mov_b32 v0, s30')
    T('v_mov_b32 v11, 1')
    T('s_mov_b64 exec, 1')
    T(f'global_atomic_add v0, v11, s[{DBG}:{DBG+1}] sc1')
    T('s_mov_b64 exec, -1')
    T('s_branch Q_POST_RET')
    T('Q_POLL:')
    T('v_and_b32 v0, 1, v1')
    T('v_lshlrev_b32 v0, 7, v0')
    T('v_mov_b32 v11, 128')
    T(f'global_load_dword v10, v0, s[{DBG}:{DBG+1}] sc1')
    T('s_branch Q_POST_RET')
    T('Q_CHECK:')
    T('s_waitcnt vmcnt(0)')
    T('v_cmp_lt_u32 vcc, v10, v11')
    T('s_nop 1')
    T('s_cbranch_vccz Q_POST_RET')
    poll(T, 'KV', f'global_load_dword v10, v0, s[{DBG}:{DBG+1}] sc1', 11, 8, 'lt')
    T('s_branch Q_POST_RET')
    tail.extend(T.lines)
    stamp(A, 3)

def qk(t, kb, half, sb=None):
    sb = t if sb is None else sb
    c = '0' if half == 0 else v(SB+16*sb, 16)
    return f'v_mfma_f32_32x32x16_bf16 {v(SB+16*sb,16)}, {a(AK+8*kb+4*half,4)}, {v(QB+8*t+4*half,4)}, {c}'
def pv(t, vb, half, sb=None):
    sb = t if sb is None else sb
    return f'v_smfmac_f32_32x32x32_bf16 {v(OB+16*t,16)}, {a(AV+8*vb+4*half,4)}, {v(SB+16*sb+8*half,8)}, v{IDX}'
def sm(t, half, sb=None):
    sb = t if sb is None else sb
    return f'v_smfmac_f32_16x16x64_bf16 {a(AL+4*t,4)}, {v(SEL,4)}, {v(SB+16*sb+8*half,8)}, v{IDX}'
def ex(t, i):
    return f'v_exp_f32 v{SB+16*t+i}, v{SB+16*t+i}'

def slot(A, cur, nxt, prv, x):
    t, kb, sb = cur
    A(qk(nxt[0], nxt[1], 0, nxt[2]) if nxt else '')
    A(x.get(0, ''))
    for e in (0, 1, 2): A(ex(sb, e))
    A(qk(nxt[0], nxt[1], 1, nxt[2]) if nxt else '')
    A(x.get(1, ''))
    for e in (3, 4, 5): A(ex(sb, e))
    A(pv(prv[0], prv[1], 1, prv[2]))
    A(x.get(2, ''))
    for e in (6, 7, 8): A(ex(sb, e))
    A(sm(prv[0], 1, prv[2]))
    A(x.get(3, ''))
    for e in (9, 10): A(ex(sb, e))
    A(pv(t, kb, 0, sb))
    A(x.get(4, ''))
    for e in (11, 12, 13): A(ex(sb, e))
    A(sm(t, 0, sb))
    A(x.get(5, ''))
    for e in (14, 15): A(ex(sb, e))

def tile_out(A, t, check):
    aa, b = t >> 1, t & 1
    o = OB + 16*t
    A(f'v_accvgpr_read_b32 v3, a{AL+4*t}')
    A('v_rcp_f32 v8, v3')
    if check:
        A('v_min_f32 v4, v4, v3')
        A('v_max_f32 v5, v5, v3')
        A('v_fma_f32 v6, v3, 0, v6')
    else:
        A('s_nop 0')
    A(f'v_mul_f32 v8, v8, v{10+b}')
    for h in range(2):
        for r in range(8*h, 8*h+8, 2):
            A(f'v_pk_mul_f32 {v(o+r,2)}, {v(o+r,2)}, v[8:9] op_sel_hi:[1,0]')
        if check:
            for r in range(8*h, 8*h+8, 2):
                A(f'v_pk_fma_f32 v[6:7], {v(o+r,2)}, 0, v[6:7]')
        for r in range(4):
            A(f'v_cvt_pk_bf16_f32 v{o+8*h+r}, v{o+8*h+2*r}, v{o+8*h+2*r+1}')
        A(f'buffer_store_dwordx4 {v(o+8*h,4)}, v2, {W}, s{50+b} offen offset:{aa*2048+h*1024} sc1')

def attention(A):
    A('s_mov_b32 s36, 15')
    A(f'v_add_u32 v3, {L_KVR}, v2')
    A('v_mov_b32 v4, 1.0')
    A('v_mov_b32 v5, 1.0')
    A('v_mov_b32 v6, 0')
    A('v_mov_b32 v7, 0')
    stamp(A, 4)
    A('.p2align 6')
    A('AT_LOOP:')
    for i in range(4):
        for t in range(4):
            nt, nb = (t+1) % 4, ((i if t < 3 else i+1) % 2)
            pt, pb = (t-1) % 4, ((i if t > 0 else i-1) % 2)
            x = {3: kvr((i+1) % 4, (i+1) % 2)[t]}
            if t == 0: x[0] = 's_waitcnt lgkmcnt(0)' + ('\ns_barrier' if i == 3 else '')
            if t == 2 and i == 3: x[1] = 's_sub_u32 s36, s36, 1'
            if t == 1 and i == 2: x[1] = 's_add_u32 s33, s33, 16384'
            if t == 2 and i == 2: x[1] = 's_and_b32 s33, s33, 0xffff'
            if t == 0 and i == 3: x[2] = 'v_add_u32 v0, s33, v3'
            if t == 2: x[5] = 's_waitcnt lgkmcnt(1)'
            if t == 3 and i == 3: x[5] = 's_cmp_lg_u32 s36, 0'
            slot(A, (t, i % 2, t), (nt, nb, nt), (pt, pb, pt), x)
    A('s_cbranch_scc1 AT_LOOP')
    seq = [(t, 0) for t in range(4)] + [(t, st) for t in range(4) for st in (1, 2, 3)]
    seq = [(t, st, n % 4) for n, (t, st) in enumerate(seq)]
    rds = kvr(1, 1) + kvr(2, 2) + kvr(3, 3)
    rds = rds[0:2] + rds[4:6] + rds[2:4] + rds[8:10] + rds[6:8] + rds[10:12]
    for n in range(16):
        x = {}
        if n == 0: x[0] = 's_waitcnt lgkmcnt(0)'
        if n < 3:
            x[3] = rds.pop(0) + '\n' + rds.pop(0)
            x[5] = rds.pop(0) + '\n' + rds.pop(0)
        if n == 2: x[5] += '\ns_waitcnt lgkmcnt(10)'
        if n == 3: x[5] = 's_waitcnt vmcnt(0) lgkmcnt(0)'
        slot(A, seq[n], seq[n+1] if n < 15 else None, seq[n-1] if n else (3, 1, 3), x)
        if n in (7, 10, 13):
            tile_out(A, (n-7)//3, True)
    stamp(A, 5)
    A('s_nop 1')
    A(sm(3, 1, 3))
    A(pv(3, 3, 1, 3))
    A('s_nop 6')
    tile_out(A, 3, True)
    A(f'v_cmp_gt_f32 vcc, {f32bits(2.0**-16):#x}, v4')
    A(f's_mov_b32 s29, {f32bits(2.0**64):#x}')
    A('v_cmp_lt_f32 s[46:47], s29, v5')
    A('v_cmp_u_f32 s[52:53], v6, v7')
    A('s_nop 1')
    A('s_or_b64 s[46:47], s[46:47], vcc')
    A('s_or_b64 s[46:47], s[46:47], s[52:53]')
    if 'forceslow' in VAR:
        A('s_branch AT_SLOW')
    A('s_cbranch_scc1 AT_SLOW')
    A('AT_DONE:')
    S = Asm()
    S('AT_SLOW:')
    S('s_waitcnt vmcnt(0)')
    for t in range(4):
        S(f'v_mov_b32 v{4+t}, 0xff800000')
    S('s_mov_b32 s34, s32')
    S('s_mov_b32 s36, 64')
    S('SL_MAX:')
    for l in kv_loads(0)[:2]: S(l)
    S('s_waitcnt vmcnt(0)')
    for t in range(4):
        S(qk(t, 0, 0)); S(qk(t, 0, 1))
    S('s_nop 15')
    for t in range(4):
        for r in range(0, 16, 2):
            S(f'v_max3_f32 v{4+t}, v{4+t}, v{SB+16*t+r}, v{SB+16*t+r+1}')
    S('s_add_u32 s34, s34, 4096')
    S('s_sub_u32 s36, s36, 1')
    S('s_cmp_lg_u32 s36, 0')
    S('s_cbranch_scc1 SL_MAX')
    for t in range(4):
        S(f'v_mov_b32 v8, v{4+t}')
        S('s_nop 1')
        S(f'v_permlane32_swap_b32 v8, v{4+t}')
        S('s_nop 1')
        S(f'v_max_f32 v{4+t}, v{4+t}, v8')
    for r in range(16):
        S(f'v_accvgpr_write_b32 a{AL+r}, 0')
    for r in range(64):
        S(f'v_mov_b32 v{OB+r}, 0')
    S('s_mov_b32 s34, s32')
    S('s_mov_b32 s36, 64')
    S('SL_ACC:')
    for l in kv_loads(0): S(l)
    S('s_waitcnt vmcnt(0)')
    for t in range(4):
        S(qk(t, 0, 0)); S(qk(t, 0, 1))
    S('s_nop 15')
    for t in range(4):
        for r in range(16):
            S(f'v_sub_f32 v{SB+16*t+r}, v{SB+16*t+r}, v{4+t}')
        for r in range(16):
            S(ex(t, r))
    S('s_nop 3')
    for t in range(4):
        for h in range(2):
            S(pv(t, 0, h)); S(sm(t, h))
    S('s_add_u32 s34, s34, 4096')
    S('s_sub_u32 s36, s36, 1')
    S('s_cmp_lg_u32 s36, 0')
    S('s_cbranch_scc1 SL_ACC')
    S('s_nop 15')
    for t in range(4):
        tile_out(S, t, False)
    S('s_branch AT_DONE')
    tail.extend(S.lines)

def p3_compute(A):
    WB, ACC = 16, 48
    def oreg(slot, st):
        i = 32*slot + 4*st
        return v(80+i, 4) if i < 96 else a(i-96, 4)
    A(f's_lshl_b32 s35, s{sTB}, 2')
    A(f's_add_u32 s35, s35, s{sW}')
    A('s_lshl_b32 s36, s35, 17')
    A(f's_add_u32 s36, s36, {WS_OF}')
    A('s_and_b32 s32, s2, 6')
    A(f's_and_b32 s37, s{sCB}, 8')
    A('s_add_u32 s37, s37, s32')
    A('s_lshl_b32 s37, s37, 13')
    A('v_add_u32 v3, 4096, v2')
    A('v_bfe_u32 v8, v1, 2, 2')
    A('v_lshrrev_b32 v9, 5, v1')
    A('v_lshl_add_u32 v9, v9, 2, v8')
    A('v_lshlrev_b32 v9, 7, v9')
    A('v_bfe_u32 v10, v1, 4, 1')
    A('v_lshl_add_u32 v9, v10, 5, v9')
    A('v_and_b32 v10, 3, v1')
    A('v_lshl_add_u32 v9, v10, 3, v9')
    A('v_lshrrev_b32 v8, 1, v8')
    A('v_lshl_add_u32 v5, v8, 6, v9')
    A('v_xor_b32 v8, 1, v8')
    A('v_lshl_add_u32 v6, v8, 6, v9')
    for r in range(32):
        A(f'v_mov_b32 v{ACC+r}, 0')
    A('s_mov_b32 s38, 0')
    srd(A, SOUT, 56, 57, 4 << 20)
    V = Cnt(A, 'vmcnt', 63)
    L = Cnt(A, 'lgkmcnt', 15)
    LK = opt('lk', 2)
    def oload(slot, st):
        return (f'buffer_load_dwordx4 {oreg(slot,st)}, v{2+st//4}, {W}, s30 offen offset:{(st%4)*1024} sc1', ('O', slot, st))
    adv = ['s_add_u32 s37, s37, 8192', 's_and_b32 s37, s37, 0x1ffff', 's_add_u32 s30, s36, s37']
    A(adv[2])
    def wr(slot, st):
        out = []
        for ct in range(2):
            for rho in range(2):
                out.append((f'ds_read_b64_tr_b16 {v(WB+8*(st%4)+4*ct+2*rho,2)}, v{5+ct} offset:{slot*16384+st*2048+rho*1024}', ('W', st%4, ct)))
        return out
    LA = 2
    A('s_waitcnt vmcnt(0)')
    stamp(A, 6)
    A('s_barrier')
    for st in range(LA):
        for r in wr(0, st): L.issue(*r)
    A('s_barrier')
    stamp(A, 7)
    for sl in range(LK):
        for st in range(8): V.issue(*oload(sl, st))
        for x in adv: A(x)
    A('P3_LOOP:')
    q0, v0 = list(L.q), list(V.q)
    for slot in range(4):
        for st in range(8):
            nst = st + LA
            if nst == 8:
                L.drain()
                A('s_barrier')
                if slot == 3:
                    A('v_xor_b32 v5, 0x10000, v5')
                    A('v_xor_b32 v6, 0x10000, v6')
            rds = wr(slot, nst) if nst < 8 else wr((slot+1) % 4, nst-8)
            for ct in range(2):
                L.need(('W', st%4, ct))
                V.need(('O', slot, st))
                if 'hack16' in VAR:
                    q = ACC+16*ct+8*(st&1)
                    A(f'v_mfma_f32_16x16x32_bf16 {v(q,4)}, {v(WB+8*(st%4)+4*ct,4)}, {oreg(slot,st)}, {v(q,4)}')
                    L.issue(*rds[2*ct])
                    A(f'v_mfma_f32_16x16x32_bf16 {v(q+4,4)}, {oreg(slot,st)}, {v(WB+8*(st%4)+4*ct,4)}, {v(q+4,4)}')
                    L.issue(*rds[2*ct+1])
                else:
                    A(f'v_mfma_f32_32x32x16_bf16 {v(ACC+16*ct,16)}, {v(WB+8*(st%4)+4*ct,4)}, {oreg(slot,st)}, {v(ACC+16*ct,16)}')
                    L.issue(*rds[2*ct]); L.issue(*rds[2*ct+1])
                if ct == 0:
                    if slot == 4-LK and st == 0:
                        A('s_cmp_eq_u32 s38, 3')
                        A(f's_cselect_b32 s{SWS+2}, 0, s{SWS+2}')
                    V.issue(*oload((slot+LK) % 4, st))
                elif st == 7:
                    for x in adv: A(x)
    A('s_add_u32 s38, s38, 1')
    A('s_cmp_lt_u32 s38, 4')
    assert L.q == q0, (L.q, q0)
    assert V.q == v0, (V.q, v0)
    A('s_cbranch_scc1 P3_LOOP')
    stamp(A, 8)
    A('v_and_b32 v8, 31, v1')
    A('v_lshlrev_b32 v8, 11, v8')
    A('v_lshrrev_b32 v9, 5, v1')
    A('v_lshl_add_u32 v8, v9, 4, v8')
    A('s_lshl_b32 s29, s35, 16')
    A(f's_lshl_b32 s30, s{sCB}, 7')
    A('s_add_u32 s29, s29, s30')
    A('s_nop 6')
    D = 80
    A('s_waitcnt vmcnt(0)')
    for ct in range(2):
        for g in range(4):
            b = ACC+16*ct+4*g
            d = D+8*ct+2*g
            A(f'v_cvt_pk_bf16_f32 v{d}, v{b}, v{b+1}')
            A(f'v_cvt_pk_bf16_f32 v{d+1}, v{b+2}, v{b+3}')
    A('s_nop 1')
    for j in range(4):
        d = D+4*j
        A(f'v_permlane32_swap_b32 v{d}, v{d+2}')
        A(f'v_permlane32_swap_b32 v{d+1}, v{d+3}')
        A(f'buffer_store_dwordx4 {v(d,4)}, v8, s[{SOUT}:{SOUT+3}], s29 offen offset:{j*32}' + (' sc1' if 'outsc1' in VAR else '') + (' nt' if 'outnt' in VAR else ''))

def build():
    ref = open(f'cdna_kernels/{NAME}.s.ref').read().split('\n')
    head = [l for l in ref if l.startswith(';') and '@launch' not in l and 'Override' not in l and 'grid=ceil' not in l]
    out = '\n'.join(head) + '\n'
    if 'aslist' in VAR:
        out += f'; @launch kernel={KNAME} grid=(256,1,1) block=(512,1,1) lds={LDS_BYTES}\n'
    else:
        out += f'; @launch grid=(256,1,1) block=(512,1,1) lds={LDS_BYTES}\n'
    out += '.amdgcn_target "amdgcn-amd-amdhsa--gfx950"\n.text\n'
    A = Asm()
    kernel(A)
    out += A.text()
    out += '.section .rodata,"a"\n' + kd(KNAME, 256, NARCH)
    return out

if __name__ == '__main__':
    args = [x for x in sys.argv[1:] if not x.startswith('--')]
    if '--instr' in sys.argv: INSTR = True
    if '--lst' in sys.argv: LST = True
    for x in sys.argv:
        if x.startswith('--var='): VAR = x[6:]
    dst = args[0] if args else f'cdna_kernels/{NAME}.s'
    open(dst, 'w').write(build())
```

```python
import math, sys
from asmlib import *

NAME = 'gated_mix__grouped_kv_mqa__grouped_kv_mqa__prompt'
KNAME = NAME + '_kernel'
WS_KV = 0
WS_G = 512 << 10
WS_FLAG = 576 << 10
WS_OF = 1 << 20
WS_BYTES = 9 << 20
QK_SCALE = math.log2(math.e) / math.sqrt(32.0)
LOG2E = math.log2(math.e)
INSTR = False
LST = False
VAR = ''
WS_DBG = 32 << 20
WS_DBG2 = 40 << 20

SLOT = 32768
L_GATE = 4 * SLOT
LDS_BYTES = 163840
L_KVR = 98304

SX, SW, SKV, SWS, SG = 4, 8, 12, 16, 20
SWO, SOUT = 8, 12
sW, sTB, sCB, sST = 24, 25, 26, 27
W = f's[{SWS}:{SWS+3}]'
DBG = 58
NARCH = 176
SB, OB = 16, 80
AL, AK, AV = 0, 16, 48
QB = 144
IDX, SEL = 9, 12
NSIG, NPOLL, NCHK = 2, 11, 13

def opt(name, default):
    for tok in VAR.split('_'):
        if tok.startswith(name) and tok[len(name):].isdigit():
            return int(tok[len(name):])
    return default

def srd(A, d, lo, hi, nbytes):
    A(f's_mov_b32 s{d}, s{lo}')
    A(f's_and_b32 s{d+1}, s{hi}, 0xffff')
    A(f's_mov_b32 s{d+2}, {nbytes:#x}')
    A(f's_mov_b32 s{d+3}, 0x20000')

def stamp(A, i):
    if INSTR:
        A(f's_mem{"time" if "allcyc" in VAR else "realtime"} s[{64+2*i}:{65+2*i}]')
NST = 10
def stamp_end(A):
    if not INSTR: return
    A('s_waitcnt vmcnt(0) lgkmcnt(0)')
    stamp(A, NST-1)
    A('s_getreg_b32 s62, hwreg(HW_REG_XCC_ID)')
    A('s_waitcnt lgkmcnt(0)')
    A('s_mov_b64 exec, 1')
    A('s_lshl_b32 s63, s2, 2')
    A(f's_add_u32 s63, s63, s{sW}')
    A('s_lshl_b32 s63, s63, 6')
    A(f's_add_u32 s63, s63, {WS_DBG}')
    A('v_mov_b32 v0, s63')
    for i in range(NST):
        A(f'v_mov_b32 v1, s{64+2*i}')
        A(f'global_store_dword v0, v1, s[60:61] offset:{4*i}')
    A('v_mov_b32 v1, s62')
    A(f'global_store_dword v0, v1, s[60:61] offset:{4*NST}')
    A('s_waitcnt vmcnt(0)')
def lstamp(A, vreg, idx):
    if not LST: return
    A('s_memtime s[64:65]' if ('cyc' in VAR and vreg == 32) else 's_memrealtime s[64:65]')
    A('s_waitcnt lgkmcnt(0)')
    if isinstance(idx, str):
        A(f's_mov_b32 m0, {idx}')
        A(f'v_writelane_b32 v{vreg}, s64, m0')
    else:
        A(f'v_writelane_b32 v{vreg}, s64, {idx}')
def ldump(A):
    if not LST: return
    A('s_lshl_b32 s80, s2, 2')
    A(f's_add_u32 s80, s80, s{sW}')
    A('s_lshl_b32 s80, s80, 10')
    A(f's_add_u32 s80, s80, {WS_DBG2}')
    A('v_lshlrev_b32 v0, 2, v1')
    A('v_add_u32 v0, s80, v0')
    A('global_store_dword v0, v30, s[60:61]')
    A('global_store_dword v0, v31, s[60:61] offset:256')
    A('global_store_dword v0, v32, s[60:61] offset:512')
    A('s_waitcnt vmcnt(0)')

def poll(A, tag, load, vwant, sleep, cmp='ne'):
    A('s_mov_b32 s30, 0x40000')
    A(f'POLL_{tag}:')
    A(load)
    A('s_waitcnt vmcnt(0)')
    A(f'v_cmp_{cmp}_u32 vcc, v10, v{vwant}')
    A('s_sub_u32 s30, s30, 1')
    A(f's_cbranch_scc1 POLLD_{tag}')
    A(f's_cbranch_vccz POLLD_{tag}')
    A(f's_sleep {sleep}')
    A(f's_branch POLL_{tag}')
    A(f'POLLD_{tag}:')

tail = []

def kernel(A):
    A(f'.globl {KNAME}\n.p2align 8\n.type {KNAME},@function\n{KNAME}:')
    A('s_cmp_ge_u32 s2, 256')
    A('s_cbranch_scc1 END2')
    stamp(A, 0)
    if 'flip' in VAR: A('s_xor_b32 s2, s2, 1')
    A('s_load_dwordx4 s[40:43], s[0:1], 0')
    A('s_load_dwordx4 s[44:47], s[0:1], 16')
    A('s_load_dwordx4 s[48:51], s[0:1], 48')
    A('s_load_dwordx2 s[52:53], s[0:1], 64')
    A('s_load_dwordx2 s[54:55], s[0:1], 80')
    A('s_load_dwordx4 s[56:59], s[0:1], 88')
    A('s_load_dwordx2 s[60:61], s[0:1], 104')
    A('v_lshrrev_b32 v8, 6, v0')
    A('v_and_b32 v1, 63, v0')
    A(f'v_readfirstlane_b32 s{sW}, v8')
    A('s_and_b32 s29, s2, 1')
    A('s_lshl_b32 s29, s29, 3')
    A('s_bfe_u32 s30, s2, 0x30003')
    A(f's_add_u32 s{sCB}, s29, s30')
    A('s_bfe_u32 s28, s2, 0x20001')
    A('s_lshl_b32 s31, s28, 2')
    A('s_lshr_b32 s32, s2, 6')
    A(f's_add_u32 s{sTB}, s31, s32')
    A('s_lshl_b32 s29, s32, 1')
    A('s_add_u32 s28, s28, s29')
    A('s_and_b32 s29, s30, 4')
    A('s_add_u32 s28, s28, s29')
    A('s_and_b32 s28, s28, 7')
    A(f's_and_b32 s{sST}, s2, 7')
    A(f's_lshl_b32 s{sST}, s{sST}, 1')
    A('v_lshlrev_b32 v2, 4, v1')
    A(f's_cmp_lt_u32 s{sW}, 4')
    A('s_cbranch_scc1 COMPUTE')
    helper(A)
    A('COMPUTE:')
    p1_compute(A)
    attention(A)
    p3_compute(A)
    A('END:')
    stamp_end(A)
    A('END2:')
    A('s_endpgm')
    A.lines += tail

def helper(A):
    A(f's_sub_u32 s{sW}, s{sW}, 4')
    A('v_lshrrev_b32 v8, 3, v1')
    A('v_lshlrev_b32 v8, 11, v8')
    A('v_lshrrev_b32 v9, 4, v1')
    A('v_and_b32 v10, 7, v1')
    A('v_xor_b32 v10, v10, v9')
    A('v_lshl_add_u32 v16, v10, 4, v8')
    A('v_xor_b32 v10, 4, v10')
    A('v_lshl_add_u32 v17, v10, 4, v8')
    A('v_add_u32 v17, 15360, v17')
    A('v_add_u32 v18, 30720, v16')
    A('v_add_u32 v19, 30720, v17')
    A(f's_lshl_b32 s34, s{sTB}, 18')
    A(f's_lshl_b32 s36, s{sW}, 12')
    A('s_mov_b32 s38, 0')
    A('s_bitcmp1_b32 s2, 0')
    A('s_cbranch_scc1 H_ODD')
    A(f's_and_b32 s29, s{sCB}, 3')
    A('s_lshl_b32 s29, s29, 16')
    A('s_add_u32 s33, s34, s29')
    A(f's_and_b32 s29, s{sW}, 1')
    A('s_lshl_b32 s29, s29, 15')
    A('s_add_u32 s33, s33, s29')
    A(f's_lshr_b32 s29, s{sW}, 1')
    A('s_lshl_b32 s29, s29, 7')
    A('s_add_u32 s33, s33, s29')
    A(f's_lshl_b32 s35, s{sW}, 11')
    A('s_mov_b32 s37, s35')
    A('s_waitcnt lgkmcnt(0)')
    srd(A, SX, 40, 41, 4 << 20)
    A(f's_bitcmp1_b32 s{sCB}, 2')
    A('s_cselect_b32 s44, s50, s44')
    A('s_cselect_b32 s45, s51, s45')
    A('s_cselect_b32 s46, s52, s46')
    A('s_cselect_b32 s47, s53, s47')
    srd(A, SKV, 44, 45, 65536)
    srd(A, SG, 46, 47, 65536)
    lstamp(A, 30, 20)
    A('H_KV:')
    A('s_cmp_lt_u32 s38, 3')
    A('s_cbranch_scc1 H_KV2')
    A('s_waitcnt vmcnt(12)')
    A('s_barrier')
    A('H_KV2:')
    if LST: A('s_add_u32 s49, s38, 48')
    lstamp(A, 31, 's49')
    A('s_lshl_b32 s29, s28, 8')
    A('s_add_u32 s29, s29, s33')
    A('s_mov_b32 m0, s37')
    A('s_lshl_b32 s30, s28, 13')
    for i in range(2):
        A(f'buffer_load_dwordx4 v{16+i}, s[{SX}:{SX+3}], s29 offen offset:{i*1024} lds')
    A('s_add_u32 m0, s37, 8192')
    A('s_add_u32 s30, s30, s35')
    for i in range(2):
        A(f'buffer_load_dwordx4 v2, s[{SKV}:{SKV+3}], s30 offen offset:{i*1024} lds')
    A('s_add_u32 m0, s37, 16384')
    A('s_add_u32 s28, s28, 1')
    for i in range(2):
        A(f'buffer_load_dwordx4 v2, s[{SG}:{SG+3}], s30 offen offset:{i*1024} lds')
    lstamp(A, 30, 's49')
    A('s_and_b32 s28, s28, 7')
    A(f's_add_u32 s37, s37, {SLOT}')
    A(f's_and_b32 s37, s37, {4*SLOT-1:#x}')
    A('s_add_u32 s38, s38, 1')
    A('s_cmp_lt_u32 s38, 8')
    A('s_cbranch_scc1 H_KV')
    A('s_mov_b32 s38, 0')
    A('s_mov_b32 s62, 1')
    A('s_waitcnt vmcnt(12)')
    A('s_barrier')
    A('s_branch H_Q')
    A('H_ODD:')
    A('s_mov_b32 s62, 99')
    A('s_waitcnt lgkmcnt(0)')
    srd(A, SX, 40, 41, 4 << 20)
    A('s_mov_b32 s42, s48')
    A('s_mov_b32 s43, s49')
    A('H_Q:')
    A('s_mov_b32 s37, s36')
    A('v_bfe_u32 v10, v1, 2, 2')
    A('v_xor_b32 v10, v10, v9')
    A('v_lshlrev_b32 v10, 6, v10')
    A('v_lshl_add_u32 v10, v9, 11, v10')
    A('v_and_b32 v8, 3, v1')
    A('v_lshl_add_u32 v20, v8, 4, v10')
    A('v_add_u32 v21, 7168, v20')
    A('v_add_u32 v22, 14336, v20')
    A('v_add_u32 v23, 21504, v20')
    srd(A, SW, 42, 43, 2 << 20)
    A(f's_lshl_b32 s29, s{sW}, 16')
    A('s_add_u32 s34, s34, s29')
    A(f's_and_b32 s35, s{sCB}, 7')
    A('s_lshl_b32 s35, s35, 8')
    A(f's_lshl_b32 s29, s{sW}, 15')
    A('s_add_u32 s35, s35, s29')
    A('H_LOOP:')
    A('s_cmp_ge_u32 s38, 5')
    A('s_cbranch_scc1 H_W16')
    A('s_cmp_lg_u32 s38, s62')
    A('s_cbranch_scc1 H_NX')
    A('s_waitcnt vmcnt(14)')
    A('s_barrier')
    A('s_waitcnt vmcnt(8)')
    A('s_barrier')
    A('H_NX:')
    A('s_bitcmp1_b32 19, s38')
    A('s_cbranch_scc1 H_ISSUE')
    A('s_waitcnt vmcnt(8)')
    A('H_W16:')
    A('s_waitcnt vmcnt(16)')
    lstamp(A, 30, 's38')
    A('s_barrier')
    A('H_ISSUE:')
    lstamp(A, 31, 's38')
    A(f's_lshl_b32 s29, s{sST}, 7')
    A('s_add_u32 s29, s29, s34')
    A('s_mov_b32 m0, s37')
    A(f's_lshl_b32 s30, s{sST}, 17')
    for i in range(4):
        A(f'buffer_load_dwordx4 v{16+i}, s[{SX}:{SX+3}], s29 offen offset:{i*1024} lds')
    A('s_add_u32 m0, s37, 16384')
    A('s_add_u32 s30, s30, s35')
    for i in range(4):
        A(f'buffer_load_dwordx4 v{20+i}, s[{SW}:{SW+3}], s30 offen offset:{i*1024} lds')
    A(f's_add_u32 s{sST}, s{sST}, 1')
    A(f's_and_b32 s{sST}, s{sST}, 15')
    A(f's_add_u32 s37, s37, {SLOT}')
    A(f's_and_b32 s37, s37, {4*SLOT-1:#x}')
    lstamp(A, 32, 's38')
    A('s_add_u32 s38, s38, 1')
    A('s_cmp_lt_u32 s38, 16')
    A('s_cbranch_scc1 H_LOOP')
    A('s_load_dwordx2 s[40:41], s[0:1], 32')
    A('s_load_dwordx2 s[42:43], s[0:1], 72')
    srd(A, SWS, 60, 61, WS_BYTES)
    A(f's_lshr_b32 s32, s{sCB}, 3')
    A('s_lshl_b32 s32, s32, 18')
    A('s_add_u32 s32, s32, s36')
    A('s_lshr_b32 s33, s2, 4')
    A('s_lshl_b32 s33, s33, 14')
    def kv_chunk(c):
        A(f's_add_u32 m0, s36, {L_KVR + ((c+2)&3)*16384}')
        A('s_add_u32 s31, s32, s33')
        for i in range(4):
            A(f'buffer_load_dwordx4 v2, {W}, s31 offen offset:{i*1024} sc1 lds')
        A('s_add_u32 s33, s33, 16384')
        A('s_and_b32 s33, s33, 0x3ffff')
    for n, i in ((16, 16), (8, 17), (8, 18)):
        A(f's_waitcnt vmcnt({n})')
        lstamp(A, 30, i)
        A('s_barrier')
        lstamp(A, 31, i)
        if i == 17:
            kv_chunk(0)
            kv_chunk(1)
    A('v_lshrrev_b32 v8, 3, v1')
    A('v_lshlrev_b32 v8, 11, v8')
    A('v_lshrrev_b32 v10, 2, v1')
    A('v_lshrrev_b32 v12, 4, v1')
    A('v_xor_b32 v10, v10, v12')
    A('v_and_b32 v10, 1, v10')
    A('v_lshl_add_u32 v8, v10, 6, v8')
    A('v_and_b32 v10, 3, v1')
    A('v_lshl_add_u32 v16, v10, 4, v8')
    A('v_add_u32 v17, 15360, v16')
    A('v_add_u32 v18, 30720, v16')
    A('v_add_u32 v19, 46080, v16')
    A(f's_lshl_b32 s34, s{sCB}, 7')
    A(f's_lshl_b32 s29, s{sW}, 16')
    A('s_add_u32 s34, s34, s29')
    A('s_and_b32 s29, s2, 6')
    A(f's_and_b32 s{sST}, s{sCB}, 8')
    A(f's_add_u32 s{sST}, s{sST}, s29')
    A('s_waitcnt lgkmcnt(0)')
    A('s_and_b32 s41, s41, 0xffff')
    A('s_and_b32 s43, s43, 0xffff')
    A(f's_mov_b32 s{SWO+2}, 0x200000')
    A(f's_mov_b32 s{SWO+3}, 0x20000')
    A('v_and_b32 v9, 15, v1')
    A('v_lshlrev_b32 v9, 7, v9')
    A('v_lshlrev_b32 v12, 2, v1')
    A('v_mov_b32 v11, 1')
    A('v_add_u32 v13, s36, v2')
    A('v_add_u32 v14, 0x10000, v13')
    A(f's_lshl_b32 s44, s{sTB}, 11')
    A(f's_add_u32 s44, s44, {WS_FLAG}')
    A(f's_lshl_b32 s45, s{sCB}, 7')
    A('s_add_u32 s45, s45, s44')
    A('s_waitcnt vmcnt(4)')
    lstamp(A, 30, 19)
    A('s_barrier')
    lstamp(A, 31, 19)
    def hold(j, i):
        return v(48+16*j+4*i, 4) if j < 8 else a(16*(j-8)+4*i, 4)
    def wo_stage(n):
        A(f's_cmp_ge_u32 s{sST}, 8')
        A(f's_cselect_b32 s{SWO}, s42, s40')
        A(f's_cselect_b32 s{SWO+1}, s43, s41')
        A(f's_and_b32 s29, s{sST}, 7')
        A('s_lshl_b32 s29, s29, 18')
        if n < 6: A(f's_add_u32 m0, s36, {n*16384}')
        A('s_add_u32 s29, s29, s34')
        for i in range(4):
            if n < 6:
                A(f'buffer_load_dwordx4 v{16+i}, s[{SWO}:{SWO+3}], s29 offen offset:{i*1024} lds')
            else:
                A(f'buffer_load_dwordx4 {hold(n-6,i)}, v{16+i}, s[{SWO}:{SWO+3}], s29 offen offset:{i*1024}')
        A(f's_add_u32 s{sST}, s{sST}, 1')
        A(f's_and_b32 s{sST}, s{sST}, 15')
    V = Cnt(A, 'vmcnt', 63)
    def track(tag, n=4):
        V.q += [tag]*n
    track(('c', 1))
    kv_chunk(2); track(('c', 2))
    kv_chunk(3); track(('c', 3))
    nwo = 0
    for i in range(15):
        V.need(('c', i+1))
        A('s_barrier')
        if i + 4 < 16:
            kv_chunk(i+4); track(('c', i+4))
        for _ in range(2 if i < 4 else 1):
            if nwo < 16:
                wo_stage(nwo); track(('w', nwo)); nwo += 1
    assert nwo == 16
    A('s_waitcnt vmcnt(0)')
    A('s_barrier')
    A(f's_cmp_lg_u32 s{sW}, 0')
    A('s_cbranch_scc1 H_NOFLAG')
    A('s_mov_b32 exec_hi, 0')
    A(f'buffer_store_dword v11, v12, {W}, s45 offen sc1')
    A('s_mov_b32 exec_hi, -1')
    A('H_NOFLAG:')
    for j in range(2):
        for i in range(4):
            A(f'ds_write_b128 v14, {hold(j,i)} offset:{(2+j)*16384+i*1024}')
    A('s_cbranch_scc1 H_NOPOLL2')
    poll(A, 'O', f'buffer_load_dword v10, v9, {W}, s44 offen sc1', 11, opt('slp', 1))
    A('H_NOPOLL2:')
    A('s_barrier')
    lstamp(A, 31, 32)
    for j in range(8):
        A('s_waitcnt lgkmcnt(0)')
        A('s_barrier')
        lstamp(A, 31, 33+j)
        for i in range(4):
            A(f'ds_write_b128 v{13 + j//4}, {hold(j+2,i)} offset:{(j%4)*16384+i*1024}')
    A('s_waitcnt lgkmcnt(0)')
    if LST:
        for j in range(7):
            A('s_barrier')
            lstamp(A, 31, 41+j)
    ldump(A)
    A('s_endpgm')

def kv_adv():
    return ['s_add_u32 s33, s33, 4096', 's_and_b32 s33, s33, 0x3ffff', 's_add_u32 s34, s32, s33']
def kv_loads(b):
    return [f'buffer_load_dwordx4 {a(AK+8*b,4)}, v2, {W}, s34 offen sc1',
            f'buffer_load_dwordx4 {a(AK+8*b+4,4)}, v2, {W}, s34 offen offset:1024 sc1',
            f'buffer_load_dwordx4 {a(AV+8*b,4)}, v2, {W}, s34 offen offset:2048 sc1',
            f'buffer_load_dwordx4 {a(AV+8*b+4,4)}, v2, {W}, s34 offen offset:3072 sc1']
def kvr(st, b):
    return [f'ds_read_b128 {a(AK+8*b,4)}, v0 offset:{st*4096}',
            f'ds_read_b128 {a(AK+8*b+4,4)}, v0 offset:{st*4096+1024}',
            f'ds_read_b128 {a(AV+8*b,4)}, v0 offset:{st*4096+2048}',
            f'ds_read_b128 {a(AV+8*b+4,4)}, v0 offset:{st*4096+3072}']
sel_code = [f'v_mov_b32 v{SEL+3}, 0x3f803f80', f'v_and_b32 v{SEL+2}, 7, v1', f'v_cmp_eq_u32 vcc, 0, v{SEL+2}',
            f'v_cmp_eq_u32 s[46:47], 4, v{SEL+2}', f'v_mov_b32 v{IDX}, 0xdddddddd', 's_nop 0',
            f'v_cndmask_b32 v{SEL}, 0, v{SEL+3}, vcc', f'v_cndmask_b32 v{SEL+1}, 0, v{SEL+3}, vcc',
            f'v_cndmask_b32 v{SEL+2}, 0, v{SEL+3}, s[46:47]', f'v_cndmask_b32 v{SEL+3}, 0, v{SEL+3}, s[46:47]']

def p1_compute(A):
    XA, WA = 3, 7
    KXA, KWA, GA, GB, KST, KAC, VAC, GAC = 144, 146, 147, 148, 149, 152, 156, 160
    A('v_lshlrev_b32 v3, 7, v1')
    A('s_and_b32 s30, s2, 0xfe')
    A(f's_add_u32 s30, s30, s{sW}')
    A('s_lshl_b32 s30, s30, 13')
    A(f's_lshr_b32 s29, s{sW}, 1')
    A('s_andn2_b32 s29, s2, s29')
    A('s_bitcmp1_b32 s29, 0')
    A('s_cselect_b32 s30, s30, 0x40000000')
    if 'nopf' in VAR: A('s_mov_b32 s30, 0x40000000')
    A(f's_lshl_b32 s29, s{sW}, 10')
    A('s_and_b32 s29, s29, 1024')
    A(f's_add_u32 m0, s29, {L_GATE}')
    A('s_waitcnt lgkmcnt(0)')
    srd(A, SG, 54, 55, 2048)
    A(f'buffer_load_dwordx4 v2, s[{SG}:{SG+3}], s29 offen lds')
    if 'cpf' in VAR:
        A('s_getpc_b64 s[62:63]')
        A('CPF_PC:')
        A(f's_lshl_b32 s29, s{sW}, 13')
        A('v_add_u32 v4, s29, v3')
        A('v_min_u32 v4, END2-CPF_PC+3584, v4')
        A('global_load_dword v175, v4, s[62:63] offset:-3584')
    srd(A, SW, 42, 43, 2 << 20)
    srd(A, SWS, 60, 61, WS_BYTES)
    A(f's_lshl_b32 s29, s{sTB}, 4')
    A(f's_add_u32 s29, s29, s{sCB}')
    A('s_lshl_b32 s29, s29, 7')
    A(f's_add_u32 s29, s29, {WS_FLAG}')
    A(f's_cmp_eq_u32 s{sW}, 3')
    A('s_cselect_b32 s29, s29, 0x40000000')
    A('v_lshlrev_b32 v8, 2, v1')
    A('v_mov_b32 v9, 0')
    A('s_mov_b32 exec_hi, 0')
    A(f'buffer_store_dword v9, v8, {W}, s29 offen sc1')
    A('s_mov_b32 exec_hi, -1')
    A(f'buffer_load_dword v0, v3, s[{SW}:{SW+3}], s30 offen')
    A('v_and_b32 v8, 15, v1')
    A(f's_and_b32 s29, s{sW}, 1')
    A('s_lshl_b32 s29, s29, 4')
    A('v_add_u32 v8, s29, v8')
    A('v_lshrrev_b32 v9, 4, v1')
    A('v_bfe_u32 v10, v8, 1, 3')
    A('v_xor_b32 v10, v10, v9')
    A('v_lshlrev_b32 v8, 7, v8')
    A(f'v_lshl_add_u32 v{KXA}, v10, 4, v8')
    A('v_xor_b32 v10, 4, v10')
    A(f'v_lshl_add_u32 v{KXA+1}, v10, 4, v8')
    A('v_bfe_u32 v11, v1, 2, 2')
    A('v_and_b32 v14, 3, v1')
    A('v_lshl_add_u32 v12, v9, 3, v11')
    A('v_lshlrev_b32 v12, 6, v12')
    A('v_lshl_add_u32 v12, v14, 3, v12')
    A(f's_lshr_b32 s29, s{sW}, 1')
    A('s_lshl_b32 s29, s29, 5')
    A(f'v_add_u32 v{KWA}, s29, v12')
    A(f'v_lshlrev_b32 v{GB}, 4, v9')
    A(f'v_add_u32 v{GB}, {L_GATE}, v{GB}')
    A('s_lshl_b32 s29, s28, 8')
    A(f'v_add_u32 v{GA}, s29, v{GB}')
    for r in range(12):
        A(f'v_mov_b32 v{KAC+r}, 0')
    A('v_and_b32 v8, 15, v1')
    A('v_bfe_u32 v9, v1, 4, 1')
    A('v_lshrrev_b32 v10, 5, v1')
    A('v_lshl_add_u32 v12, v9, 5, v8')
    A('v_lshlrev_b32 v12, 4, v12')
    A('v_lshl_add_u32 v12, v10, 3, v12')
    A('v_lshl_add_u32 v13, v10, 5, v8')
    A('v_lshlrev_b32 v13, 4, v13')
    A('v_lshl_add_u32 v13, v9, 3, v13')
    A(f's_and_b32 s29, s{sW}, 1')
    A(f's_lshr_b32 s30, s{sW}, 1')
    A('s_lshl_b32 s31, s29, 8')
    A('s_lshl_b32 s32, s30, 10')
    A('s_add_u32 s31, s31, s32')
    A(f'v_add_u32 v{KST}, s31, v12')
    A('s_lshl_b32 s31, s29, 10')
    A('s_lshl_b32 s32, s30, 8')
    A('s_add_u32 s31, s31, s32')
    A(f'v_add_u32 v{KST+1}, s31, v13')
    A(f'v_lshlrev_b32 v{KST+2}, 2, v1')
    A('v_and_b32 v15, 31, v1')
    A('v_lshrrev_b32 v9, 5, v1')
    A('v_bfe_u32 v10, v1, 1, 3')
    A('v_xor_b32 v10, v10, v9')
    A('v_lshlrev_b32 v15, 7, v15')
    A(f's_and_b32 s29, s{sW}, 1')
    A('s_lshl_b32 s29, s29, 13')
    A('v_add_u32 v15, s29, v15')
    for st in range(4):
        A(f'v_xor_b32 v12, {2*st}, v10')
        A(f'v_lshl_add_u32 v{XA+st}, v12, 4, v15')
    A('v_lshl_add_u32 v12, v9, 3, v11')
    A('v_bfe_u32 v13, v1, 4, 1')
    A('v_lshlrev_b32 v13, 5, v13')
    A('v_lshl_add_u32 v13, v14, 3, v13')
    A(f's_and_b32 s30, s{sW}, 2')
    A('v_xor_b32 v14, s30, v11')
    A(f'v_lshl_add_u32 v{WA}, v14, 6, v13')
    A('v_xor_b32 v14, 1, v14')
    A(f'v_lshl_add_u32 v{WA+1}, v14, 6, v13')
    A('v_lshlrev_b32 v14, 8, v12')
    A(f'v_add_u32 v{WA}, v{WA}, v14')
    A(f'v_add_u32 v{WA+1}, v{WA+1}, v14')
    for r in range(SB, SB+64):
        A(f'v_mov_b32 v{r}, 0')
    for r in range(16):
        A(f'v_accvgpr_write_b32 a{AL+r}, 0')
    for r in range(4):
        A(f'v_accvgpr_write_b32 a{AV+12+r}, 0')
    for l in sel_code: A(l)
    A(f's_bfe_u32 s32, s{sCB}, 0x10002')
    A('s_lshl_b32 s37, s32, 31')
    A('s_lshl_b32 s31, s32, 13')
    A('s_lshl_b32 s32, s32, 18')
    A(f's_lshl_b32 s30, s{sTB}, 2')
    A(f's_and_b32 s29, s{sCB}, 3')
    A('s_add_u32 s30, s30, s29')
    A('s_lshl_b32 s35, s30, 12')
    A('s_add_u32 s35, s35, s32')
    A('s_lshl_b32 s36, s30, 7')
    A('s_add_u32 s36, s36, s31')
    A(f's_and_b32 s31, s{sW}, 1')
    A('s_lshl_b32 s31, s31, 6')
    A('s_add_u32 s36, s36, s31')
    A(f's_add_u32 s36, s36, {WS_G}')
    A(f's_cmp_lt_u32 s{sW}, 2')
    A('s_cselect_b32 s36, s36, 0x40000000')
    A(f's_xor_b32 s37, s37, {f32bits(-LOG2E):#x}')
    A(f's_lshr_b32 s32, s{sCB}, 3')
    A('s_lshl_b32 s32, s32, 18')
    A(f's_mov_b32 s39, {SLOT}')
    A(f's_cmp_eq_u32 s{sW}, 3')
    A(f's_cselect_b32 s45, {(1<<NSIG)|(1<<NPOLL)|(1<<NCHK):#x}, 0')
    A(f's_lshl_b32 s29, s{sTB}, 2')
    A(f's_and_b32 s30, s{sW}, 1')
    A('s_lshl_b32 s30, s30, 1')
    A('s_add_u32 s29, s29, s30')
    A('s_lshl_b32 s48, s29, 7')
    A('s_lshr_b32 s30, s32, 5')
    A('s_add_u32 s48, s48, s30')
    A(f's_add_u32 s48, s48, {WS_G}')
    A('s_lshl_b32 s50, s29, 17')
    A(f's_lshl_b32 s31, s{sCB}, 2')
    A(f's_and_b32 s29, s{sW}, 2')
    A('s_add_u32 s31, s31, s29')
    A('s_lshl_b32 s31, s31, 11')
    A('s_add_u32 s50, s50, s31')
    A(f's_add_u32 s50, s50, {WS_OF}')
    A('s_add_u32 s51, s50, 0x20000')
    A('s_mov_b32 s49, 0')
    A('s_mov_b32 s33, 32768')
    stamp(A, 1)
    def rd_list(st):
        sb = OB + 16*st
        def ra(aa, rho): return (f'ds_read_b64_tr_b16 {v(sb+4*aa+2*rho,2)}, v{WA+aa} offset:{16384+st*4096+rho*1024}', (st, 'A', aa))
        def rb(b): return (f'ds_read_b128 {v(sb+8+4*b,4)}, v{XA+st} offset:{b*4096}', (st, 'B', b))
        return [ra(0,0), ra(0,1), rb(0), rb(1), ra(1,0), ra(1,1)]
    allr = [r for st in range(4) for r in rd_list(st)]
    L = Cnt(A, 'lgkmcnt', 15)
    A('s_mov_b32 s38, 0')
    A('s_waitcnt vmcnt(3)' if 'cpf' in VAR else 's_waitcnt vmcnt(2)')
    A('s_barrier')
    A('s_bitcmp1_b32 s2, 0')
    A('s_cbranch_scc1 P1_Q0')
    FB = 16
    def rd(st):
        fb = FB + 16*st
        for rho in range(2):
            L.issue(f'ds_read_b64_tr_b16 {a(fb+2*rho,2)}, v{KWA} offset:{8192+st*2048+rho*256}', ('k', st))
        L.issue(f'ds_read_b128 {a(fb+8,4)}, v{KXA+(st&1)} offset:{(st>>1)*4096}', ('k', st))
        for rho in range(2):
            L.issue(f'ds_read_b64_tr_b16 {a(fb+4+2*rho,2)}, v{KWA} offset:{16384+st*2048+rho*256}', ('k', st))
        L.issue(f'ds_read_b128 {a(fb+12,4)}, v{GA} offset:{st*64}', ('k', st))
    def mm(st):
        fb = FB + 16*st
        L.need(('k', st))
        A(f'v_mfma_f32_16x16x32_bf16 {v(KAC,4)}, {a(fb,4)}, {a(fb+8,4)}, {v(KAC,4)}')
        A(f'v_mfma_f32_16x16x32_bf16 {v(VAC,4)}, {a(fb+8,4)}, {a(fb+4,4)}, {v(VAC,4)}')
        A(f'v_mfma_f32_16x16x32_bf16 {v(GAC,4)}, {a(fb+12,4)}, {a(fb+8,4)}, {v(GAC,4)}')
    for st in range(2): rd(st)
    A('KV_LOOP:')
    q0 = list(L.q)
    for st in range(2):
        mm(st)
        rd(st + 2)
    A('s_and_b32 s29, s38, 3')
    A('s_cmp_eq_u32 s29, 3')
    A(f's_cselect_b32 s29, {(-3*SLOT) & 0xffffffff:#x}, s39')
    for r in (KXA, KXA+1, KWA):
        A(f'v_add_u32 v{r}, s29, v{r}')
    A('s_add_u32 s28, s28, 1')
    A('s_and_b32 s28, s28, 7')
    A('s_lshl_b32 s29, s28, 8')
    A(f'v_add_u32 v{GA}, s29, v{GB}')
    A('s_add_u32 s38, s38, 1')
    A('s_cmp_lt_u32 s38, 8')
    L.drain()
    A('s_cbranch_scc0 KV_TAIL')
    A('s_barrier')
    for st in range(2, 4):
        rd(st - 2)
        mm(st)
    assert L.q == q0
    A('s_branch KV_LOOP')
    A('KV_TAIL:')
    L.q = []
    mm(2)
    mm(3)
    for r in range(4):
        A(f'v_accvgpr_write_b32 a{AV+12+r}, 0')
    A('s_nop 1')
    A(f's_mov_b32 s31, {f32bits(QK_SCALE):#x}')
    for r in range(4):
        A(f'v_mul_f32 v{KAC+r}, s31, v{KAC+r}')
    A(f'v_mul_f32 v{GAC}, s37, v{GAC}')
    A(f'v_cvt_pk_bf16_f32 v{VAC}, v{VAC}, v{VAC+1}')
    A(f'v_exp_f32 v{GAC}, v{GAC}')
    A(f'v_cvt_pk_bf16_f32 v{VAC+1}, v{VAC+2}, v{VAC+3}')
    A(f'v_add_f32 v{GAC}, 1.0, v{GAC}')
    A(f'v_cvt_pk_bf16_f32 v{KAC}, v{KAC}, v{KAC+1}')
    A(f'v_rcp_f32 v{GAC}, v{GAC}')
    A(f'v_cvt_pk_bf16_f32 v{KAC+1}, v{KAC+2}, v{KAC+3}')
    A(f'buffer_store_dwordx2 {v(VAC,2)}, v{KST+1}, {W}, s35 offen offset:2048 sc1')
    A(f'buffer_store_dwordx2 {v(KAC,2)}, v{KST}, {W}, s35 offen sc1')
    A('s_mov_b64 exec, 0xffff')
    A(f'buffer_store_dword v{GAC}, v{KST+2}, {W}, s36 offen sc1')
    A('s_mov_b64 exec, -1')
    A('s_barrier')
    A('P1_Q0:')
    for r in allr[:15]: A(r[0])
    A('P1_Q:')
    stamp(A, 2)
    def group(st, rds, other=(), nother=2):
        rds = list(rds); other = list(other)
        sb = OB + 16*st
        for aa in range(2):
            for b in range(2):
                acc = SB + 16*(aa*2+b)
                L.need((st, 'A', aa), (st, 'B', b))
                if 'hack16' in VAR:
                    q = acc + 8*(st&1)
                    A(f'v_mfma_f32_16x16x32_bf16 {v(q,4)}, {v(sb+4*aa,4)}, {v(sb+8+4*b,4)}, {v(q,4)}')
                    if rds: L.issue(*rds.pop(0))
                    A(f'v_mfma_f32_16x16x32_bf16 {v(q+4,4)}, {v(sb+8+4*b,4)}, {v(sb+4*aa,4)}, {v(q+4,4)}')
                    if rds: L.issue(*rds.pop(0))
                else:
                  A(f'v_mfma_f32_32x32x16_bf16 {v(acc,16)}, {v(sb+4*aa,4)}, {v(sb+8+4*b,4)}, {v(acc,16)}')
                  for _ in range(2):
                    if rds: L.issue(*rds.pop(0))
                for _ in range(nother):
                    if other: A(other.pop(0))
        assert not rds
        for o in other: A(o)
    L.q = []
    A('s_mov_b32 s38, 0')
    L.q = [r[1] for r in allr[:15]]
    L.issue(*allr[15])
    adr = [f'v_add_u32 v{r}, s29, v{r}' for r in (XA, XA+1, XA+2, XA+3, WA, WA+1)]
    def stage(mode, extra=()):
        L.need(*[r[1] for r in allr[:8]])
        group(0, allr[16:24], ['s_and_b32 s29, s38, 3', 's_cmp_eq_u32 s29, 3', f's_cselect_b32 s29, {(-3*SLOT) & 0xffffffff:#x}, s39',
                               's_add_u32 s38, s38, 1', f's_cmp_eq_u32 s38, {NSIG}' if mode == 'loop' else ''])
        if mode == 'last':
            z = [f'v_mov_b32 v{OB+r}, 0' for r in range(64)]
            L.need(*[r[1] for r in allr[8:16]])
            group(1, [], list(extra) + z[:16], 5)
            L.drain()
            A('s_barrier')
            for r in kvr(0, 0): A(r)
            cv = [[f'v_cvt_pk_bf16_f32 v{QB+8*t+i}, v{SB+16*t+2*i}, v{SB+16*t+2*i+1}' for i in range(8)] for t in range(4)]
            fill = z[16:32] + ['', '', '', ''] + cv[0] + ['', ''] + cv[1] + ['', '']
            for t in range(4):
                aa, b = t >> 1, t & 1
                for st in (2, 3):
                    sb = OB + 16*st
                    A(f'v_mfma_f32_32x32x16_bf16 {v(SB+16*t,16)}, {v(sb+4*aa,4)}, {v(sb+8+4*b,4)}, {v(SB+16*t,16)}')
                    for _ in range(5):
                        if fill: A(fill.pop(0))
            assert not fill
            A('s_waitcnt lgkmcnt(0)')
            A(qk(0, 0, 0))
            for l in cv[2]: A(l)
            A(qk(0, 0, 1))
            for l in z[32:]: A(l)
            for l in cv[3]: A(l)
            for r in range(8):
                A(f'v_mov_b32 v{SB+48+8+r}, 0')
            return
        L.need(*[r[1] for r in allr[8:16]])
        group(1, [], list(extra) + adr, 3)
        if mode == 'loop':
            A('s_cbranch_scc1 Q_PRE')
            A('Q_PRE_RET:')
        L.drain()
        A('s_barrier')
        group(2, allr[0:8], ['', '', '', '', '', '', 's_bitcmp1_b32 s45, s38', 's_cbranch_scc1 Q_POST\nQ_POST_RET:'] if mode == 'loop' else [])
        group(3, allr[8:16])
    A('Q_LOOP:')
    q0 = list(L.q)
    stage('loop')
    assert L.q == q0, (L.q, q0)
    A('s_cmp_lt_u32 s38, 15')
    A('s_cbranch_scc1 Q_LOOP')
    T = A
    A('s_branch Q_LAST')
    T('Q_PRE:')
    T('s_waitcnt vmcnt(0)')
    T('s_branch Q_PRE_RET')
    T('Q_POST:')
    T(f's_cmp_eq_u32 s38, {NPOLL}')
    T('s_cbranch_scc1 Q_POLL')
    T(f's_cmp_eq_u32 s38, {NCHK}')
    T('s_cbranch_scc1 Q_CHECK')
    T('s_and_b32 s30, s2, 1')
    T('s_lshl_b32 s30, s30, 7')
    T('v_mov_b32 v0, s30')
    T('v_mov_b32 v11, 1')
    T('s_mov_b64 exec, 1')
    T(f'global_atomic_add v0, v11, s[{DBG}:{DBG+1}] sc1')
    T('s_mov_b64 exec, -1')
    T('s_branch Q_POST_RET')
    T('Q_POLL:')
    T('v_and_b32 v0, 1, v1')
    T('v_lshlrev_b32 v0, 7, v0')
    T('v_mov_b32 v11, 128')
    T(f'global_load_dword v10, v0, s[{DBG}:{DBG+1}] sc1')
    T('s_branch Q_POST_RET')
    T('Q_CHECK:')
    T('s_waitcnt vmcnt(0)')
    T('v_cmp_lt_u32 vcc, v10, v11')
    T('s_nop 1')
    T('s_cbranch_vccz Q_POST_RET')
    poll(T, 'KV', f'global_load_dword v10, v0, s[{DBG}:{DBG+1}] sc1', 11, 8, 'lt')
    T('s_branch Q_POST_RET')
    A('Q_LAST:')
    stage('last', [f'v_add_u32 v0, {L_KVR+32768}, v2', 'v_and_b32 v10, 31, v1', 'v_lshlrev_b32 v10, 2, v10',
                   f'buffer_load_dword v11, v10, {W}, s48 offen offset:128 sc1', f'buffer_load_dword v10, v10, {W}, s48 offen sc1'])
    stamp(A, 3)

def qk(t, kb, half, sb=None):
    sb = t if sb is None else sb
    c = '0' if half == 0 else v(SB+16*sb, 16)
    return f'v_mfma_f32_32x32x16_bf16 {v(SB+16*sb,16)}, {a(AK+8*kb+4*half,4)}, {v(QB+8*t+4*half,4)}, {c}'
def pv(t, vb, half, sb=None):
    sb = t if sb is None else sb
    return f'v_smfmac_f32_32x32x32_bf16 {v(OB+16*t,16)}, {a(AV+8*vb+4*half,4)}, {v(SB+16*sb+8*half,8)}, v{IDX}'
def sm(t, half, sb=None):
    sb = t if sb is None else sb
    return f'v_smfmac_f32_16x16x64_bf16 {a(AL+4*t,4)}, {v(SEL,4)}, {v(SB+16*sb+8*half,8)}, v{IDX}'
def ex(t, i):
    return f'v_exp_f32 v{SB+16*t+i}, v{SB+16*t+i}'

def slot(A, cur, nxt, prv, x):
    t, kb, sb = cur
    A(qk(nxt[0], nxt[1], 0, nxt[2]) if nxt else '')
    A(x.get(0, ''))
    for e in (0, 1, 2): A(ex(sb, e))
    A(qk(nxt[0], nxt[1], 1, nxt[2]) if nxt else '')
    A(x.get(1, ''))
    for e in (3, 4, 5): A(ex(sb, e))
    A(pv(prv[0], prv[1], 1, prv[2]))
    A(x.get(2, ''))
    for e in (6, 7, 8): A(ex(sb, e))
    A(sm(prv[0], 1, prv[2]))
    A(x.get(3, ''))
    for e in (9, 10): A(ex(sb, e))
    A(pv(t, kb, 0, sb))
    A(x.get(4, ''))
    for e in (11, 12, 13): A(ex(sb, e))
    A(sm(t, 0, sb))
    A(x.get(5, ''))
    for e in (14, 15): A(ex(sb, e))

def tile_out(A, t, check):
    aa, b = t >> 1, t & 1
    o = OB + 16*t
    A(f'v_accvgpr_read_b32 v3, a{AL+4*t}')
    A('v_rcp_f32 v8, v3')
    if check:
        A('v_min_f32 v4, v4, v3')
        A('v_max_f32 v5, v5, v3')
        A('v_fma_f32 v6, v3, 0, v6')
    else:
        A('s_nop 0')
    A(f'v_mul_f32 v8, v8, v{10+b}')
    for h in range(2):
        for r in range(8*h, 8*h+8, 2):
            A(f'v_pk_mul_f32 {v(o+r,2)}, {v(o+r,2)}, v[8:9] op_sel_hi:[1,0]')
        if check:
            for r in range(8*h, 8*h+8, 2):
                A(f'v_pk_fma_f32 v[6:7], {v(o+r,2)}, 0, v[6:7]')
        for r in range(4):
            A(f'v_cvt_pk_bf16_f32 v{o+8*h+r}, v{o+8*h+2*r}, v{o+8*h+2*r+1}')
        A(f'buffer_store_dwordx4 {v(o+8*h,4)}, v2, {W}, s{50+b} offen offset:{aa*2048+h*1024} sc1')

def attention(A):
    A('s_mov_b32 s36, 15')
    A(f'v_add_u32 v3, {L_KVR}, v2')
    A('v_mov_b32 v4, 1.0')
    A('v_mov_b32 v5, 1.0')
    A('v_mov_b32 v6, 0')
    A('v_mov_b32 v7, 0')
    stamp(A, 4)
    A('.p2align 6')
    A('AT_LOOP:')
    for i in range(4):
        for t in range(4):
            nt, nb = (t+1) % 4, ((i if t < 3 else i+1) % 2)
            pt, pb = (t-1) % 4, ((i if t > 0 else i-1) % 2)
            x = {3: kvr((i+1) % 4, (i+1) % 2)[t]}
            if t == 0: x[0] = 's_waitcnt lgkmcnt(0)' + ('\ns_barrier' if i == 3 else '')
            if t == 2 and i == 3: x[1] = 's_sub_u32 s36, s36, 1'
            if t == 1 and i == 2: x[1] = 's_add_u32 s33, s33, 16384'
            if t == 2 and i == 2: x[1] = 's_and_b32 s33, s33, 0xffff'
            if t == 0 and i == 3: x[2] = 'v_add_u32 v0, s33, v3'
            if t == 2: x[5] = 's_waitcnt lgkmcnt(1)'
            if t == 3 and i == 3: x[5] = 's_cmp_lg_u32 s36, 0'
            slot(A, (t, i % 2, t), (nt, nb, nt), (pt, pb, pt), x)
    A('s_cbranch_scc1 AT_LOOP')
    seq = [(t, 0) for t in range(4)] + [(t, st) for t in range(4) for st in (1, 2, 3)]
    seq = [(t, st, n % 4) for n, (t, st) in enumerate(seq)]
    rds = kvr(1, 1) + kvr(2, 2) + kvr(3, 3)
    rds = rds[0:2] + rds[4:6] + rds[2:4] + rds[8:10] + rds[6:8] + rds[10:12]
    for n in range(16):
        x = {}
        if n == 0: x[0] = 's_waitcnt lgkmcnt(0)'
        if n < 3:
            x[3] = rds.pop(0) + '\n' + rds.pop(0)
            x[5] = rds.pop(0) + '\n' + rds.pop(0)
        if n == 2: x[5] += '\ns_waitcnt lgkmcnt(10)'
        if n == 3: x[5] = 's_waitcnt vmcnt(0) lgkmcnt(0)'
        slot(A, seq[n], seq[n+1] if n < 15 else None, seq[n-1] if n else (3, 1, 3), x)
        if n in (7, 10, 13):
            tile_out(A, (n-7)//3, True)
    stamp(A, 5)
    A('s_nop 1')
    A(sm(3, 1, 3))
    A(pv(3, 3, 1, 3))
    A('s_nop 6')
    tile_out(A, 3, True)
    A(f'v_cmp_gt_f32 vcc, {f32bits(2.0**-16):#x}, v4')
    A(f's_mov_b32 s29, {f32bits(2.0**64):#x}')
    A('v_cmp_lt_f32 s[46:47], s29, v5')
    A('v_cmp_u_f32 s[52:53], v6, v7')
    A('s_nop 1')
    A('s_or_b64 s[46:47], s[46:47], vcc')
    A('s_or_b64 s[46:47], s[46:47], s[52:53]')
    if 'forceslow' in VAR:
        A('s_branch AT_SLOW')
    A('s_cbranch_scc1 AT_SLOW')
    A('AT_DONE:')
    S = Asm()
    S('AT_SLOW:')
    S('s_waitcnt vmcnt(0)')
    for t in range(4):
        S(f'v_mov_b32 v{4+t}, 0xff800000')
    S('s_mov_b32 s34, s32')
    S('s_mov_b32 s36, 64')
    S('SL_MAX:')
    for l in kv_loads(0)[:2]: S(l)
    S('s_waitcnt vmcnt(0)')
    for t in range(4):
        S(qk(t, 0, 0)); S(qk(t, 0, 1))
    S('s_nop 15')
    for t in range(4):
        for r in range(0, 16, 2):
            S(f'v_max3_f32 v{4+t}, v{4+t}, v{SB+16*t+r}, v{SB+16*t+r+1}')
    S('s_add_u32 s34, s34, 4096')
    S('s_sub_u32 s36, s36, 1')
    S('s_cmp_lg_u32 s36, 0')
    S('s_cbranch_scc1 SL_MAX')
    for t in range(4):
        S(f'v_mov_b32 v8, v{4+t}')
        S('s_nop 1')
        S(f'v_permlane32_swap_b32 v8, v{4+t}')
        S('s_nop 1')
        S(f'v_max_f32 v{4+t}, v{4+t}, v8')
    for r in range(16):
        S(f'v_accvgpr_write_b32 a{AL+r}, 0')
    for r in range(64):
        S(f'v_mov_b32 v{OB+r}, 0')
    S('s_mov_b32 s34, s32')
    S('s_mov_b32 s36, 64')
    S('SL_ACC:')
    for l in kv_loads(0): S(l)
    S('s_waitcnt vmcnt(0)')
    for t in range(4):
        S(qk(t, 0, 0)); S(qk(t, 0, 1))
    S('s_nop 15')
    for t in range(4):
        for r in range(16):
            S(f'v_sub_f32 v{SB+16*t+r}, v{SB+16*t+r}, v{4+t}')
        for r in range(16):
            S(ex(t, r))
    S('s_nop 3')
    for t in range(4):
        for h in range(2):
            S(pv(t, 0, h)); S(sm(t, h))
    S('s_add_u32 s34, s34, 4096')
    S('s_sub_u32 s36, s36, 1')
    S('s_cmp_lg_u32 s36, 0')
    S('s_cbranch_scc1 SL_ACC')
    S('s_nop 15')
    for t in range(4):
        tile_out(S, t, False)
    S('s_branch AT_DONE')
    tail.extend(S.lines)

def p3_compute(A):
    WB, ACC = 16, 48
    def oreg(slot, st):
        i = 32*slot + 4*st
        return v(80+i, 4) if i < 96 else a(i-96, 4)
    A(f's_lshl_b32 s35, s{sTB}, 2')
    A(f's_add_u32 s35, s35, s{sW}')
    A('s_lshl_b32 s36, s35, 17')
    A(f's_add_u32 s36, s36, {WS_OF}')
    A('s_and_b32 s32, s2, 6')
    A(f's_and_b32 s37, s{sCB}, 8')
    A('s_add_u32 s37, s37, s32')
    A('s_lshl_b32 s37, s37, 13')
    A('v_add_u32 v3, 4096, v2')
    A('v_bfe_u32 v8, v1, 2, 2')
    A('v_lshrrev_b32 v9, 5, v1')
    A('v_lshl_add_u32 v9, v9, 2, v8')
    A('v_lshlrev_b32 v9, 7, v9')
    A('v_bfe_u32 v10, v1, 4, 1')
    A('v_lshl_add_u32 v9, v10, 5, v9')
    A('v_and_b32 v10, 3, v1')
    A('v_lshl_add_u32 v9, v10, 3, v9')
    A('v_lshrrev_b32 v8, 1, v8')
    A('v_lshl_add_u32 v5, v8, 6, v9')
    A('v_xor_b32 v8, 1, v8')
    A('v_lshl_add_u32 v6, v8, 6, v9')
    for r in range(32):
        A(f'v_mov_b32 v{ACC+r}, 0')
    A('s_mov_b32 s38, 0')
    srd(A, SOUT, 56, 57, 4 << 20)
    V = Cnt(A, 'vmcnt', 63)
    L = Cnt(A, 'lgkmcnt', 15)
    LK = opt('lk', 2)
    def oload(slot, st):
        return (f'buffer_load_dwordx4 {oreg(slot,st)}, v{2+st//4}, {W}, s30 offen offset:{(st%4)*1024} sc1', ('O', slot, st))
    adv = ['s_add_u32 s37, s37, 8192', 's_and_b32 s37, s37, 0x1ffff', 's_add_u32 s30, s36, s37']
    A(adv[2])
    def wr(slot, st):
        out = []
        for ct in range(2):
            for rho in range(2):
                out.append((f'ds_read_b64_tr_b16 {v(WB+8*(st%4)+4*ct+2*rho,2)}, v{5+ct} offset:{slot*16384+st*2048+rho*1024}', ('W', st%4, ct)))
        return out
    LA = 2
    A('s_waitcnt vmcnt(0)')
    stamp(A, 6)
    A('s_barrier')
    for st in range(LA):
        for r in wr(0, st): L.issue(*r)
    A('s_barrier')
    stamp(A, 7)
    for sl in range(LK):
        for st in range(8): V.issue(*oload(sl, st))
        for x in adv: A(x)
    A('P3_LOOP:')
    q0, v0 = list(L.q), list(V.q)
    for slot in range(4):
        for st in range(8):
            nst = st + LA
            if nst == 8:
                L.drain()
                A('s_barrier')
                if slot == 3:
                    A('v_xor_b32 v5, 0x10000, v5')
                    A('v_xor_b32 v6, 0x10000, v6')
            rds = wr(slot, nst) if nst < 8 else wr((slot+1) % 4, nst-8)
            for ct in range(2):
                L.need(('W', st%4, ct))
                V.need(('O', slot, st))
                if 'hack16' in VAR:
                    q = ACC+16*ct+8*(st&1)
                    A(f'v_mfma_f32_16x16x32_bf16 {v(q,4)}, {v(WB+8*(st%4)+4*ct,4)}, {oreg(slot,st)}, {v(q,4)}')
                    L.issue(*rds[2*ct])
                    A(f'v_mfma_f32_16x16x32_bf16 {v(q+4,4)}, {oreg(slot,st)}, {v(WB+8*(st%4)+4*ct,4)}, {v(q+4,4)}')
                    L.issue(*rds[2*ct+1])
                else:
                    A(f'v_mfma_f32_32x32x16_bf16 {v(ACC+16*ct,16)}, {v(WB+8*(st%4)+4*ct,4)}, {oreg(slot,st)}, {v(ACC+16*ct,16)}')
                    L.issue(*rds[2*ct]); L.issue(*rds[2*ct+1])
                if ct == 0:
                    if slot == 4-LK and st == 0:
                        A('s_cmp_eq_u32 s38, 3')
                        A(f's_cselect_b32 s{SWS+2}, 0, s{SWS+2}')
                    V.issue(*oload((slot+LK) % 4, st))
                elif st == 7:
                    for x in adv: A(x)
    A('s_add_u32 s38, s38, 1')
    A('s_cmp_lt_u32 s38, 4')
    assert L.q == q0, (L.q, q0)
    assert V.q == v0, (V.q, v0)
    A('s_cbranch_scc1 P3_LOOP')
    stamp(A, 8)
    A('v_and_b32 v8, 31, v1')
    A('v_lshlrev_b32 v8, 11, v8')
    A('v_lshrrev_b32 v9, 5, v1')
    A('v_lshl_add_u32 v8, v9, 4, v8')
    A('s_lshl_b32 s29, s35, 16')
    A(f's_lshl_b32 s30, s{sCB}, 7')
    A('s_add_u32 s29, s29, s30')
    A('s_nop 6')
    D = 80
    A('s_waitcnt vmcnt(0)')
    for ct in range(2):
        for g in range(4):
            b = ACC+16*ct+4*g
            d = D+8*ct+2*g
            A(f'v_cvt_pk_bf16_f32 v{d}, v{b}, v{b+1}')
            A(f'v_cvt_pk_bf16_f32 v{d+1}, v{b+2}, v{b+3}')
    A('s_nop 1')
    for j in range(4):
        d = D+4*j
        A(f'v_permlane32_swap_b32 v{d}, v{d+2}')
        A(f'v_permlane32_swap_b32 v{d+1}, v{d+3}')
        A(f'buffer_store_dwordx4 {v(d,4)}, v8, s[{SOUT}:{SOUT+3}], s29 offen offset:{j*32}' + (' sc1' if 'outsc1' in VAR else '') + (' nt' if 'outnt' in VAR else ''))

def build():
    ref = open(f'cdna_kernels/{NAME}.s.ref').read().split('\n')
    head = [l for l in ref if l.startswith(';') and '@launch' not in l and 'Override' not in l and 'grid=ceil' not in l]
    out = '\n'.join(head) + '\n'
    if 'aslist' in VAR:
        out += f'; @launch kernel={KNAME} grid=(256,1,1) block=(512,1,1) lds={LDS_BYTES}\n'
    else:
        out += f'; @launch grid=(256,1,1) block=(512,1,1) lds={LDS_BYTES}\n'
    out += '.amdgcn_target "amdgcn-amd-amdhsa--gfx950"\n.text\n'
    A = Asm()
    kernel(A)
    out += A.text()
    out += '.section .rodata,"a"\n' + kd(KNAME, 256, NARCH)
    return out

if __name__ == '__main__':
    args = [x for x in sys.argv[1:] if not x.startswith('--')]
    if '--instr' in sys.argv: INSTR = True
    if '--lst' in sys.argv: LST = True
    for x in sys.argv:
        if x.startswith('--var='): VAR = x[6:]
    dst = args[0] if args else f'cdna_kernels/{NAME}.s'
    open(dst, 'w').write(build())
```

```python
import math, sys
from asmlib import *

NAME = 'gated_mix__grouped_kv_mqa__grouped_kv_mqa__prompt'
KNAME = NAME + '_kernel'
WS_KV = 0
WS_G = 512 << 10
WS_FLAG = 576 << 10
WS_OF = 1 << 20
WS_BYTES = 9 << 20
QK_SCALE = math.log2(math.e) / math.sqrt(32.0)
LOG2E = math.log2(math.e)
INSTR = False
LST = False
VAR = ''
WS_DBG = 32 << 20
WS_DBG2 = 40 << 20

SLOT = 32768
L_GATE = 4 * SLOT
LDS_BYTES = 163840
L_KVR = 98304

SX, SW, SKV, SWS, SG = 4, 8, 12, 16, 20
SWO, SOUT = 8, 12
sW, sTB, sCB, sST = 24, 25, 26, 27
W = f's[{SWS}:{SWS+3}]'
DBG = 58
NARCH = 176
SB, OB = 16, 80
AL, AK, AV = 0, 16, 48
QB = 144
IDX, SEL = 9, 12
NSIG, NPOLL, NCHK = 2, 11, 13

def opt(name, default):
    for tok in VAR.split('_'):
        if tok.startswith(name) and tok[len(name):].isdigit():
            return int(tok[len(name):])
    return default

def srd(A, d, lo, hi, nbytes):
    A(f's_mov_b32 s{d}, s{lo}')
    A(f's_and_b32 s{d+1}, s{hi}, 0xffff')
    A(f's_mov_b32 s{d+2}, {nbytes:#x}')
    A(f's_mov_b32 s{d+3}, 0x20000')

def stamp(A, i):
    if INSTR:
        A(f's_mem{"time" if "allcyc" in VAR else "realtime"} s[{64+2*i}:{65+2*i}]')
NST = 10
def stamp_end(A):
    if not INSTR: return
    A('s_waitcnt vmcnt(0) lgkmcnt(0)')
    stamp(A, NST-1)
    A('s_getreg_b32 s62, hwreg(HW_REG_XCC_ID)')
    A('s_waitcnt lgkmcnt(0)')
    A('s_mov_b64 exec, 1')
    A('s_lshl_b32 s63, s2, 2')
    A(f's_add_u32 s63, s63, s{sW}')
    A('s_lshl_b32 s63, s63, 6')
    A(f's_add_u32 s63, s63, {WS_DBG}')
    A('v_mov_b32 v0, s63')
    for i in range(NST):
        A(f'v_mov_b32 v1, s{64+2*i}')
        A(f'global_store_dword v0, v1, s[60:61] offset:{4*i}')
    A('v_mov_b32 v1, s62')
    A(f'global_store_dword v0, v1, s[60:61] offset:{4*NST}')
    A('s_waitcnt vmcnt(0)')
def lstamp(A, vreg, idx):
    if not LST: return
    A('s_memtime s[64:65]' if ('cyc' in VAR and vreg == 32) else 's_memrealtime s[64:65]')
    A('s_waitcnt lgkmcnt(0)')
    if isinstance(idx, str):
        A(f's_mov_b32 m0, {idx}')
        A(f'v_writelane_b32 v{vreg}, s64, m0')
    else:
        A(f'v_writelane_b32 v{vreg}, s64, {idx}')
def ldump(A):
    if not LST: return
    A('s_lshl_b32 s80, s2, 2')
    A(f's_add_u32 s80, s80, s{sW}')
    A('s_lshl_b32 s80, s80, 10')
    A(f's_add_u32 s80, s80, {WS_DBG2}')
    A('v_lshlrev_b32 v0, 2, v1')
    A('v_add_u32 v0, s80, v0')
    A('global_store_dword v0, v30, s[60:61]')
    A('global_store_dword v0, v31, s[60:61] offset:256')
    A('global_store_dword v0, v32, s[60:61] offset:512')
    A('s_waitcnt vmcnt(0)')

def poll(A, tag, load, vwant, sleep, cmp='ne'):
    A('s_mov_b32 s30, 0x40000')
    A(f'POLL_{tag}:')
    A(load)
    A('s_waitcnt vmcnt(0)')
    A(f'v_cmp_{cmp}_u32 vcc, v10, v{vwant}')
    A('s_sub_u32 s30, s30, 1')
    A(f's_cbranch_scc1 POLLD_{tag}')
    A(f's_cbranch_vccz POLLD_{tag}')
    A(f's_sleep {sleep}')
    A(f's_branch POLL_{tag}')
    A(f'POLLD_{tag}:')

tail = []

def kernel(A):
    A(f'.globl {KNAME}\n.p2align 8\n.type {KNAME},@function\n{KNAME}:')
    A('s_cmp_ge_u32 s2, 256')
    A('s_cbranch_scc1 END2')
    stamp(A, 0)
    if 'flip' in VAR: A('s_xor_b32 s2, s2, 1')
    A('s_load_dwordx4 s[40:43], s[0:1], 0')
    A('s_load_dwordx4 s[44:47], s[0:1], 16')
    A('s_load_dwordx4 s[48:51], s[0:1], 48')
    A('s_load_dwordx2 s[52:53], s[0:1], 64')
    A('s_load_dwordx2 s[54:55], s[0:1], 80')
    A('s_load_dwordx4 s[56:59], s[0:1], 88')
    A('s_load_dwordx2 s[60:61], s[0:1], 104')
    A('v_lshrrev_b32 v8, 6, v0')
    A('v_and_b32 v1, 63, v0')
    A(f'v_readfirstlane_b32 s{sW}, v8')
    A('s_and_b32 s29, s2, 1')
    A('s_lshl_b32 s29, s29, 3')
    A('s_bfe_u32 s30, s2, 0x30003')
    A(f's_add_u32 s{sCB}, s29, s30')
    A('s_bfe_u32 s28, s2, 0x20001')
    A('s_lshl_b32 s31, s28, 2')
    A('s_lshr_b32 s32, s2, 6')
    A(f's_add_u32 s{sTB}, s31, s32')
    A('s_lshl_b32 s29, s32, 1')
    A('s_add_u32 s28, s28, s29')
    A('s_and_b32 s29, s30, 4')
    A('s_add_u32 s28, s28, s29')
    A('s_and_b32 s28, s28, 7')
    A(f's_and_b32 s{sST}, s2, 7')
    A(f's_lshl_b32 s{sST}, s{sST}, 1')
    A('v_lshlrev_b32 v2, 4, v1')
    A(f's_cmp_lt_u32 s{sW}, 4')
    A('s_cbranch_scc1 COMPUTE')
    helper(A)
    A('COMPUTE:')
    p1_compute(A)
    attention(A)
    p3_compute(A)
    A('END:')
    stamp_end(A)
    A('END2:')
    A('s_endpgm')
    if 'ct' in VAR.split('_'):
        A('STUB3:')
        A('s_branch STUB_RET')
    A.lines += tail

def helper(A):
    A(f's_sub_u32 s{sW}, s{sW}, 4')
    A('v_lshrrev_b32 v8, 3, v1')
    A('v_lshlrev_b32 v8, 11, v8')
    A('v_lshrrev_b32 v9, 4, v1')
    A('v_and_b32 v10, 7, v1')
    A('v_xor_b32 v10, v10, v9')
    A('v_lshl_add_u32 v16, v10, 4, v8')
    A('v_xor_b32 v10, 4, v10')
    A('v_lshl_add_u32 v17, v10, 4, v8')
    A('v_add_u32 v17, 15360, v17')
    A('v_add_u32 v18, 30720, v16')
    A('v_add_u32 v19, 30720, v17')
    A(f's_lshl_b32 s34, s{sTB}, 18')
    A(f's_lshl_b32 s36, s{sW}, 12')
    A('s_mov_b32 s38, 0')
    A('s_bitcmp1_b32 s2, 0')
    A('s_cbranch_scc1 H_ODD')
    A(f's_and_b32 s29, s{sCB}, 3')
    A('s_lshl_b32 s29, s29, 16')
    A('s_add_u32 s33, s34, s29')
    A(f's_and_b32 s29, s{sW}, 1')
    A('s_lshl_b32 s29, s29, 15')
    A('s_add_u32 s33, s33, s29')
    A(f's_lshr_b32 s29, s{sW}, 1')
    A('s_lshl_b32 s29, s29, 7')
    A('s_add_u32 s33, s33, s29')
    A(f's_lshl_b32 s35, s{sW}, 11')
    A('s_mov_b32 s37, s35')
    A('s_waitcnt lgkmcnt(0)')
    srd(A, SX, 40, 41, 4 << 20)
    A(f's_bitcmp1_b32 s{sCB}, 2')
    A('s_cselect_b32 s44, s50, s44')
    A('s_cselect_b32 s45, s51, s45')
    A('s_cselect_b32 s46, s52, s46')
    A('s_cselect_b32 s47, s53, s47')
    srd(A, SKV, 44, 45, 65536)
    srd(A, SG, 46, 47, 65536)
    lstamp(A, 30, 20)
    A('H_KV:')
    A('s_cmp_lt_u32 s38, 3')
    A('s_cbranch_scc1 H_KV2')
    A('s_waitcnt vmcnt(12)')
    A('s_barrier')
    A('H_KV2:')
    if LST: A('s_add_u32 s49, s38, 48')
    lstamp(A, 31, 's49')
    A('s_lshl_b32 s29, s28, 8')
    A('s_add_u32 s29, s29, s33')
    A('s_mov_b32 m0, s37')
    A('s_lshl_b32 s30, s28, 13')
    for i in range(2):
        A(f'buffer_load_dwordx4 v{16+i}, s[{SX}:{SX+3}], s29 offen offset:{i*1024} lds')
    A('s_add_u32 m0, s37, 8192')
    A('s_add_u32 s30, s30, s35')
    for i in range(2):
        A(f'buffer_load_dwordx4 v2, s[{SKV}:{SKV+3}], s30 offen offset:{i*1024} lds')
    A('s_add_u32 m0, s37, 16384')
    A('s_add_u32 s28, s28, 1')
    for i in range(2):
        A(f'buffer_load_dwordx4 v2, s[{SG}:{SG+3}], s30 offen offset:{i*1024} lds')
    lstamp(A, 30, 's49')
    A('s_and_b32 s28, s28, 7')
    A(f's_add_u32 s37, s37, {SLOT}')
    A(f's_and_b32 s37, s37, {4*SLOT-1:#x}')
    A('s_add_u32 s38, s38, 1')
    A('s_cmp_lt_u32 s38, 8')
    A('s_cbranch_scc1 H_KV')
    A('s_mov_b32 s38, 0')
    A('s_mov_b32 s62, 1')
    A('s_waitcnt vmcnt(12)')
    A('s_barrier')
    A('s_branch H_Q')
    A('H_ODD:')
    A('s_mov_b32 s62, 99')
    A('s_waitcnt lgkmcnt(0)')
    srd(A, SX, 40, 41, 4 << 20)
    A('s_mov_b32 s42, s48')
    A('s_mov_b32 s43, s49')
    A('H_Q:')
    A('s_mov_b32 s37, s36')
    A('v_bfe_u32 v10, v1, 2, 2')
    A('v_xor_b32 v10, v10, v9')
    A('v_lshlrev_b32 v10, 6, v10')
    A('v_lshl_add_u32 v10, v9, 11, v10')
    A('v_and_b32 v8, 3, v1')
    A('v_lshl_add_u32 v20, v8, 4, v10')
    A('v_add_u32 v21, 7168, v20')
    A('v_add_u32 v22, 14336, v20')
    A('v_add_u32 v23, 21504, v20')
    srd(A, SW, 42, 43, 2 << 20)
    A(f's_lshl_b32 s29, s{sW}, 16')
    A('s_add_u32 s34, s34, s29')
    A(f's_and_b32 s35, s{sCB}, 7')
    A('s_lshl_b32 s35, s35, 8')
    A(f's_lshl_b32 s29, s{sW}, 15')
    A('s_add_u32 s35, s35, s29')
    A('H_LOOP:')
    A('s_cmp_ge_u32 s38, 5')
    A('s_cbranch_scc1 H_W16')
    A('s_cmp_lg_u32 s38, s62')
    A('s_cbranch_scc1 H_NX')
    A('s_waitcnt vmcnt(14)')
    A('s_barrier')
    A('s_waitcnt vmcnt(8)')
    A('s_barrier')
    A('H_NX:')
    A('s_bitcmp1_b32 19, s38')
    A('s_cbranch_scc1 H_ISSUE')
    A('s_waitcnt vmcnt(8)')
    A('H_W16:')
    A('s_waitcnt vmcnt(16)')
    lstamp(A, 30, 's38')
    A('s_barrier')
    A('H_ISSUE:')
    lstamp(A, 31, 's38')
    A(f's_lshl_b32 s29, s{sST}, 7')
    A('s_add_u32 s29, s29, s34')
    A('s_mov_b32 m0, s37')
    A(f's_lshl_b32 s30, s{sST}, 17')
    for i in range(4):
        A(f'buffer_load_dwordx4 v{16+i}, s[{SX}:{SX+3}], s29 offen offset:{i*1024} lds')
    A('s_add_u32 m0, s37, 16384')
    A('s_add_u32 s30, s30, s35')
    for i in range(4):
        A(f'buffer_load_dwordx4 v{20+i}, s[{SW}:{SW+3}], s30 offen offset:{i*1024} lds')
    A(f's_add_u32 s{sST}, s{sST}, 1')
    A(f's_and_b32 s{sST}, s{sST}, 15')
    A(f's_add_u32 s37, s37, {SLOT}')
    A(f's_and_b32 s37, s37, {4*SLOT-1:#x}')
    lstamp(A, 32, 's38')
    A('s_add_u32 s38, s38, 1')
    A('s_cmp_lt_u32 s38, 16')
    A('s_cbranch_scc1 H_LOOP')
    A('s_load_dwordx2 s[40:41], s[0:1], 32')
    A('s_load_dwordx2 s[42:43], s[0:1], 72')
    srd(A, SWS, 60, 61, WS_BYTES)
    A(f's_lshr_b32 s32, s{sCB}, 3')
    A('s_lshl_b32 s32, s32, 18')
    A('s_add_u32 s32, s32, s36')
    A('s_lshr_b32 s33, s2, 4')
    A('s_lshl_b32 s33, s33, 14')
    def kv_chunk(c):
        A(f's_add_u32 m0, s36, {L_KVR + ((c+2)&3)*16384}')
        A('s_add_u32 s31, s32, s33')
        for i in range(4):
            A(f'buffer_load_dwordx4 v2, {W}, s31 offen offset:{i*1024} sc1 lds')
        A('s_add_u32 s33, s33, 16384')
        A('s_and_b32 s33, s33, 0x3ffff')
    for n, i in ((16, 16), (8, 17), (8, 18)):
        A(f's_waitcnt vmcnt({n})')
        lstamp(A, 30, i)
        A('s_barrier')
        lstamp(A, 31, i)
        if i == 17:
            kv_chunk(0)
            kv_chunk(1)
    A('v_lshrrev_b32 v8, 3, v1')
    A('v_lshlrev_b32 v8, 11, v8')
    A('v_lshrrev_b32 v10, 2, v1')
    A('v_lshrrev_b32 v12, 4, v1')
    A('v_xor_b32 v10, v10, v12')
    A('v_and_b32 v10, 1, v10')
    A('v_lshl_add_u32 v8, v10, 6, v8')
    A('v_and_b32 v10, 3, v1')
    A('v_lshl_add_u32 v16, v10, 4, v8')
    A('v_add_u32 v17, 15360, v16')
    A('v_add_u32 v18, 30720, v16')
    A('v_add_u32 v19, 46080, v16')
    A(f's_lshl_b32 s34, s{sCB}, 7')
    A(f's_lshl_b32 s29, s{sW}, 16')
    A('s_add_u32 s34, s34, s29')
    A('s_and_b32 s29, s2, 6')
    A(f's_and_b32 s{sST}, s{sCB}, 8')
    A(f's_add_u32 s{sST}, s{sST}, s29')
    A('s_waitcnt lgkmcnt(0)')
    A('s_and_b32 s41, s41, 0xffff')
    A('s_and_b32 s43, s43, 0xffff')
    A(f's_mov_b32 s{SWO+2}, 0x200000')
    A(f's_mov_b32 s{SWO+3}, 0x20000')
    A('v_and_b32 v9, 15, v1')
    A('v_lshlrev_b32 v9, 7, v9')
    A('v_lshlrev_b32 v12, 2, v1')
    A('v_mov_b32 v11, 1')
    A('v_add_u32 v13, s36, v2')
    A('v_add_u32 v14, 0x10000, v13')
    A(f's_lshl_b32 s44, s{sTB}, 11')
    A(f's_add_u32 s44, s44, {WS_FLAG}')
    A(f's_lshl_b32 s45, s{sCB}, 7')
    A('s_add_u32 s45, s45, s44')
    A('s_waitcnt vmcnt(4)')
    lstamp(A, 30, 19)
    A('s_barrier')
    lstamp(A, 31, 19)
    def hold(j, i):
        return v(48+16*j+4*i, 4) if j < 8 else a(16*(j-8)+4*i, 4)
    def wo_stage(n):
        A(f's_cmp_ge_u32 s{sST}, 8')
        A(f's_cselect_b32 s{SWO}, s42, s40')
        A(f's_cselect_b32 s{SWO+1}, s43, s41')
        A(f's_and_b32 s29, s{sST}, 7')
        A('s_lshl_b32 s29, s29, 18')
        if n < 6: A(f's_add_u32 m0, s36, {n*16384}')
        A('s_add_u32 s29, s29, s34')
        for i in range(4):
            if n < 6:
                A(f'buffer_load_dwordx4 v{16+i}, s[{SWO}:{SWO+3}], s29 offen offset:{i*1024} lds')
            else:
                A(f'buffer_load_dwordx4 {hold(n-6,i)}, v{16+i}, s[{SWO}:{SWO+3}], s29 offen offset:{i*1024}')
        A(f's_add_u32 s{sST}, s{sST}, 1')
        A(f's_and_b32 s{sST}, s{sST}, 15')
    V = Cnt(A, 'vmcnt', 63)
    def track(tag, n=4):
        V.q += [tag]*n
    track(('c', 1))
    kv_chunk(2); track(('c', 2))
    kv_chunk(3); track(('c', 3))
    nwo = 0
    for i in range(15):
        V.need(('c', i+1))
        A('s_barrier')
        if i + 4 < 16:
            kv_chunk(i+4); track(('c', i+4))
        for _ in range(2 if i < 4 else 1):
            if nwo < 16:
                wo_stage(nwo); track(('w', nwo)); nwo += 1
    assert nwo == 16
    if 'dt' in VAR.split('_'):
        srd(A, SOUT, 56, 57, 4 << 20)
        A(f's_lshl_b32 s29, s{sTB}, 2')
        A(f's_add_u32 s29, s29, s{sW}')
        A('s_lshl_b32 s30, s29, 17')
        A(f's_add_u32 s30, s30, {WS_OF}')
        A('s_lshl_b32 s29, s29, 16')
        A('v_mov_b32 v20, 0')
        A('s_mov_b64 exec, 1')
        A(f'buffer_load_dword v21, v20, {W}, s30 offen sc1')
        A(f'buffer_load_dword v22, v20, s[{SOUT}:{SOUT+3}], s29 offen sc1')
        A('s_mov_b64 exec, -1')
    A('s_waitcnt vmcnt(0)')
    A('s_barrier')
    A(f's_cmp_lg_u32 s{sW}, 0')
    A('s_cbranch_scc1 H_NOFLAG')
    A('s_mov_b32 exec_hi, 0')
    A(f'buffer_store_dword v11, v12, {W}, s45 offen sc1')
    A('s_mov_b32 exec_hi, -1')
    A('H_NOFLAG:')
    for j in range(2):
        for i in range(4):
            A(f'ds_write_b128 v14, {hold(j,i)} offset:{(2+j)*16384+i*1024}')
    A('s_cbranch_scc1 H_NOPOLL2')
    poll(A, 'O', f'buffer_load_dword v10, v9, {W}, s44 offen sc1', 11, opt('slp', 1))
    A('H_NOPOLL2:')
    A('s_barrier')
    lstamp(A, 31, 32)
    for j in range(8):
        A('s_waitcnt lgkmcnt(0)')
        A('s_barrier')
        lstamp(A, 31, 33+j)
        for i in range(4):
            A(f'ds_write_b128 v{13 + j//4}, {hold(j+2,i)} offset:{(j%4)*16384+i*1024}')
    A('s_waitcnt lgkmcnt(0)')
    if LST:
        for j in range(7):
            A('s_barrier')
            lstamp(A, 31, 41+j)
    ldump(A)
    A('s_endpgm')

def kv_adv():
    return ['s_add_u32 s33, s33, 4096', 's_and_b32 s33, s33, 0x3ffff', 's_add_u32 s34, s32, s33']
def kv_loads(b):
    return [f'buffer_load_dwordx4 {a(AK+8*b,4)}, v2, {W}, s34 offen sc1',
            f'buffer_load_dwordx4 {a(AK+8*b+4,4)}, v2, {W}, s34 offen offset:1024 sc1',
            f'buffer_load_dwordx4 {a(AV+8*b,4)}, v2, {W}, s34 offen offset:2048 sc1',
            f'buffer_load_dwordx4 {a(AV+8*b+4,4)}, v2, {W}, s34 offen offset:3072 sc1']
def kvr(st, b):
    return [f'ds_read_b128 {a(AK+8*b,4)}, v0 offset:{st*4096}',
            f'ds_read_b128 {a(AK+8*b+4,4)}, v0 offset:{st*4096+1024}',
            f'ds_read_b128 {a(AV+8*b,4)}, v0 offset:{st*4096+2048}',
            f'ds_read_b128 {a(AV+8*b+4,4)}, v0 offset:{st*4096+3072}']
sel_code = [f'v_mov_b32 v{SEL+3}, 0x3f803f80', f'v_and_b32 v{SEL+2}, 7, v1', f'v_cmp_eq_u32 vcc, 0, v{SEL+2}',
            f'v_cmp_eq_u32 s[46:47], 4, v{SEL+2}', f'v_mov_b32 v{IDX}, 0xdddddddd', 's_nop 0',
            f'v_cndmask_b32 v{SEL}, 0, v{SEL+3}, vcc', f'v_cndmask_b32 v{SEL+1}, 0, v{SEL+3}, vcc',
            f'v_cndmask_b32 v{SEL+2}, 0, v{SEL+3}, s[46:47]', f'v_cndmask_b32 v{SEL+3}, 0, v{SEL+3}, s[46:47]']

def p1_compute(A):
    if 'ct' in VAR.split('_'):
        A(f's_cmp_eq_u32 s{sW}, 1')
        A('s_cbranch_scc1 STUB1')
        A(f's_cmp_eq_u32 s{sW}, 2')
        A('s_cbranch_scc1 STUB2')
        A(f's_cmp_eq_u32 s{sW}, 3')
        A('s_cbranch_scc1 STUB3')
        A('STUB_RET:')
    XA, WA = 3, 7
    KXA, KWA, GA, GB, KST, KAC, VAC, GAC = 144, 146, 147, 148, 149, 152, 156, 160
    A('v_lshlrev_b32 v3, 7, v1')
    A('s_and_b32 s30, s2, 0xfe')
    A(f's_add_u32 s30, s30, s{sW}')
    A('s_lshl_b32 s30, s30, 13')
    A(f's_lshr_b32 s29, s{sW}, 1')
    A('s_andn2_b32 s29, s2, s29')
    A('s_bitcmp1_b32 s29, 0')
    A('s_cselect_b32 s30, s30, 0x40000000')
    if 'nopf' in VAR: A('s_mov_b32 s30, 0x40000000')
    A(f's_lshl_b32 s29, s{sW}, 10')
    A('s_and_b32 s29, s29, 1024')
    A(f's_add_u32 m0, s29, {L_GATE}')
    A('s_waitcnt lgkmcnt(0)')
    srd(A, SG, 54, 55, 2048)
    A(f'buffer_load_dwordx4 v2, s[{SG}:{SG+3}], s29 offen lds')
    if 'cpf' in VAR:
        A('s_getpc_b64 s[62:63]')
        A('CPF_PC:')
        A(f's_lshl_b32 s29, s{sW}, 13')
        A('v_add_u32 v4, s29, v3')
        A('v_min_u32 v4, END2-CPF_PC+3584, v4')
        A('global_load_dword v175, v4, s[62:63] offset:-3584')
    srd(A, SW, 42, 43, 2 << 20)
    srd(A, SWS, 60, 61, WS_BYTES)
    A(f's_lshl_b32 s29, s{sTB}, 4')
    A(f's_add_u32 s29, s29, s{sCB}')
    A('s_lshl_b32 s29, s29, 7')
    A(f's_add_u32 s29, s29, {WS_FLAG}')
    A(f's_cmp_eq_u32 s{sW}, 3')
    A('s_cselect_b32 s29, s29, 0x40000000')
    A('v_lshlrev_b32 v8, 2, v1')
    A('v_mov_b32 v9, 0')
    A('s_mov_b32 exec_hi, 0')
    A(f'buffer_store_dword v9, v8, {W}, s29 offen sc1')
    A('s_mov_b32 exec_hi, -1')
    A(f'buffer_load_dword v0, v3, s[{SW}:{SW+3}], s30 offen')
    A('v_and_b32 v8, 15, v1')
    A(f's_and_b32 s29, s{sW}, 1')
    A('s_lshl_b32 s29, s29, 4')
    A('v_add_u32 v8, s29, v8')
    A('v_lshrrev_b32 v9, 4, v1')
    A('v_bfe_u32 v10, v8, 1, 3')
    A('v_xor_b32 v10, v10, v9')
    A('v_lshlrev_b32 v8, 7, v8')
    A(f'v_lshl_add_u32 v{KXA}, v10, 4, v8')
    A('v_xor_b32 v10, 4, v10')
    A(f'v_lshl_add_u32 v{KXA+1}, v10, 4, v8')
    A('v_bfe_u32 v11, v1, 2, 2')
    A('v_and_b32 v14, 3, v1')
    A('v_lshl_add_u32 v12, v9, 3, v11')
    A('v_lshlrev_b32 v12, 6, v12')
    A('v_lshl_add_u32 v12, v14, 3, v12')
    A(f's_lshr_b32 s29, s{sW}, 1')
    A('s_lshl_b32 s29, s29, 5')
    A(f'v_add_u32 v{KWA}, s29, v12')
    A(f'v_lshlrev_b32 v{GB}, 4, v9')
    A(f'v_add_u32 v{GB}, {L_GATE}, v{GB}')
    A('s_lshl_b32 s29, s28, 8')
    A(f'v_add_u32 v{GA}, s29, v{GB}')
    for r in range(12):
        A(f'v_mov_b32 v{KAC+r}, 0')
    A('v_and_b32 v8, 15, v1')
    A('v_bfe_u32 v9, v1, 4, 1')
    A('v_lshrrev_b32 v10, 5, v1')
    A('v_lshl_add_u32 v12, v9, 5, v8')
    A('v_lshlrev_b32 v12, 4, v12')
    A('v_lshl_add_u32 v12, v10, 3, v12')
    A('v_lshl_add_u32 v13, v10, 5, v8')
    A('v_lshlrev_b32 v13, 4, v13')
    A('v_lshl_add_u32 v13, v9, 3, v13')
    A(f's_and_b32 s29, s{sW}, 1')
    A(f's_lshr_b32 s30, s{sW}, 1')
    A('s_lshl_b32 s31, s29, 8')
    A('s_lshl_b32 s32, s30, 10')
    A('s_add_u32 s31, s31, s32')
    A(f'v_add_u32 v{KST}, s31, v12')
    A('s_lshl_b32 s31, s29, 10')
    A('s_lshl_b32 s32, s30, 8')
    A('s_add_u32 s31, s31, s32')
    A(f'v_add_u32 v{KST+1}, s31, v13')
    A(f'v_lshlrev_b32 v{KST+2}, 2, v1')
    A('v_and_b32 v15, 31, v1')
    A('v_lshrrev_b32 v9, 5, v1')
    A('v_bfe_u32 v10, v1, 1, 3')
    A('v_xor_b32 v10, v10, v9')
    A('v_lshlrev_b32 v15, 7, v15')
    A(f's_and_b32 s29, s{sW}, 1')
    A('s_lshl_b32 s29, s29, 13')
    A('v_add_u32 v15, s29, v15')
    for st in range(4):
        A(f'v_xor_b32 v12, {2*st}, v10')
        A(f'v_lshl_add_u32 v{XA+st}, v12, 4, v15')
    A('v_lshl_add_u32 v12, v9, 3, v11')
    A('v_bfe_u32 v13, v1, 4, 1')
    A('v_lshlrev_b32 v13, 5, v13')
    A('v_lshl_add_u32 v13, v14, 3, v13')
    A(f's_and_b32 s30, s{sW}, 2')
    A('v_xor_b32 v14, s30, v11')
    A(f'v_lshl_add_u32 v{WA}, v14, 6, v13')
    A('v_xor_b32 v14, 1, v14')
    A(f'v_lshl_add_u32 v{WA+1}, v14, 6, v13')
    A('v_lshlrev_b32 v14, 8, v12')
    A(f'v_add_u32 v{WA}, v{WA}, v14')
    A(f'v_add_u32 v{WA+1}, v{WA+1}, v14')
    for r in range(SB, SB+64):
        A(f'v_mov_b32 v{r}, 0')
    for r in range(16):
        A(f'v_accvgpr_write_b32 a{AL+r}, 0')
    for r in range(4):
        A(f'v_accvgpr_write_b32 a{AV+12+r}, 0')
    for l in sel_code: A(l)
    A(f's_bfe_u32 s32, s{sCB}, 0x10002')
    A('s_lshl_b32 s37, s32, 31')
    A('s_lshl_b32 s31, s32, 13')
    A('s_lshl_b32 s32, s32, 18')
    A(f's_lshl_b32 s30, s{sTB}, 2')
    A(f's_and_b32 s29, s{sCB}, 3')
    A('s_add_u32 s30, s30, s29')
    A('s_lshl_b32 s35, s30, 12')
    A('s_add_u32 s35, s35, s32')
    A('s_lshl_b32 s36, s30, 7')
    A('s_add_u32 s36, s36, s31')
    A(f's_and_b32 s31, s{sW}, 1')
    A('s_lshl_b32 s31, s31, 6')
    A('s_add_u32 s36, s36, s31')
    A(f's_add_u32 s36, s36, {WS_G}')
    A(f's_cmp_lt_u32 s{sW}, 2')
    A('s_cselect_b32 s36, s36, 0x40000000')
    A(f's_xor_b32 s37, s37, {f32bits(-LOG2E):#x}')
    A(f's_lshr_b32 s32, s{sCB}, 3')
    A('s_lshl_b32 s32, s32, 18')
    A(f's_mov_b32 s39, {SLOT}')
    A(f's_cmp_eq_u32 s{sW}, 3')
    A(f's_cselect_b32 s45, {(1<<NSIG)|(1<<NPOLL)|(1<<NCHK):#x}, 0')
    A(f's_lshl_b32 s29, s{sTB}, 2')
    A(f's_and_b32 s30, s{sW}, 1')
    A('s_lshl_b32 s30, s30, 1')
    A('s_add_u32 s29, s29, s30')
    A('s_lshl_b32 s48, s29, 7')
    A('s_lshr_b32 s30, s32, 5')
    A('s_add_u32 s48, s48, s30')
    A(f's_add_u32 s48, s48, {WS_G}')
    A('s_lshl_b32 s50, s29, 17')
    A(f's_lshl_b32 s31, s{sCB}, 2')
    A(f's_and_b32 s29, s{sW}, 2')
    A('s_add_u32 s31, s31, s29')
    A('s_lshl_b32 s31, s31, 11')
    A('s_add_u32 s50, s50, s31')
    A(f's_add_u32 s50, s50, {WS_OF}')
    A('s_add_u32 s51, s50, 0x20000')
    A('s_mov_b32 s49, 0')
    A('s_mov_b32 s33, 32768')
    stamp(A, 1)
    def rd_list(st):
        sb = OB + 16*st
        def ra(aa, rho): return (f'ds_read_b64_tr_b16 {v(sb+4*aa+2*rho,2)}, v{WA+aa} offset:{16384+st*4096+rho*1024}', (st, 'A', aa))
        def rb(b): return (f'ds_read_b128 {v(sb+8+4*b,4)}, v{XA+st} offset:{b*4096}', (st, 'B', b))
        return [ra(0,0), ra(0,1), rb(0), rb(1), ra(1,0), ra(1,1)]
    allr = [r for st in range(4) for r in rd_list(st)]
    L = Cnt(A, 'lgkmcnt', 15)
    A('s_mov_b32 s38, 0')
    A('s_waitcnt vmcnt(3)' if 'cpf' in VAR else 's_waitcnt vmcnt(2)')
    A('s_barrier')
    A('s_bitcmp1_b32 s2, 0')
    A('s_cbranch_scc1 P1_Q0')
    FB = 16
    def rd(st):
        fb = FB + 16*st
        for rho in range(2):
            L.issue(f'ds_read_b64_tr_b16 {a(fb+2*rho,2)}, v{KWA} offset:{8192+st*2048+rho*256}', ('k', st))
        L.issue(f'ds_read_b128 {a(fb+8,4)}, v{KXA+(st&1)} offset:{(st>>1)*4096}', ('k', st))
        for rho in range(2):
            L.issue(f'ds_read_b64_tr_b16 {a(fb+4+2*rho,2)}, v{KWA} offset:{16384+st*2048+rho*256}', ('k', st))
        L.issue(f'ds_read_b128 {a(fb+12,4)}, v{GA} offset:{st*64}', ('k', st))
    def mm(st):
        fb = FB + 16*st
        L.need(('k', st))
        A(f'v_mfma_f32_16x16x32_bf16 {v(KAC,4)}, {a(fb,4)}, {a(fb+8,4)}, {v(KAC,4)}')
        A(f'v_mfma_f32_16x16x32_bf16 {v(VAC,4)}, {a(fb+8,4)}, {a(fb+4,4)}, {v(VAC,4)}')
        A(f'v_mfma_f32_16x16x32_bf16 {v(GAC,4)}, {a(fb+12,4)}, {a(fb+8,4)}, {v(GAC,4)}')
    for st in range(2): rd(st)
    A('KV_LOOP:')
    q0 = list(L.q)
    for st in range(2):
        mm(st)
        rd(st + 2)
    A('s_and_b32 s29, s38, 3')
    A('s_cmp_eq_u32 s29, 3')
    A(f's_cselect_b32 s29, {(-3*SLOT) & 0xffffffff:#x}, s39')
    for r in (KXA, KXA+1, KWA):
        A(f'v_add_u32 v{r}, s29, v{r}')
    A('s_add_u32 s28, s28, 1')
    A('s_and_b32 s28, s28, 7')
    A('s_lshl_b32 s29, s28, 8')
    A(f'v_add_u32 v{GA}, s29, v{GB}')
    A('s_add_u32 s38, s38, 1')
    A('s_cmp_lt_u32 s38, 8')
    L.drain()
    A('s_cbranch_scc0 KV_TAIL')
    A('s_barrier')
    for st in range(2, 4):
        rd(st - 2)
        mm(st)
    assert L.q == q0
    A('s_branch KV_LOOP')
    A('KV_TAIL:')
    L.q = []
    mm(2)
    mm(3)
    for r in range(4):
        A(f'v_accvgpr_write_b32 a{AV+12+r}, 0')
    A('s_nop 1')
    A(f's_mov_b32 s31, {f32bits(QK_SCALE):#x}')
    for r in range(4):
        A(f'v_mul_f32 v{KAC+r}, s31, v{KAC+r}')
    A(f'v_mul_f32 v{GAC}, s37, v{GAC}')
    A(f'v_cvt_pk_bf16_f32 v{VAC}, v{VAC}, v{VAC+1}')
    A(f'v_exp_f32 v{GAC}, v{GAC}')
    A(f'v_cvt_pk_bf16_f32 v{VAC+1}, v{VAC+2}, v{VAC+3}')
    A(f'v_add_f32 v{GAC}, 1.0, v{GAC}')
    A(f'v_cvt_pk_bf16_f32 v{KAC}, v{KAC}, v{KAC+1}')
    A(f'v_rcp_f32 v{GAC}, v{GAC}')
    A(f'v_cvt_pk_bf16_f32 v{KAC+1}, v{KAC+2}, v{KAC+3}')
    A(f'buffer_store_dwordx2 {v(VAC,2)}, v{KST+1}, {W}, s35 offen offset:2048 sc1')
    A(f'buffer_store_dwordx2 {v(KAC,2)}, v{KST}, {W}, s35 offen sc1')
    A('s_mov_b64 exec, 0xffff')
    A(f'buffer_store_dword v{GAC}, v{KST+2}, {W}, s36 offen sc1')
    A('s_mov_b64 exec, -1')
    A('s_barrier')
    A('P1_Q0:')
    for r in allr[:15]: A(r[0])
    A('P1_Q:')
    stamp(A, 2)
    def group(st, rds, other=(), nother=2):
        rds = list(rds); other = list(other)
        sb = OB + 16*st
        for aa in range(2):
            for b in range(2):
                acc = SB + 16*(aa*2+b)
                L.need((st, 'A', aa), (st, 'B', b))
                if 'hack16' in VAR:
                    q = acc + 8*(st&1)
                    A(f'v_mfma_f32_16x16x32_bf16 {v(q,4)}, {v(sb+4*aa,4)}, {v(sb+8+4*b,4)}, {v(q,4)}')
                    if rds: L.issue(*rds.pop(0))
                    A(f'v_mfma_f32_16x16x32_bf16 {v(q+4,4)}, {v(sb+8+4*b,4)}, {v(sb+4*aa,4)}, {v(q+4,4)}')
                    if rds: L.issue(*rds.pop(0))
                else:
                  A(f'v_mfma_f32_32x32x16_bf16 {v(acc,16)}, {v(sb+4*aa,4)}, {v(sb+8+4*b,4)}, {v(acc,16)}')
                  for _ in range(2):
                    if rds: L.issue(*rds.pop(0))
                for _ in range(nother):
                    if other: A(other.pop(0))
        assert not rds
        for o in other: A(o)
    L.q = []
    A('s_mov_b32 s38, 0')
    L.q = [r[1] for r in allr[:15]]
    L.issue(*allr[15])
    adr = [f'v_add_u32 v{r}, s29, v{r}' for r in (XA, XA+1, XA+2, XA+3, WA, WA+1)]
    def stage(mode, extra=()):
        L.need(*[r[1] for r in allr[:8]])
        group(0, allr[16:24], ['s_and_b32 s29, s38, 3', 's_cmp_eq_u32 s29, 3', f's_cselect_b32 s29, {(-3*SLOT) & 0xffffffff:#x}, s39',
                               's_add_u32 s38, s38, 1', f's_cmp_eq_u32 s38, {NSIG}' if mode == 'loop' else ''])
        if mode == 'last':
            z = [f'v_mov_b32 v{OB+r}, 0' for r in range(64)]
            L.need(*[r[1] for r in allr[8:16]])
            group(1, [], list(extra) + z[:16], 5)
            L.drain()
            A('s_barrier')
            for r in kvr(0, 0): A(r)
            cv = [[f'v_cvt_pk_bf16_f32 v{QB+8*t+i}, v{SB+16*t+2*i}, v{SB+16*t+2*i+1}' for i in range(8)] for t in range(4)]
            fill = z[16:32] + ['', '', '', ''] + cv[0] + ['', ''] + cv[1] + ['', '']
            for t in range(4):
                aa, b = t >> 1, t & 1
                for st in (2, 3):
                    sb = OB + 16*st
                    A(f'v_mfma_f32_32x32x16_bf16 {v(SB+16*t,16)}, {v(sb+4*aa,4)}, {v(sb+8+4*b,4)}, {v(SB+16*t,16)}')
                    for _ in range(5):
                        if fill: A(fill.pop(0))
            assert not fill
            A('s_waitcnt lgkmcnt(0)')
            A(qk(0, 0, 0))
            for l in cv[2]: A(l)
            A(qk(0, 0, 1))
            for l in z[32:]: A(l)
            for l in cv[3]: A(l)
            for r in range(8):
                A(f'v_mov_b32 v{SB+48+8+r}, 0')
            return
        L.need(*[r[1] for r in allr[8:16]])
        group(1, [], list(extra) + adr, 3)
        if mode == 'loop':
            A('s_cbranch_scc1 Q_PRE')
            A('Q_PRE_RET:')
        L.drain()
        A('s_barrier')
        group(2, allr[0:8], ['', '', '', '', '', '', 's_bitcmp1_b32 s45, s38', 's_cbranch_scc1 Q_POST\nQ_POST_RET:'] if mode == 'loop' else [])
        group(3, allr[8:16])
    A('Q_LOOP:')
    q0 = list(L.q)
    stage('loop')
    assert L.q == q0, (L.q, q0)
    A('s_cmp_lt_u32 s38, 15')
    A('s_cbranch_scc1 Q_LOOP')
    T = A
    A('s_branch Q_LAST')
    if 'ct' in VAR.split('_'):
        A('STUB1:')
        A('s_branch STUB_RET')
    T('Q_PRE:')
    T('s_waitcnt vmcnt(0)')
    T('s_branch Q_PRE_RET')
    T('Q_POST:')
    T(f's_cmp_eq_u32 s38, {NPOLL}')
    T('s_cbranch_scc1 Q_POLL')
    T(f's_cmp_eq_u32 s38, {NCHK}')
    T('s_cbranch_scc1 Q_CHECK')
    T('s_and_b32 s30, s2, 1')
    T('s_lshl_b32 s30, s30, 7')
    T('v_mov_b32 v0, s30')
    T('v_mov_b32 v11, 1')
    T('s_mov_b64 exec, 1')
    T(f'global_atomic_add v0, v11, s[{DBG}:{DBG+1}] sc1')
    T('s_mov_b64 exec, -1')
    T('s_branch Q_POST_RET')
    T('Q_POLL:')
    T('v_and_b32 v0, 1, v1')
    T('v_lshlrev_b32 v0, 7, v0')
    T('v_mov_b32 v11, 128')
    T(f'global_load_dword v10, v0, s[{DBG}:{DBG+1}] sc1')
    T('s_branch Q_POST_RET')
    T('Q_CHECK:')
    T('s_waitcnt vmcnt(0)')
    T('v_cmp_lt_u32 vcc, v10, v11')
    T('s_nop 1')
    T('s_cbranch_vccz Q_POST_RET')
    poll(T, 'KV', f'global_load_dword v10, v0, s[{DBG}:{DBG+1}] sc1', 11, 8, 'lt')
    T('s_branch Q_POST_RET')
    A('Q_LAST:')
    stage('last', [f'v_add_u32 v0, {L_KVR+32768}, v2', 'v_and_b32 v10, 31, v1', 'v_lshlrev_b32 v10, 2, v10',
                   f'buffer_load_dword v11, v10, {W}, s48 offen offset:128 sc1', f'buffer_load_dword v10, v10, {W}, s48 offen sc1'])
    stamp(A, 3)

def qk(t, kb, half, sb=None):
    sb = t if sb is None else sb
    c = '0' if half == 0 else v(SB+16*sb, 16)
    return f'v_mfma_f32_32x32x16_bf16 {v(SB+16*sb,16)}, {a(AK+8*kb+4*half,4)}, {v(QB+8*t+4*half,4)}, {c}'
def pv(t, vb, half, sb=None):
    sb = t if sb is None else sb
    return f'v_smfmac_f32_32x32x32_bf16 {v(OB+16*t,16)}, {a(AV+8*vb+4*half,4)}, {v(SB+16*sb+8*half,8)}, v{IDX}'
def sm(t, half, sb=None):
    sb = t if sb is None else sb
    return f'v_smfmac_f32_16x16x64_bf16 {a(AL+4*t,4)}, {v(SEL,4)}, {v(SB+16*sb+8*half,8)}, v{IDX}'
def ex(t, i):
    return f'v_exp_f32 v{SB+16*t+i}, v{SB+16*t+i}'

def slot(A, cur, nxt, prv, x):
    t, kb, sb = cur
    A(qk(nxt[0], nxt[1], 0, nxt[2]) if nxt else '')
    A(x.get(0, ''))
    for e in (0, 1, 2): A(ex(sb, e))
    A(qk(nxt[0], nxt[1], 1, nxt[2]) if nxt else '')
    A(x.get(1, ''))
    for e in (3, 4, 5): A(ex(sb, e))
    A(pv(prv[0], prv[1], 1, prv[2]))
    A(x.get(2, ''))
    for e in (6, 7, 8): A(ex(sb, e))
    A(sm(prv[0], 1, prv[2]))
    A(x.get(3, ''))
    for e in (9, 10): A(ex(sb, e))
    A(pv(t, kb, 0, sb))
    A(x.get(4, ''))
    for e in (11, 12, 13): A(ex(sb, e))
    A(sm(t, 0, sb))
    A(x.get(5, ''))
    for e in (14, 15): A(ex(sb, e))

def tile_out(A, t, check):
    aa, b = t >> 1, t & 1
    o = OB + 16*t
    A(f'v_accvgpr_read_b32 v3, a{AL+4*t}')
    A('v_rcp_f32 v8, v3')
    if check:
        A('v_min_f32 v4, v4, v3')
        A('v_max_f32 v5, v5, v3')
        A('v_fma_f32 v6, v3, 0, v6')
    else:
        A('s_nop 0')
    A(f'v_mul_f32 v8, v8, v{10+b}')
    for h in range(2):
        for r in range(8*h, 8*h+8, 2):
            A(f'v_pk_mul_f32 {v(o+r,2)}, {v(o+r,2)}, v[8:9] op_sel_hi:[1,0]')
        if check:
            for r in range(8*h, 8*h+8, 2):
                A(f'v_pk_fma_f32 v[6:7], {v(o+r,2)}, 0, v[6:7]')
        for r in range(4):
            A(f'v_cvt_pk_bf16_f32 v{o+8*h+r}, v{o+8*h+2*r}, v{o+8*h+2*r+1}')
        A(f'buffer_store_dwordx4 {v(o+8*h,4)}, v2, {W}, s{50+b} offen offset:{aa*2048+h*1024} sc1')

def attention(A):
    A('s_mov_b32 s36, 15')
    A(f'v_add_u32 v3, {L_KVR}, v2')
    A('v_mov_b32 v4, 1.0')
    A('v_mov_b32 v5, 1.0')
    A('v_mov_b32 v6, 0')
    A('v_mov_b32 v7, 0')
    stamp(A, 4)
    A('.p2align 6')
    A('AT_LOOP:')
    for i in range(4):
        for t in range(4):
            nt, nb = (t+1) % 4, ((i if t < 3 else i+1) % 2)
            pt, pb = (t-1) % 4, ((i if t > 0 else i-1) % 2)
            x = {3: kvr((i+1) % 4, (i+1) % 2)[t]}
            if t == 0: x[0] = 's_waitcnt lgkmcnt(0)' + ('\ns_barrier' if i == 3 else '')
            if t == 2 and i == 3: x[1] = 's_sub_u32 s36, s36, 1'
            if t == 1 and i == 2: x[1] = 's_add_u32 s33, s33, 16384'
            if t == 2 and i == 2: x[1] = 's_and_b32 s33, s33, 0xffff'
            if t == 0 and i == 3: x[2] = 'v_add_u32 v0, s33, v3'
            if t == 2: x[5] = 's_waitcnt lgkmcnt(1)'
            if t == 3 and i == 3: x[5] = 's_cmp_lg_u32 s36, 0'
            slot(A, (t, i % 2, t), (nt, nb, nt), (pt, pb, pt), x)
    A('s_cbranch_scc1 AT_LOOP')
    if 'ct' in VAR.split('_'):
        A('s_branch STUB2S')
        A('STUB2:')
        A('s_branch STUB_RET')
        A('STUB2S:')
    seq = [(t, 0) for t in range(4)] + [(t, st) for t in range(4) for st in (1, 2, 3)]
    seq = [(t, st, n % 4) for n, (t, st) in enumerate(seq)]
    rds = kvr(1, 1) + kvr(2, 2) + kvr(3, 3)
    rds = rds[0:2] + rds[4:6] + rds[2:4] + rds[8:10] + rds[6:8] + rds[10:12]
    for n in range(16):
        x = {}
        if n == 0: x[0] = 's_waitcnt lgkmcnt(0)'
        if n < 3:
            x[3] = rds.pop(0) + '\n' + rds.pop(0)
            x[5] = rds.pop(0) + '\n' + rds.pop(0)
        if n == 2: x[5] += '\ns_waitcnt lgkmcnt(10)'
        if n == 3: x[5] = 's_waitcnt vmcnt(0) lgkmcnt(0)'
        slot(A, seq[n], seq[n+1] if n < 15 else None, seq[n-1] if n else (3, 1, 3), x)
        if n in (7, 10, 13):
            tile_out(A, (n-7)//3, True)
    stamp(A, 5)
    A('s_nop 1')
    A(sm(3, 1, 3))
    A(pv(3, 3, 1, 3))
    A('s_nop 6')
    tile_out(A, 3, True)
    A(f'v_cmp_gt_f32 vcc, {f32bits(2.0**-16):#x}, v4')
    A(f's_mov_b32 s29, {f32bits(2.0**64):#x}')
    A('v_cmp_lt_f32 s[46:47], s29, v5')
    A('v_cmp_u_f32 s[52:53], v6, v7')
    A('s_nop 1')
    A('s_or_b64 s[46:47], s[46:47], vcc')
    A('s_or_b64 s[46:47], s[46:47], s[52:53]')
    if 'forceslow' in VAR:
        A('s_branch AT_SLOW')
    A('s_cbranch_scc1 AT_SLOW')
    A('AT_DONE:')
    S = Asm()
    S('AT_SLOW:')
    S('s_waitcnt vmcnt(0)')
    for t in range(4):
        S(f'v_mov_b32 v{4+t}, 0xff800000')
    S('s_mov_b32 s34, s32')
    S('s_mov_b32 s36, 64')
    S('SL_MAX:')
    for l in kv_loads(0)[:2]: S(l)
    S('s_waitcnt vmcnt(0)')
    for t in range(4):
        S(qk(t, 0, 0)); S(qk(t, 0, 1))
    S('s_nop 15')
    for t in range(4):
        for r in range(0, 16, 2):
            S(f'v_max3_f32 v{4+t}, v{4+t}, v{SB+16*t+r}, v{SB+16*t+r+1}')
    S('s_add_u32 s34, s34, 4096')
    S('s_sub_u32 s36, s36, 1')
    S('s_cmp_lg_u32 s36, 0')
    S('s_cbranch_scc1 SL_MAX')
    for t in range(4):
        S(f'v_mov_b32 v8, v{4+t}')
        S('s_nop 1')
        S(f'v_permlane32_swap_b32 v8, v{4+t}')
        S('s_nop 1')
        S(f'v_max_f32 v{4+t}, v{4+t}, v8')
    for r in range(16):
        S(f'v_accvgpr_write_b32 a{AL+r}, 0')
    for r in range(64):
        S(f'v_mov_b32 v{OB+r}, 0')
    S('s_mov_b32 s34, s32')
    S('s_mov_b32 s36, 64')
    S('SL_ACC:')
    for l in kv_loads(0): S(l)
    S('s_waitcnt vmcnt(0)')
    for t in range(4):
        S(qk(t, 0, 0)); S(qk(t, 0, 1))
    S('s_nop 15')
    for t in range(4):
        for r in range(16):
            S(f'v_sub_f32 v{SB+16*t+r}, v{SB+16*t+r}, v{4+t}')
        for r in range(16):
            S(ex(t, r))
    S('s_nop 3')
    for t in range(4):
        for h in range(2):
            S(pv(t, 0, h)); S(sm(t, h))
    S('s_add_u32 s34, s34, 4096')
    S('s_sub_u32 s36, s36, 1')
    S('s_cmp_lg_u32 s36, 0')
    S('s_cbranch_scc1 SL_ACC')
    S('s_nop 15')
    for t in range(4):
        tile_out(S, t, False)
    S('s_branch AT_DONE')
    tail.extend(S.lines)

def p3_compute(A):
    WB, ACC = 16, 48
    def oreg(slot, st):
        i = 32*slot + 4*st
        return v(80+i, 4) if i < 96 else a(i-96, 4)
    A(f's_lshl_b32 s35, s{sTB}, 2')
    A(f's_add_u32 s35, s35, s{sW}')
    A('s_lshl_b32 s36, s35, 17')
    A(f's_add_u32 s36, s36, {WS_OF}')
    A('s_and_b32 s32, s2, 6')
    A(f's_and_b32 s37, s{sCB}, 8')
    A('s_add_u32 s37, s37, s32')
    A('s_lshl_b32 s37, s37, 13')
    A('v_add_u32 v3, 4096, v2')
    A('v_bfe_u32 v8, v1, 2, 2')
    A('v_lshrrev_b32 v9, 5, v1')
    A('v_lshl_add_u32 v9, v9, 2, v8')
    A('v_lshlrev_b32 v9, 7, v9')
    A('v_bfe_u32 v10, v1, 4, 1')
    A('v_lshl_add_u32 v9, v10, 5, v9')
    A('v_and_b32 v10, 3, v1')
    A('v_lshl_add_u32 v9, v10, 3, v9')
    A('v_lshrrev_b32 v8, 1, v8')
    A('v_lshl_add_u32 v5, v8, 6, v9')
    A('v_xor_b32 v8, 1, v8')
    A('v_lshl_add_u32 v6, v8, 6, v9')
    for r in range(32):
        A(f'v_mov_b32 v{ACC+r}, 0')
    A('s_mov_b32 s38, 0')
    srd(A, SOUT, 56, 57, 4 << 20)
    V = Cnt(A, 'vmcnt', 63)
    L = Cnt(A, 'lgkmcnt', 15)
    LK = opt('lk', 2)
    def oload(slot, st):
        return (f'buffer_load_dwordx4 {oreg(slot,st)}, v{2+st//4}, {W}, s30 offen offset:{(st%4)*1024} sc1', ('O', slot, st))
    adv = ['s_add_u32 s37, s37, 8192', 's_and_b32 s37, s37, 0x1ffff', 's_add_u32 s30, s36, s37']
    A(adv[2])
    def wr(slot, st):
        out = []
        for ct in range(2):
            for rho in range(2):
                out.append((f'ds_read_b64_tr_b16 {v(WB+8*(st%4)+4*ct+2*rho,2)}, v{5+ct} offset:{slot*16384+st*2048+rho*1024}', ('W', st%4, ct)))
        return out
    LA = 2
    A('s_waitcnt vmcnt(0)')
    stamp(A, 6)
    A('s_barrier')
    for st in range(LA):
        for r in wr(0, st): L.issue(*r)
    A('s_barrier')
    stamp(A, 7)
    for sl in range(LK):
        for st in range(8): V.issue(*oload(sl, st))
        for x in adv: A(x)
    A('P3_LOOP:')
    q0, v0 = list(L.q), list(V.q)
    for slot in range(4):
        for st in range(8):
            nst = st + LA
            if nst == 8:
                L.drain()
                A('s_barrier')
                if slot == 3:
                    A('v_xor_b32 v5, 0x10000, v5')
                    A('v_xor_b32 v6, 0x10000, v6')
            rds = wr(slot, nst) if nst < 8 else wr((slot+1) % 4, nst-8)
            for ct in range(2):
                L.need(('W', st%4, ct))
                V.need(('O', slot, st))
                if 'hack16' in VAR:
                    q = ACC+16*ct+8*(st&1)
                    A(f'v_mfma_f32_16x16x32_bf16 {v(q,4)}, {v(WB+8*(st%4)+4*ct,4)}, {oreg(slot,st)}, {v(q,4)}')
                    L.issue(*rds[2*ct])
                    A(f'v_mfma_f32_16x16x32_bf16 {v(q+4,4)}, {oreg(slot,st)}, {v(WB+8*(st%4)+4*ct,4)}, {v(q+4,4)}')
                    L.issue(*rds[2*ct+1])
                else:
                    A(f'v_mfma_f32_32x32x16_bf16 {v(ACC+16*ct,16)}, {v(WB+8*(st%4)+4*ct,4)}, {oreg(slot,st)}, {v(ACC+16*ct,16)}')
                    L.issue(*rds[2*ct]); L.issue(*rds[2*ct+1])
                if ct == 0:
                    if slot == 4-LK and st == 0:
                        A('s_cmp_eq_u32 s38, 3')
                        A(f's_cselect_b32 s{SWS+2}, 0, s{SWS+2}')
                    V.issue(*oload((slot+LK) % 4, st))
                elif st == 7:
                    for x in adv: A(x)
    A('s_add_u32 s38, s38, 1')
    A('s_cmp_lt_u32 s38, 4')
    assert L.q == q0, (L.q, q0)
    assert V.q == v0, (V.q, v0)
    A('s_cbranch_scc1 P3_LOOP')
    stamp(A, 8)
    A('v_and_b32 v8, 31, v1')
    A('v_lshlrev_b32 v8, 11, v8')
    A('v_lshrrev_b32 v9, 5, v1')
    A('v_lshl_add_u32 v8, v9, 4, v8')
    A('s_lshl_b32 s29, s35, 16')
    A(f's_lshl_b32 s30, s{sCB}, 7')
    A('s_add_u32 s29, s29, s30')
    A('s_nop 6')
    D = 80
    A('s_waitcnt vmcnt(0)')
    for ct in range(2):
        for g in range(4):
            b = ACC+16*ct+4*g
            d = D+8*ct+2*g
            A(f'v_cvt_pk_bf16_f32 v{d}, v{b}, v{b+1}')
            A(f'v_cvt_pk_bf16_f32 v{d+1}, v{b+2}, v{b+3}')
    A('s_nop 1')
    for j in range(4):
        d = D+4*j
        A(f'v_permlane32_swap_b32 v{d}, v{d+2}')
        A(f'v_permlane32_swap_b32 v{d+1}, v{d+3}')
        A(f'buffer_store_dwordx4 {v(d,4)}, v8, s[{SOUT}:{SOUT+3}], s29 offen offset:{j*32}' + (' sc1' if 'outsc1' in VAR else '') + (' nt' if 'outnt' in VAR else ''))

def build():
    ref = open(f'cdna_kernels/{NAME}.s.ref').read().split('\n')
    head = [l for l in ref if l.startswith(';') and '@launch' not in l and 'Override' not in l and 'grid=ceil' not in l]
    out = '\n'.join(head) + '\n'
    if 'aslist' in VAR:
        out += f'; @launch kernel={KNAME} grid=(256,1,1) block=(512,1,1) lds={LDS_BYTES}\n'
    else:
        out += f'; @launch grid=(256,1,1) block=(512,1,1) lds={LDS_BYTES}\n'
    out += '.amdgcn_target "amdgcn-amd-amdhsa--gfx950"\n.text\n'
    A = Asm()
    kernel(A)
    out += A.text()
    out += '.section .rodata,"a"\n' + kd(KNAME, 256, NARCH)
    return out

if __name__ == '__main__':
    args = [x for x in sys.argv[1:] if not x.startswith('--')]
    if '--instr' in sys.argv: INSTR = True
    if '--lst' in sys.argv: LST = True
    for x in sys.argv:
        if x.startswith('--var='): VAR = x[6:]
    dst = args[0] if args else f'cdna_kernels/{NAME}.s'
    open(dst, 'w').write(build())
```

```python
import math, sys
from asmlib import *

NAME = 'gated_mix__grouped_kv_mqa__grouped_kv_mqa__prompt'
KNAME = NAME + '_kernel'
WS_KV = 0
WS_G = 512 << 10
WS_FLAG = 576 << 10
WS_OF = 1 << 20
CT = 4
WS_BYTES = 9 << 20
QK_SCALE = math.log2(math.e) / math.sqrt(32.0)
LOG2E = math.log2(math.e)
INSTR = False
LST = False
VAR = ''
WS_DBG = 32 << 20
WS_DBG2 = 40 << 20

SLOT = 32768
L_GATE = 4 * SLOT
LDS_BYTES = 163840
L_KVR = 98304

SX, SW, SKV, SWS, SG = 4, 8, 12, 16, 20
SWO, SOUT = 8, 12
sW, sTB, sCB, sST = 24, 25, 26, 27
W = f's[{SWS}:{SWS+3}]'
DBG = 58
NARCH = 176
SB, OB = 16, 80
AL, AK, AV = 0, 16, 48
QB = 144
IDX, SEL = 9, 12
NSIG, NPOLL, NCHK = 2, 11, 13

def opt(name, default):
    for tok in VAR.split('_'):
        if tok.startswith(name) and tok[len(name):].isdigit():
            return int(tok[len(name):])
    return default

def srd(A, d, lo, hi, nbytes):
    A(f's_mov_b32 s{d}, s{lo}')
    A(f's_and_b32 s{d+1}, s{hi}, 0xffff')
    A(f's_mov_b32 s{d+2}, {nbytes:#x}')
    A(f's_mov_b32 s{d+3}, 0x20000')

def stamp(A, i):
    if INSTR:
        A(f's_mem{"time" if "allcyc" in VAR else "realtime"} s[{64+2*i}:{65+2*i}]')
NST = 10
def stamp_end(A):
    if not INSTR: return
    A('s_waitcnt vmcnt(0) lgkmcnt(0)')
    stamp(A, NST-1)
    A('s_getreg_b32 s62, hwreg(HW_REG_XCC_ID)')
    A('s_waitcnt lgkmcnt(0)')
    A('s_mov_b64 exec, 1')
    A('s_lshl_b32 s63, s2, 2')
    A(f's_add_u32 s63, s63, s{sW}')
    A('s_lshl_b32 s63, s63, 6')
    A(f's_add_u32 s63, s63, {WS_DBG}')
    A('v_mov_b32 v0, s63')
    for i in range(NST):
        A(f'v_mov_b32 v1, s{64+2*i}')
        A(f'global_store_dword v0, v1, s[60:61] offset:{4*i}')
    A('v_mov_b32 v1, s62')
    A(f'global_store_dword v0, v1, s[60:61] offset:{4*NST}')
    A('s_waitcnt vmcnt(0)')
def lstamp(A, vreg, idx):
    if not LST: return
    A('s_memtime s[64:65]' if ('cyc' in VAR and vreg == 32) else 's_memrealtime s[64:65]')
    A('s_waitcnt lgkmcnt(0)')
    if isinstance(idx, str):
        A(f's_mov_b32 m0, {idx}')
        A(f'v_writelane_b32 v{vreg}, s64, m0')
    else:
        A(f'v_writelane_b32 v{vreg}, s64, {idx}')
def ldump(A):
    if not LST: return
    A('s_lshl_b32 s80, s2, 2')
    A(f's_add_u32 s80, s80, s{sW}')
    A('s_lshl_b32 s80, s80, 10')
    A(f's_add_u32 s80, s80, {WS_DBG2}')
    A('v_lshlrev_b32 v0, 2, v1')
    A('v_add_u32 v0, s80, v0')
    A('global_store_dword v0, v30, s[60:61]')
    A('global_store_dword v0, v31, s[60:61] offset:256')
    A('global_store_dword v0, v32, s[60:61] offset:512')
    A('s_waitcnt vmcnt(0)')

def poll(A, tag, load, vwant, sleep, cmp='ne'):
    A('s_mov_b32 s30, 0x40000')
    A(f'POLL_{tag}:')
    A(load)
    A('s_waitcnt vmcnt(0)')
    A(f'v_cmp_{cmp}_u32 vcc, v10, v{vwant}')
    A('s_sub_u32 s30, s30, 1')
    A(f's_cbranch_scc1 POLLD_{tag}')
    A(f's_cbranch_vccz POLLD_{tag}')
    A(f's_sleep {sleep}')
    A(f's_branch POLL_{tag}')
    A(f'POLLD_{tag}:')

tail = []

def kernel(A):
    A(f'.globl {KNAME}\n.p2align 8\n.type {KNAME},@function\n{KNAME}:')
    A('s_cmp_ge_u32 s2, 256')
    A('s_cbranch_scc1 END2')
    stamp(A, 0)
    if 'flip' in VAR: A('s_xor_b32 s2, s2, 1')
    A('s_load_dwordx4 s[40:43], s[0:1], 0')
    A('s_load_dwordx4 s[44:47], s[0:1], 16')
    A('s_load_dwordx4 s[48:51], s[0:1], 48')
    A('s_load_dwordx2 s[52:53], s[0:1], 64')
    A('s_load_dwordx2 s[54:55], s[0:1], 80')
    A('s_load_dwordx4 s[56:59], s[0:1], 88')
    A('s_load_dwordx2 s[60:61], s[0:1], 104')
    A('v_lshrrev_b32 v8, 6, v0')
    A('v_and_b32 v1, 63, v0')
    A(f'v_readfirstlane_b32 s{sW}, v8')
    A('s_and_b32 s29, s2, 1')
    A('s_lshl_b32 s29, s29, 3')
    A('s_bfe_u32 s30, s2, 0x30003')
    A(f's_add_u32 s{sCB}, s29, s30')
    A('s_bfe_u32 s28, s2, 0x20001')
    A('s_lshl_b32 s31, s28, 2')
    A('s_lshr_b32 s32, s2, 6')
    A(f's_add_u32 s{sTB}, s31, s32')
    A('s_lshl_b32 s29, s32, 1')
    A('s_add_u32 s28, s28, s29')
    A('s_and_b32 s29, s30, 4')
    A('s_add_u32 s28, s28, s29')
    A('s_and_b32 s28, s28, 7')
    A(f's_and_b32 s{sST}, s2, 7')
    A(f's_lshl_b32 s{sST}, s{sST}, 1')
    A('v_lshlrev_b32 v2, 4, v1')
    A(f's_cmp_lt_u32 s{sW}, 4')
    A('s_cbranch_scc1 COMPUTE')
    helper(A)
    A('COMPUTE:')
    p1_compute(A)
    attention(A)
    p3_compute(A)
    A('END:')
    stamp_end(A)
    A('END2:')
    A('s_endpgm')
    A.lines += tail

def helper(A):
    A(f's_sub_u32 s{sW}, s{sW}, 4')
    A('v_lshrrev_b32 v8, 3, v1')
    A('v_lshlrev_b32 v8, 11, v8')
    A('v_lshrrev_b32 v9, 4, v1')
    A('v_and_b32 v10, 7, v1')
    A('v_xor_b32 v10, v10, v9')
    A('v_lshl_add_u32 v16, v10, 4, v8')
    A('v_xor_b32 v10, 4, v10')
    A('v_lshl_add_u32 v17, v10, 4, v8')
    A('v_add_u32 v17, 15360, v17')
    A('v_add_u32 v18, 30720, v16')
    A('v_add_u32 v19, 30720, v17')
    A(f's_lshl_b32 s34, s{sTB}, 18')
    A(f's_lshl_b32 s36, s{sW}, 12')
    A('s_mov_b32 s38, 0')
    A('s_bitcmp1_b32 s2, 0')
    A('s_cbranch_scc1 H_ODD')
    A(f's_and_b32 s29, s{sCB}, 3')
    A('s_lshl_b32 s29, s29, 16')
    A('s_add_u32 s33, s34, s29')
    A(f's_and_b32 s29, s{sW}, 1')
    A('s_lshl_b32 s29, s29, 15')
    A('s_add_u32 s33, s33, s29')
    A(f's_lshr_b32 s29, s{sW}, 1')
    A('s_lshl_b32 s29, s29, 7')
    A('s_add_u32 s33, s33, s29')
    A(f's_lshl_b32 s35, s{sW}, 11')
    A('s_mov_b32 s37, s35')
    A('s_waitcnt lgkmcnt(0)')
    srd(A, SX, 40, 41, 4 << 20)
    A(f's_bitcmp1_b32 s{sCB}, 2')
    A('s_cselect_b32 s44, s50, s44')
    A('s_cselect_b32 s45, s51, s45')
    A('s_cselect_b32 s46, s52, s46')
    A('s_cselect_b32 s47, s53, s47')
    srd(A, SKV, 44, 45, 65536)
    srd(A, SG, 46, 47, 65536)
    lstamp(A, 30, 20)
    A('H_KV:')
    A('s_cmp_lt_u32 s38, 3')
    A('s_cbranch_scc1 H_KV2')
    A('s_waitcnt vmcnt(12)')
    A('s_barrier')
    A('H_KV2:')
    if LST: A('s_add_u32 s49, s38, 48')
    lstamp(A, 31, 's49')
    A('s_lshl_b32 s29, s28, 8')
    A('s_add_u32 s29, s29, s33')
    A('s_mov_b32 m0, s37')
    A('s_lshl_b32 s30, s28, 13')
    for i in range(2):
        A(f'buffer_load_dwordx4 v{16+i}, s[{SX}:{SX+3}], s29 offen offset:{i*1024} lds')
    A('s_add_u32 m0, s37, 8192')
    A('s_add_u32 s30, s30, s35')
    for i in range(2):
        A(f'buffer_load_dwordx4 v2, s[{SKV}:{SKV+3}], s30 offen offset:{i*1024} lds')
    A('s_add_u32 m0, s37, 16384')
    A('s_add_u32 s28, s28, 1')
    for i in range(2):
        A(f'buffer_load_dwordx4 v2, s[{SG}:{SG+3}], s30 offen offset:{i*1024} lds')
    lstamp(A, 30, 's49')
    A('s_and_b32 s28, s28, 7')
    A(f's_add_u32 s37, s37, {SLOT}')
    A(f's_and_b32 s37, s37, {4*SLOT-1:#x}')
    A('s_add_u32 s38, s38, 1')
    A('s_cmp_lt_u32 s38, 8')
    A('s_cbranch_scc1 H_KV')
    A('s_mov_b32 s38, 0')
    A('s_mov_b32 s62, 1')
    A('s_waitcnt vmcnt(12)')
    A('s_barrier')
    A('s_branch H_Q')
    A('H_ODD:')
    A('s_mov_b32 s62, 99')
    A('s_waitcnt lgkmcnt(0)')
    srd(A, SX, 40, 41, 4 << 20)
    A('s_mov_b32 s42, s48')
    A('s_mov_b32 s43, s49')
    A('H_Q:')
    A('s_mov_b32 s37, s36')
    A('v_bfe_u32 v10, v1, 2, 2')
    A('v_xor_b32 v10, v10, v9')
    A('v_lshlrev_b32 v10, 6, v10')
    A('v_lshl_add_u32 v10, v9, 11, v10')
    A('v_and_b32 v8, 3, v1')
    A('v_lshl_add_u32 v20, v8, 4, v10')
    A('v_add_u32 v21, 7168, v20')
    A('v_add_u32 v22, 14336, v20')
    A('v_add_u32 v23, 21504, v20')
    srd(A, SW, 42, 43, 2 << 20)
    A(f's_lshl_b32 s29, s{sW}, 16')
    A('s_add_u32 s34, s34, s29')
    A(f's_and_b32 s35, s{sCB}, 7')
    A('s_lshl_b32 s35, s35, 8')
    A(f's_lshl_b32 s29, s{sW}, 15')
    A('s_add_u32 s35, s35, s29')
    A('H_LOOP:')
    A('s_cmp_ge_u32 s38, 5')
    A('s_cbranch_scc1 H_W16')
    A('s_cmp_lg_u32 s38, s62')
    A('s_cbranch_scc1 H_NX')
    A('s_waitcnt vmcnt(14)')
    A('s_barrier')
    A('s_waitcnt vmcnt(8)')
    A('s_barrier')
    A('H_NX:')
    A('s_bitcmp1_b32 19, s38')
    A('s_cbranch_scc1 H_ISSUE')
    A('s_waitcnt vmcnt(8)')
    A('H_W16:')
    A('s_waitcnt vmcnt(16)')
    lstamp(A, 30, 's38')
    A('s_barrier')
    A('H_ISSUE:')
    lstamp(A, 31, 's38')
    A(f's_lshl_b32 s29, s{sST}, 7')
    A('s_add_u32 s29, s29, s34')
    A('s_mov_b32 m0, s37')
    A(f's_lshl_b32 s30, s{sST}, 17')
    for i in range(4):
        A(f'buffer_load_dwordx4 v{16+i}, s[{SX}:{SX+3}], s29 offen offset:{i*1024} lds')
    A('s_add_u32 m0, s37, 16384')
    A('s_add_u32 s30, s30, s35')
    for i in range(4):
        A(f'buffer_load_dwordx4 v{20+i}, s[{SW}:{SW+3}], s30 offen offset:{i*1024} lds')
    A(f's_add_u32 s{sST}, s{sST}, 1')
    A(f's_and_b32 s{sST}, s{sST}, 15')
    A(f's_add_u32 s37, s37, {SLOT}')
    A(f's_and_b32 s37, s37, {4*SLOT-1:#x}')
    lstamp(A, 32, 's38')
    A('s_add_u32 s38, s38, 1')
    A('s_cmp_lt_u32 s38, 16')
    A('s_cbranch_scc1 H_LOOP')
    A('s_load_dwordx2 s[40:41], s[0:1], 32')
    A('s_load_dwordx2 s[42:43], s[0:1], 72')
    srd(A, SWS, 60, 61, WS_BYTES)
    A(f's_lshr_b32 s32, s{sCB}, 3')
    A('s_lshl_b32 s32, s32, 18')
    A('s_add_u32 s32, s32, s36')
    A('s_lshr_b32 s33, s2, 4')
    A('s_lshl_b32 s33, s33, 14')
    def kv_chunk(c):
        A(f's_add_u32 m0, s36, {L_KVR + ((c+2)&3)*16384}')
        A('s_add_u32 s31, s32, s33')
        for i in range(4):
            A(f'buffer_load_dwordx4 v2, {W}, s31 offen offset:{i*1024} sc1 lds')
        A('s_add_u32 s33, s33, 16384')
        A('s_and_b32 s33, s33, 0x3ffff')
    for n, i in ((16, 16), (8, 17), (8, 18)):
        A(f's_waitcnt vmcnt({n})')
        lstamp(A, 30, i)
        A('s_barrier')
        lstamp(A, 31, i)
        if i == 17:
            kv_chunk(0)
            kv_chunk(1)
    A('v_lshrrev_b32 v8, 3, v1')
    A('v_lshlrev_b32 v8, 11, v8')
    A('v_lshrrev_b32 v10, 2, v1')
    A('v_lshrrev_b32 v12, 4, v1')
    A('v_xor_b32 v10, v10, v12')
    A('v_and_b32 v10, 1, v10')
    A('v_lshl_add_u32 v8, v10, 6, v8')
    A('v_and_b32 v10, 3, v1')
    A('v_lshl_add_u32 v16, v10, 4, v8')
    A('v_add_u32 v17, 15360, v16')
    A('v_add_u32 v18, 30720, v16')
    A('v_add_u32 v19, 46080, v16')
    A(f's_lshl_b32 s34, s{sCB}, 7')
    A(f's_lshl_b32 s29, s{sW}, 17')
    A('s_add_u32 s34, s34, s29')
    A('s_bfe_u32 s29, s2, 0x20001')
    A(f's_lshr_b32 s{sST}, s{sCB}, 3')
    A(f's_lshl_b32 s{sST}, s{sST}, 2')
    A(f's_add_u32 s{sST}, s{sST}, s29')
    A('s_waitcnt lgkmcnt(0)')
    A('s_and_b32 s41, s41, 0xffff')
    A('s_and_b32 s43, s43, 0xffff')
    A(f's_mov_b32 s{SWO+2}, 0x200000')
    A(f's_mov_b32 s{SWO+3}, 0x20000')
    A('v_mov_b32 v9, 0')
    A('v_mov_b32 v11, 64')
    A('v_add_u32 v13, s36, v2')
    A('v_add_u32 v14, 0x10000, v13')
    A(f's_lshl_b32 s44, s{sTB}, 8')
    A(f's_add_u32 s44, s44, {WS_FLAG}')
    A(f's_cmp_eq_u32 s{sW}, 0')
    A('s_cselect_b32 s45, s44, 0x40000000')
    A('s_waitcnt vmcnt(4)')
    lstamp(A, 30, 19)
    A('s_barrier')
    lstamp(A, 31, 19)
    def hold(j, i):
        return v(48+16*j+4*i, 4) if j < 8 else a(16*(j-8)+4*i, 4)
    def wo_stage(n):
        A(f's_cmp_ge_u32 s{sST}, 4')
        A(f's_cselect_b32 s{SWO}, s42, s40')
        A(f's_cselect_b32 s{SWO+1}, s43, s41')
        A(f's_and_b32 s29, s{sST}, 3')
        A('s_lshl_b32 s29, s29, 19')
        if n == 8: A('s_add_u32 s34, s34, 0x10000')
        if n < 6: A(f's_add_u32 m0, s36, {n*16384}')
        A('s_add_u32 s29, s29, s34')
        for i in range(4):
            if n < 6:
                A(f'buffer_load_dwordx4 v{16+i}, s[{SWO}:{SWO+3}], s29 offen offset:{i*1024} lds')
            else:
                A(f'buffer_load_dwordx4 {hold(n-6,i)}, v{16+i}, s[{SWO}:{SWO+3}], s29 offen offset:{i*1024}')
        A(f's_add_u32 s{sST}, s{sST}, 1')
        A(f's_and_b32 s{sST}, s{sST}, 7')
    V = Cnt(A, 'vmcnt', 63)
    def track(tag, n=4):
        V.q += [tag]*n
    track(('c', 1))
    kv_chunk(2); track(('c', 2))
    kv_chunk(3); track(('c', 3))
    if 'hpf' in VAR.split('_'):
        A('s_getpc_b64 s[62:63]')
        A('HPF_PC:')
        A(f's_lshl_b32 s29, s{sW}, 13')
        A('s_add_u32 s29, s29, AT_LOOP-HPF_PC')
        A('v_lshlrev_b32 v20, 7, v1')
        A('v_add_u32 v20, s29, v20')
        A('v_min_u32 v20, AT_SLOW-HPF_PC, v20')
        A('global_load_dword v21, v20, s[62:63]')
        track(('h', 0), 1)
    nwo = 0
    for i in range(13):
        V.need(('c', i+1) if i < 15-CT else ('c', i+3))
        A('s_barrier')
        if i + 4 < 16:
            kv_chunk(i+4); track(('c', i+4))
        for _ in range(2 if i < 4 else 1):
            if nwo < 16:
                wo_stage(nwo); track(('w', nwo)); nwo += 1
    assert nwo == 16
    A('s_waitcnt vmcnt(0)')
    A(f's_cmp_lg_u32 s{sW}, 0')
    A('s_cbranch_scc1 H_NOPOLL2')
    A('s_setprio 3')
    A(f's_sleep {64 if CT == 4 else 96}')
    poll(A, 'O', f'buffer_load_dword v10, v9, {W}, s44 offen sc1', 11, 8, 'lt')
    A('H_NOPOLL2:')
    A('s_barrier')
    lstamp(A, 31, 32)
    for j in range(2):
        for i in range(4):
            A(f'ds_write_b128 v14, {hold(j,i)} offset:{(2+j)*16384+i*1024}')
    for j in range(8):
        if j == 4:
            A(f'buffer_load_dword v10, v9, {W}, s45 offen offset:128 sc1')
        if j == 5:
            A('s_waitcnt vmcnt(0)')
            A(f's_cmp_lg_u32 s{sW}, 0')
            A('s_cbranch_scc1 H_NOPOLL3')
            A('v_cmp_lt_u32 vcc, v10, v11')
            A('s_nop 1')
            A('s_cbranch_vccz H_NOPOLL3')
            poll(A, 'O2', f'buffer_load_dword v10, v9, {W}, s44 offen offset:128 sc1', 11, 2, 'lt')
            A('H_NOPOLL3:')
        A('s_waitcnt lgkmcnt(0)')
        A('s_barrier')
        lstamp(A, 31, 33+j)
        for i in range(4):
            A(f'ds_write_b128 v{13 + j//4}, {hold(j+2,i)} offset:{(j%4)*16384+i*1024}')
    A('s_waitcnt lgkmcnt(0)')
    if LST:
        for j in range(7):
            A('s_barrier')
            lstamp(A, 31, 41+j)
    ldump(A)
    A('s_endpgm')

def kv_adv():
    return ['s_add_u32 s33, s33, 4096', 's_and_b32 s33, s33, 0x3ffff', 's_add_u32 s34, s32, s33']
def kv_loads(b):
    return [f'buffer_load_dwordx4 {a(AK+8*b,4)}, v2, {W}, s34 offen sc1',
            f'buffer_load_dwordx4 {a(AK+8*b+4,4)}, v2, {W}, s34 offen offset:1024 sc1',
            f'buffer_load_dwordx4 {a(AV+8*b,4)}, v2, {W}, s34 offen offset:2048 sc1',
            f'buffer_load_dwordx4 {a(AV+8*b+4,4)}, v2, {W}, s34 offen offset:3072 sc1']
def kvr(st, b):
    return [f'ds_read_b128 {a(AK+8*b,4)}, v0 offset:{st*4096}',
            f'ds_read_b128 {a(AK+8*b+4,4)}, v0 offset:{st*4096+1024}',
            f'ds_read_b128 {a(AV+8*b,4)}, v0 offset:{st*4096+2048}',
            f'ds_read_b128 {a(AV+8*b+4,4)}, v0 offset:{st*4096+3072}']
sel_code = [f'v_mov_b32 v{SEL+3}, 0x3f803f80', f'v_and_b32 v{SEL+2}, 7, v1', f'v_cmp_eq_u32 vcc, 0, v{SEL+2}',
            f'v_cmp_eq_u32 s[46:47], 4, v{SEL+2}', f'v_mov_b32 v{IDX}, 0xdddddddd', 's_nop 0',
            f'v_cndmask_b32 v{SEL}, 0, v{SEL+3}, vcc', f'v_cndmask_b32 v{SEL+1}, 0, v{SEL+3}, vcc',
            f'v_cndmask_b32 v{SEL+2}, 0, v{SEL+3}, s[46:47]', f'v_cndmask_b32 v{SEL+3}, 0, v{SEL+3}, s[46:47]']

def p1_compute(A):
    XA, WA = 3, 7
    KXA, KWA, GA, GB, KST, KAC, VAC, GAC = 144, 146, 147, 148, 149, 152, 156, 160
    A('v_lshlrev_b32 v3, 7, v1')
    A('s_and_b32 s30, s2, 0xfe')
    A(f's_add_u32 s30, s30, s{sW}')
    A('s_lshl_b32 s30, s30, 13')
    A(f's_lshr_b32 s29, s{sW}, 1')
    A('s_andn2_b32 s29, s2, s29')
    A('s_bitcmp1_b32 s29, 0')
    A('s_cselect_b32 s30, s30, 0x40000000')
    if 'nopf' in VAR: A('s_mov_b32 s30, 0x40000000')
    A(f's_lshl_b32 s29, s{sW}, 10')
    A('s_and_b32 s29, s29, 1024')
    A(f's_add_u32 m0, s29, {L_GATE}')
    A('s_waitcnt lgkmcnt(0)')
    srd(A, SG, 54, 55, 2048)
    A(f'buffer_load_dwordx4 v2, s[{SG}:{SG+3}], s29 offen lds')
    if 'cpf' in VAR:
        A('s_getpc_b64 s[62:63]')
        A('CPF_PC:')
        A(f's_lshl_b32 s29, s{sW}, 13')
        A('v_add_u32 v4, s29, v3')
        A('v_min_u32 v4, END2-CPF_PC+3584, v4')
        A('global_load_dword v175, v4, s[62:63] offset:-3584')
    srd(A, SW, 42, 43, 2 << 20)
    srd(A, SWS, 60, 61, WS_BYTES)
    A(f's_lshl_b32 s55, s{sTB}, 8')
    A(f's_add_u32 s55, s55, {WS_FLAG}')
    A(f's_lshl_b32 s29, s{sCB}, 2')
    A(f's_add_u32 s29, s29, s{sW}')
    A('s_cmp_eq_u32 s29, 3')
    A('s_cselect_b32 s29, s55, 0x40000000')
    A('v_lshlrev_b32 v8, 2, v1')
    A('v_mov_b32 v9, 0')
    A(f'buffer_store_dword v9, v8, {W}, s29 offen sc1')
    A(f'buffer_load_dword v0, v3, s[{SW}:{SW+3}], s30 offen')
    A('v_and_b32 v8, 15, v1')
    A(f's_and_b32 s29, s{sW}, 1')
    A('s_lshl_b32 s29, s29, 4')
    A('v_add_u32 v8, s29, v8')
    A('v_lshrrev_b32 v9, 4, v1')
    A('v_bfe_u32 v10, v8, 1, 3')
    A('v_xor_b32 v10, v10, v9')
    A('v_lshlrev_b32 v8, 7, v8')
    A(f'v_lshl_add_u32 v{KXA}, v10, 4, v8')
    A('v_xor_b32 v10, 4, v10')
    A(f'v_lshl_add_u32 v{KXA+1}, v10, 4, v8')
    A('v_bfe_u32 v11, v1, 2, 2')
    A('v_and_b32 v14, 3, v1')
    A('v_lshl_add_u32 v12, v9, 3, v11')
    A('v_lshlrev_b32 v12, 6, v12')
    A('v_lshl_add_u32 v12, v14, 3, v12')
    A(f's_lshr_b32 s29, s{sW}, 1')
    A('s_lshl_b32 s29, s29, 5')
    A(f'v_add_u32 v{KWA}, s29, v12')
    A(f'v_lshlrev_b32 v{GB}, 4, v9')
    A(f'v_add_u32 v{GB}, {L_GATE}, v{GB}')
    A('s_lshl_b32 s29, s28, 8')
    A(f'v_add_u32 v{GA}, s29, v{GB}')
    for r in range(12):
        A(f'v_mov_b32 v{KAC+r}, 0')
    A('v_and_b32 v8, 15, v1')
    A('v_bfe_u32 v9, v1, 4, 1')
    A('v_lshrrev_b32 v10, 5, v1')
    A('v_lshl_add_u32 v12, v9, 5, v8')
    A('v_lshlrev_b32 v12, 4, v12')
    A('v_lshl_add_u32 v12, v10, 3, v12')
    A('v_lshl_add_u32 v13, v10, 5, v8')
    A('v_lshlrev_b32 v13, 4, v13')
    A('v_lshl_add_u32 v13, v9, 3, v13')
    A(f's_and_b32 s29, s{sW}, 1')
    A(f's_lshr_b32 s30, s{sW}, 1')
    A('s_lshl_b32 s31, s29, 8')
    A('s_lshl_b32 s32, s30, 10')
    A('s_add_u32 s31, s31, s32')
    A(f'v_add_u32 v{KST}, s31, v12')
    A('s_lshl_b32 s31, s29, 10')
    A('s_lshl_b32 s32, s30, 8')
    A('s_add_u32 s31, s31, s32')
    A(f'v_add_u32 v{KST+1}, s31, v13')
    A(f'v_lshlrev_b32 v{KST+2}, 2, v1')
    A('v_and_b32 v15, 31, v1')
    A('v_lshrrev_b32 v9, 5, v1')
    A('v_bfe_u32 v10, v1, 1, 3')
    A('v_xor_b32 v10, v10, v9')
    A('v_lshlrev_b32 v15, 7, v15')
    A(f's_and_b32 s29, s{sW}, 1')
    A('s_lshl_b32 s29, s29, 13')
    A('v_add_u32 v15, s29, v15')
    for st in range(4):
        A(f'v_xor_b32 v12, {2*st}, v10')
        A(f'v_lshl_add_u32 v{XA+st}, v12, 4, v15')
    A('v_lshl_add_u32 v12, v9, 3, v11')
    A('v_bfe_u32 v13, v1, 4, 1')
    A('v_lshlrev_b32 v13, 5, v13')
    A('v_lshl_add_u32 v13, v14, 3, v13')
    A(f's_and_b32 s30, s{sW}, 2')
    A('v_xor_b32 v14, s30, v11')
    A(f'v_lshl_add_u32 v{WA}, v14, 6, v13')
    A('v_xor_b32 v14, 1, v14')
    A(f'v_lshl_add_u32 v{WA+1}, v14, 6, v13')
    A('v_lshlrev_b32 v14, 8, v12')
    A(f'v_add_u32 v{WA}, v{WA}, v14')
    A(f'v_add_u32 v{WA+1}, v{WA+1}, v14')
    for r in range(SB, SB+64):
        A(f'v_mov_b32 v{r}, 0')
    for r in range(16):
        A(f'v_accvgpr_write_b32 a{AL+r}, 0')
    for r in range(4):
        A(f'v_accvgpr_write_b32 a{AV+12+r}, 0')
    for l in sel_code: A(l)
    A(f's_bfe_u32 s32, s{sCB}, 0x10002')
    A('s_lshl_b32 s37, s32, 31')
    A('s_lshl_b32 s31, s32, 13')
    A('s_lshl_b32 s32, s32, 18')
    A(f's_lshl_b32 s30, s{sTB}, 2')
    A(f's_and_b32 s29, s{sCB}, 3')
    A('s_add_u32 s30, s30, s29')
    A('s_lshl_b32 s35, s30, 12')
    A('s_add_u32 s35, s35, s32')
    A('s_lshl_b32 s36, s30, 7')
    A('s_add_u32 s36, s36, s31')
    A(f's_and_b32 s31, s{sW}, 1')
    A('s_lshl_b32 s31, s31, 6')
    A('s_add_u32 s36, s36, s31')
    A(f's_add_u32 s36, s36, {WS_G}')
    A(f's_cmp_lt_u32 s{sW}, 2')
    A('s_cselect_b32 s36, s36, 0x40000000')
    A(f's_xor_b32 s37, s37, {f32bits(-LOG2E):#x}')
    A(f's_lshr_b32 s32, s{sCB}, 3')
    A('s_lshl_b32 s32, s32, 18')
    A(f's_mov_b32 s39, {SLOT}')
    A(f's_cmp_eq_u32 s{sW}, 3')
    A(f's_cselect_b32 s45, {(1<<NSIG)|(1<<NPOLL)|(1<<NCHK):#x}, 0')
    A(f's_lshl_b32 s29, s{sTB}, 2')
    A(f's_and_b32 s30, s{sW}, 1')
    A('s_lshl_b32 s30, s30, 1')
    A('s_add_u32 s29, s29, s30')
    A('s_lshl_b32 s48, s29, 7')
    A('s_lshr_b32 s30, s32, 5')
    A('s_add_u32 s48, s48, s30')
    A(f's_add_u32 s48, s48, {WS_G}')
    A('s_lshl_b32 s50, s29, 17')
    A(f's_lshl_b32 s31, s{sCB}, 2')
    A(f's_and_b32 s29, s{sW}, 2')
    A('s_add_u32 s31, s31, s29')
    A('s_lshl_b32 s31, s31, 10')
    A('s_add_u32 s50, s50, s31')
    A(f's_add_u32 s50, s50, {WS_OF}')
    A('s_add_u32 s51, s50, 0x20000')
    A('s_add_u32 s52, s50, 0x10000')
    A('s_add_u32 s53, s51, 0x10000')
    A('s_mov_b32 s49, 0')
    A('s_mov_b32 s33, 32768')
    stamp(A, 1)
    def rd_list(st):
        sb = OB + 16*st
        def ra(aa, rho): return (f'ds_read_b64_tr_b16 {v(sb+4*aa+2*rho,2)}, v{WA+aa} offset:{16384+st*4096+rho*1024}', (st, 'A', aa))
        def rb(b): return (f'ds_read_b128 {v(sb+8+4*b,4)}, v{XA+st} offset:{b*4096}', (st, 'B', b))
        return [ra(0,0), ra(0,1), rb(0), rb(1), ra(1,0), ra(1,1)]
    allr = [r for st in range(4) for r in rd_list(st)]
    L = Cnt(A, 'lgkmcnt', 15)
    A('s_mov_b32 s38, 0')
    A('s_waitcnt vmcnt(3)' if 'cpf' in VAR else 's_waitcnt vmcnt(2)')
    A('s_barrier')
    A('s_bitcmp1_b32 s2, 0')
    A('s_cbranch_scc1 P1_Q0')
    FB = 16
    def rd(st):
        fb = FB + 16*st
        for rho in range(2):
            L.issue(f'ds_read_b64_tr_b16 {a(fb+2*rho,2)}, v{KWA} offset:{8192+st*2048+rho*256}', ('k', st))
        L.issue(f'ds_read_b128 {a(fb+8,4)}, v{KXA+(st&1)} offset:{(st>>1)*4096}', ('k', st))
        for rho in range(2):
            L.issue(f'ds_read_b64_tr_b16 {a(fb+4+2*rho,2)}, v{KWA} offset:{16384+st*2048+rho*256}', ('k', st))
        L.issue(f'ds_read_b128 {a(fb+12,4)}, v{GA} offset:{st*64}', ('k', st))
    def mm(st):
        fb = FB + 16*st
        L.need(('k', st))
        A(f'v_mfma_f32_16x16x32_bf16 {v(KAC,4)}, {a(fb,4)}, {a(fb+8,4)}, {v(KAC,4)}')
        A(f'v_mfma_f32_16x16x32_bf16 {v(VAC,4)}, {a(fb+8,4)}, {a(fb+4,4)}, {v(VAC,4)}')
        A(f'v_mfma_f32_16x16x32_bf16 {v(GAC,4)}, {a(fb+12,4)}, {a(fb+8,4)}, {v(GAC,4)}')
    for st in range(2): rd(st)
    A('KV_LOOP:')
    q0 = list(L.q)
    for st in range(2):
        mm(st)
        rd(st + 2)
    A('s_and_b32 s29, s38, 3')
    A('s_cmp_eq_u32 s29, 3')
    A(f's_cselect_b32 s29, {(-3*SLOT) & 0xffffffff:#x}, s39')
    for r in (KXA, KXA+1, KWA):
        A(f'v_add_u32 v{r}, s29, v{r}')
    A('s_add_u32 s28, s28, 1')
    A('s_and_b32 s28, s28, 7')
    A('s_lshl_b32 s29, s28, 8')
    A(f'v_add_u32 v{GA}, s29, v{GB}')
    A('s_add_u32 s38, s38, 1')
    A('s_cmp_lt_u32 s38, 8')
    L.drain()
    A('s_cbranch_scc0 KV_TAIL')
    A('s_barrier')
    for st in range(2, 4):
        rd(st - 2)
        mm(st)
    assert L.q == q0
    A('s_branch KV_LOOP')
    A('KV_TAIL:')
    L.q = []
    mm(2)
    mm(3)
    for r in range(4):
        A(f'v_accvgpr_write_b32 a{AV+12+r}, 0')
    A('s_nop 1')
    A(f's_mov_b32 s31, {f32bits(QK_SCALE):#x}')
    for r in range(4):
        A(f'v_mul_f32 v{KAC+r}, s31, v{KAC+r}')
    A(f'v_mul_f32 v{GAC}, s37, v{GAC}')
    A(f'v_cvt_pk_bf16_f32 v{VAC}, v{VAC}, v{VAC+1}')
    A(f'v_exp_f32 v{GAC}, v{GAC}')
    A(f'v_cvt_pk_bf16_f32 v{VAC+1}, v{VAC+2}, v{VAC+3}')
    A(f'v_add_f32 v{GAC}, 1.0, v{GAC}')
    A(f'v_cvt_pk_bf16_f32 v{KAC}, v{KAC}, v{KAC+1}')
    A(f'v_rcp_f32 v{GAC}, v{GAC}')
    A(f'v_cvt_pk_bf16_f32 v{KAC+1}, v{KAC+2}, v{KAC+3}')
    A(f'buffer_store_dwordx2 {v(VAC,2)}, v{KST+1}, {W}, s35 offen offset:2048 sc1')
    A(f'buffer_store_dwordx2 {v(KAC,2)}, v{KST}, {W}, s35 offen sc1')
    A('s_mov_b64 exec, 0xffff')
    A(f'buffer_store_dword v{GAC}, v{KST+2}, {W}, s36 offen sc1')
    A('s_mov_b64 exec, -1')
    A('s_barrier')
    A('P1_Q0:')
    for r in allr[:15]: A(r[0])
    A('P1_Q:')
    stamp(A, 2)
    def group(st, rds, other=(), nother=2):
        rds = list(rds); other = list(other)
        sb = OB + 16*st
        for aa in range(2):
            for b in range(2):
                acc = SB + 16*(aa*2+b)
                L.need((st, 'A', aa), (st, 'B', b))
                if 'hack16' in VAR:
                    q = acc + 8*(st&1)
                    A(f'v_mfma_f32_16x16x32_bf16 {v(q,4)}, {v(sb+4*aa,4)}, {v(sb+8+4*b,4)}, {v(q,4)}')
                    if rds: L.issue(*rds.pop(0))
                    A(f'v_mfma_f32_16x16x32_bf16 {v(q+4,4)}, {v(sb+8+4*b,4)}, {v(sb+4*aa,4)}, {v(q+4,4)}')
                    if rds: L.issue(*rds.pop(0))
                else:
                  A(f'v_mfma_f32_32x32x16_bf16 {v(acc,16)}, {v(sb+4*aa,4)}, {v(sb+8+4*b,4)}, {v(acc,16)}')
                  for _ in range(2):
                    if rds: L.issue(*rds.pop(0))
                for _ in range(nother):
                    if other: A(other.pop(0))
        assert not rds
        for o in other: A(o)
    L.q = []
    A('s_mov_b32 s38, 0')
    L.q = [r[1] for r in allr[:15]]
    L.issue(*allr[15])
    adr = [f'v_add_u32 v{r}, s29, v{r}' for r in (XA, XA+1, XA+2, XA+3, WA, WA+1)]
    def stage(mode, extra=()):
        L.need(*[r[1] for r in allr[:8]])
        group(0, allr[16:24], ['s_and_b32 s29, s38, 3', 's_cmp_eq_u32 s29, 3', f's_cselect_b32 s29, {(-3*SLOT) & 0xffffffff:#x}, s39',
                               's_add_u32 s38, s38, 1', f's_cmp_eq_u32 s38, {NSIG}' if mode == 'loop' else ''])
        if mode == 'last':
            z = [f'v_mov_b32 v{OB+r}, 0' for r in range(64)]
            L.need(*[r[1] for r in allr[8:16]])
            group(1, [], list(extra) + z[:16], 5)
            L.drain()
            A('s_barrier')
            for r in kvr(0, 0): A(r)
            cv = [[f'v_cvt_pk_bf16_f32 v{QB+8*t+i}, v{SB+16*t+2*i}, v{SB+16*t+2*i+1}' for i in range(8)] for t in range(4)]
            fill = z[16:32] + ['', '', '', ''] + cv[0] + ['', ''] + cv[1] + ['', '']
            for t in range(4):
                aa, b = t >> 1, t & 1
                for st in (2, 3):
                    sb = OB + 16*st
                    A(f'v_mfma_f32_32x32x16_bf16 {v(SB+16*t,16)}, {v(sb+4*aa,4)}, {v(sb+8+4*b,4)}, {v(SB+16*t,16)}')
                    for _ in range(5):
                        if fill: A(fill.pop(0))
            assert not fill
            A('s_waitcnt lgkmcnt(0)')
            A(qk(0, 0, 0))
            for l in cv[2]: A(l)
            A(qk(0, 0, 1))
            for l in z[32:]: A(l)
            for l in cv[3]: A(l)
            for r in range(8):
                A(f'v_mov_b32 v{SB+48+8+r}, 0')
            return
        L.need(*[r[1] for r in allr[8:16]])
        group(1, [], list(extra) + adr, 3)
        if mode == 'loop':
            A('s_cbranch_scc1 Q_PRE')
            A('Q_PRE_RET:')
        L.drain()
        A('s_barrier')
        group(2, allr[0:8], ['', '', '', '', '', '', 's_bitcmp1_b32 s45, s38', 's_cbranch_scc1 Q_POST\nQ_POST_RET:'] if mode == 'loop' else [])
        group(3, allr[8:16])
    A('Q_LOOP:')
    q0 = list(L.q)
    stage('loop')
    assert L.q == q0, (L.q, q0)
    A('s_cmp_lt_u32 s38, 15')
    A('s_cbranch_scc1 Q_LOOP')
    T = A
    A('s_branch Q_LAST')
    T('Q_PRE:')
    T('s_waitcnt vmcnt(0)')
    T('s_branch Q_PRE_RET')
    T('Q_POST:')
    T(f's_cmp_eq_u32 s38, {NPOLL}')
    T('s_cbranch_scc1 Q_POLL')
    T(f's_cmp_eq_u32 s38, {NCHK}')
    T('s_cbranch_scc1 Q_CHECK')
    T('s_and_b32 s30, s2, 1')
    T('s_lshl_b32 s30, s30, 7')
    T('v_mov_b32 v0, s30')
    T('v_mov_b32 v11, 1')
    T('s_mov_b64 exec, 1')
    T(f'global_atomic_add v0, v11, s[{DBG}:{DBG+1}] sc1')
    T('s_mov_b64 exec, -1')
    T('s_branch Q_POST_RET')
    T('Q_POLL:')
    T('v_and_b32 v0, 1, v1')
    T('v_lshlrev_b32 v0, 7, v0')
    T('v_mov_b32 v11, 128')
    T(f'global_load_dword v10, v0, s[{DBG}:{DBG+1}] sc1')
    T('s_branch Q_POST_RET')
    T('Q_CHECK:')
    T('s_waitcnt vmcnt(0)')
    T('v_cmp_lt_u32 vcc, v10, v11')
    T('s_nop 1')
    T('s_cbranch_vccz Q_POST_RET')
    poll(T, 'KV', f'global_load_dword v10, v0, s[{DBG}:{DBG+1}] sc1', 11, 8, 'lt')
    T('s_branch Q_POST_RET')
    A('Q_LAST:')
    stage('last', [f'v_add_u32 v0, {L_KVR+32768}, v2', 'v_and_b32 v10, 31, v1', 'v_lshlrev_b32 v10, 2, v10',
                   f'buffer_load_dword v11, v10, {W}, s48 offen offset:128 sc1', f'buffer_load_dword v10, v10, {W}, s48 offen sc1'])
    stamp(A, 3)

def qk(t, kb, half, sb=None):
    sb = t if sb is None else sb
    c = '0' if half == 0 else v(SB+16*sb, 16)
    return f'v_mfma_f32_32x32x16_bf16 {v(SB+16*sb,16)}, {a(AK+8*kb+4*half,4)}, {v(QB+8*t+4*half,4)}, {c}'
def pv(t, vb, half, sb=None):
    sb = t if sb is None else sb
    return f'v_smfmac_f32_32x32x32_bf16 {v(OB+16*t,16)}, {a(AV+8*vb+4*half,4)}, {v(SB+16*sb+8*half,8)}, v{IDX}'
def sm(t, half, sb=None):
    sb = t if sb is None else sb
    return f'v_smfmac_f32_16x16x64_bf16 {a(AL+4*t,4)}, {v(SEL,4)}, {v(SB+16*sb+8*half,8)}, v{IDX}'
def ex(t, i):
    return f'v_exp_f32 v{SB+16*t+i}, v{SB+16*t+i}'

def slot(A, cur, nxt, prv, x):
    t, kb, sb = cur
    A(qk(nxt[0], nxt[1], 0, nxt[2]) if nxt else '')
    A(x.get(0, ''))
    for e in (0, 1, 2): A(ex(sb, e))
    A(qk(nxt[0], nxt[1], 1, nxt[2]) if nxt else '')
    A(x.get(1, ''))
    for e in (3, 4, 5): A(ex(sb, e))
    A(pv(prv[0], prv[1], 1, prv[2]))
    A(x.get(2, ''))
    for e in (6, 7, 8): A(ex(sb, e))
    A(sm(prv[0], 1, prv[2]))
    A(x.get(3, ''))
    for e in (9, 10): A(ex(sb, e))
    A(pv(t, kb, 0, sb))
    A(x.get(4, ''))
    for e in (11, 12, 13): A(ex(sb, e))
    A(sm(t, 0, sb))
    A(x.get(5, ''))
    for e in (14, 15): A(ex(sb, e))

def tile_out(A, t, check):
    aa, b = t >> 1, t & 1
    o = OB + 16*t
    A(f'v_accvgpr_read_b32 v0, a{AL+4*t}')
    A('v_rcp_f32 v8, v0')
    if check:
        A('v_min_f32 v4, v4, v0')
        A('v_max_f32 v5, v5, v0')
        A('v_fma_f32 v6, v0, 0, v6')
    else:
        A('s_nop 0')
    A(f'v_mul_f32 v8, v8, v{10+b}')
    for h in range(2):
        for r in range(8*h, 8*h+8, 2):
            A(f'v_pk_mul_f32 {v(o+r,2)}, {v(o+r,2)}, v[8:9] op_sel_hi:[1,0]')
        if check:
            for r in range(8*h, 8*h+8, 2):
                A(f'v_pk_fma_f32 v[6:7], {v(o+r,2)}, 0, v[6:7]')
        for r in range(4):
            A(f'v_cvt_pk_bf16_f32 v{o+8*h+r}, v{o+8*h+2*r}, v{o+8*h+2*r+1}')
        A(f'buffer_store_dwordx4 {v(o+8*h,4)}, v2, {W}, s{50+t} offen offset:{h*1024} sc1')

def check(A):
    A(f'v_cmp_gt_f32 vcc, {f32bits(2.0**-16):#x}, v4')
    A(f's_mov_b32 s29, {f32bits(2.0**64):#x}')
    A('v_cmp_lt_f32 s[46:47], s29, v5')
    A('v_cmp_u_f32 s[30:31], v6, v7')
    A('s_nop 1')
    A('s_or_b64 s[46:47], s[46:47], vcc')
    A('s_or_b64 s[46:47], s[46:47], s[30:31]')
    if 'forceslow' in VAR:
        A('s_cmp_eq_u32 0, 0')
def signal(A, off):
    A('v_mov_b32 v8, 0')
    A('v_mov_b32 v0, 1')
    A('s_mov_b64 exec, 1')
    A(f'buffer_atomic_add v0, v8, {W}, s55 offen offset:{off} sc1')
    A('s_mov_b64 exec, -1')

def attention(A):
    A(f's_mov_b32 s36, {16-CT}')
    A(f'v_add_u32 v3, {L_KVR}, v2')
    A('v_mov_b32 v4, 1.0')
    A('v_mov_b32 v5, 1.0')
    A('v_mov_b32 v6, 0')
    A('v_mov_b32 v7, 0')
    stamp(A, 4)
    A('.p2align 6')
    A('AT_LOOP:')
    for i in range(4):
        for t in range(4):
            nt, nb = (t+1) % 4, ((i if t < 3 else i+1) % 2)
            pt, pb = (t-1) % 4, ((i if t > 0 else i-1) % 2)
            x = {3: kvr((i+1) % 4, (i+1) % 2)[t]}
            if t == 0: x[0] = 's_waitcnt lgkmcnt(0)' + ('\ns_barrier' if i == 3 else '')
            if t == 2 and i == 3: x[1] = 's_sub_u32 s36, s36, 1'
            if t == 1 and i == 2: x[1] = 's_add_u32 s33, s33, 16384'
            if t == 2 and i == 2: x[1] = 's_and_b32 s33, s33, 0xffff'
            if t == 0 and i == 3: x[2] = 'v_add_u32 v0, s33, v3'
            if t == 2: x[5] = 's_waitcnt lgkmcnt(1)'
            if t == 3 and i == 3: x[5] = 's_cmp_lg_u32 s36, 0'
            slot(A, (t, i % 2, t), (nt, nb, nt), (pt, pb, pt), x)
    A('s_cbranch_scc1 AT_LOOP')
    NS = 4*CT
    def kvt(g):
        st = g % NS
        c = 16 - CT + st//4
        off = ((c+2) & 3)*16384 + (st % 4)*4096
        b = g % 4
        return [f'ds_read_b128 {a(AK+8*b,4)}, v3 offset:{off}', f'ds_read_b128 {a(AK+8*b+4,4)}, v3 offset:{off+1024}',
                f'ds_read_b128 {a(AV+8*b,4)}, v3 offset:{off+2048}', f'ds_read_b128 {a(AV+8*b+4,4)}, v3 offset:{off+3072}']
    seq = [(2*(g//NS) + j, g % 4) for g in range(2*NS) for j in range(2)]
    seq = [(t, b, n % 4) for n, (t, b) in enumerate(seq)]
    N = len(seq)
    for n in range(N):
        g, j = n//2, n % 2
        x = {}
        if n == 0:
            r1, r2 = kvt(1), kvt(2)
            x[0] = 's_waitcnt lgkmcnt(0)\n' + r1[0]
            x[1] = r1[1]
            x[3] = r1[2] + '\n' + r1[3]
            x[5] = r2[0] + '\n' + r2[1] + '\ns_waitcnt lgkmcnt(4)'
        elif n == 1:
            x[3] = r2[2]
            x[5] = r2[3]
        else:
            if g + 2 < 2*NS:
                r = kvt(g+2)
                x[3] = r[2*j]
                x[5] = r[2*j+1]
            if j == 0: x[0] = 's_waitcnt lgkmcnt(2)' if g + 1 < 2*NS else 's_waitcnt lgkmcnt(0)'
        if n == 2: x[1] = 's_waitcnt vmcnt(0)'
        if CT == 4 and n == 17: x[1] = 's_barrier'
        slot(A, seq[n], seq[n+1] if n < N-1 else None, seq[n-1] if n else (3, 1, 3), x)
        if n == N//2 - 1: tile_out(A, 0, True)
        if n == N//2:
            tile_out(A, 1, True)
            check(A)
            A('s_cselect_b32 s54, 1, 0')
        if n == N//2 + 5:
            A('s_waitcnt vmcnt(0)')
            A('s_cmp_lg_u32 s54, 0')
            A('s_cbranch_scc1 AT_NOSIG')
            signal(A, 0)
            A('AT_NOSIG:')
    stamp(A, 5)
    A('s_nop 1')
    A(sm(3, 1, 3))
    A(pv(3, 3, 1, 3))
    tile_out(A, 2, True)
    tile_out(A, 3, True)
    check(A)
    A('s_cbranch_scc1 AT_SLOW')
    A('AT_DONE:')
    S = Asm()
    S('AT_SLOW:')
    S('s_waitcnt vmcnt(0)')
    for t in range(4):
        S(f'v_mov_b32 v{4+t}, 0xff800000')
    S('s_mov_b32 s34, s32')
    S('s_mov_b32 s36, 64')
    S('SL_MAX:')
    for l in kv_loads(0)[:2]: S(l)
    S('s_waitcnt vmcnt(0)')
    for t in range(4):
        S(qk(t, 0, 0)); S(qk(t, 0, 1))
    S('s_nop 15')
    for t in range(4):
        for r in range(0, 16, 2):
            S(f'v_max3_f32 v{4+t}, v{4+t}, v{SB+16*t+r}, v{SB+16*t+r+1}')
    S('s_add_u32 s34, s34, 4096')
    S('s_sub_u32 s36, s36, 1')
    S('s_cmp_lg_u32 s36, 0')
    S('s_cbranch_scc1 SL_MAX')
    for t in range(4):
        S(f'v_mov_b32 v8, v{4+t}')
        S('s_nop 1')
        S(f'v_permlane32_swap_b32 v8, v{4+t}')
        S('s_nop 1')
        S(f'v_max_f32 v{4+t}, v{4+t}, v8')
    for r in range(16):
        S(f'v_accvgpr_write_b32 a{AL+r}, 0')
    for r in range(64):
        S(f'v_mov_b32 v{OB+r}, 0')
    S('s_mov_b32 s34, s32')
    S('s_mov_b32 s36, 64')
    S('SL_ACC:')
    for l in kv_loads(0): S(l)
    S('s_waitcnt vmcnt(0)')
    for t in range(4):
        S(qk(t, 0, 0)); S(qk(t, 0, 1))
    S('s_nop 15')
    for t in range(4):
        for r in range(16):
            S(f'v_sub_f32 v{SB+16*t+r}, v{SB+16*t+r}, v{4+t}')
        for r in range(16):
            S(ex(t, r))
    S('s_nop 3')
    for t in range(4):
        for h in range(2):
            S(pv(t, 0, h)); S(sm(t, h))
    S('s_add_u32 s34, s34, 4096')
    S('s_sub_u32 s36, s36, 1')
    S('s_cmp_lg_u32 s36, 0')
    S('s_cbranch_scc1 SL_ACC')
    S('s_nop 15')
    for t in range(4):
        tile_out(S, t, False)
    S('s_cmp_eq_u32 s54, 0')
    S('s_cbranch_scc1 AT_DONE')
    S('s_waitcnt vmcnt(0)')
    signal(S, 0)
    S('s_branch AT_DONE')
    tail.extend(S.lines)

def p3_compute(A):
    WB, ACC = 16, 48
    def oreg(slot, st):
        i = 32*slot + 4*st
        i = (i + 64) % 128
        return v(80+i, 4) if i < 96 else a(i-96, 4)
    A(f's_lshl_b32 s35, s{sTB}, 2')
    A(f's_add_u32 s35, s35, s{sW}')
    A('s_lshl_b32 s36, s35, 17')
    A(f's_add_u32 s36, s36, {WS_OF}')
    A('s_bfe_u32 s32, s2, 0x20001')
    A(f's_lshr_b32 s37, s{sCB}, 3')
    A('s_lshl_b32 s37, s37, 2')
    A('s_add_u32 s37, s37, s32')
    A('s_lshl_b32 s37, s37, 13')
    A('v_add_u32 v3, 4096, v2')
    V = Cnt(A, 'vmcnt', 63)
    L = Cnt(A, 'lgkmcnt', 15)
    LK = opt('lk', 2)
    def oload(slot, st):
        return (f'buffer_load_dwordx4 {oreg(slot,st)}, v{2+st//4}, {W}, s30 offen offset:{(st%4)*1024} sc1', ('O', slot, st))
    adv = ['s_add_u32 s37, s37, 8192', 's_and_b32 s37, s37, 0xffff', 's_add_u32 s30, s36, s37']
    A(adv[2])
    def wr(slot, st):
        out = []
        for ct in range(2):
            for rho in range(2):
                out.append((f'ds_read_b64_tr_b16 {v(WB+8*(st%4)+4*ct+2*rho,2)}, v{5+ct} offset:{slot*16384+st*2048+rho*1024}', ('W', st%4, ct)))
        return out
    LA = 2
    stamp(A, 6)
    A('s_barrier')
    stamp(A, 7)
    for st in range(8): V.issue(*oload(0, st))
    for x in adv: A(x)
    A('v_bfe_u32 v8, v1, 2, 2')
    A('v_lshrrev_b32 v9, 5, v1')
    A('v_lshl_add_u32 v9, v9, 2, v8')
    A('v_lshlrev_b32 v9, 7, v9')
    A('v_bfe_u32 v10, v1, 4, 1')
    A('v_lshl_add_u32 v9, v10, 5, v9')
    A('v_and_b32 v10, 3, v1')
    A('v_lshl_add_u32 v9, v10, 3, v9')
    A('v_lshrrev_b32 v8, 1, v8')
    A('v_lshl_add_u32 v5, v8, 6, v9')
    A('v_xor_b32 v8, 1, v8')
    A('v_lshl_add_u32 v6, v8, 6, v9')
    for r in range(32):
        A(f'v_mov_b32 v{ACC+r}, 0')
    A('s_mov_b32 s38, 0')
    srd(A, SOUT, 56, 57, 4 << 20)
    for st in range(LA):
        for r in wr(0, st): L.issue(*r)
    for sl in range(1, LK):
        for st in range(8): V.issue(*oload(sl, st))
        for x in adv: A(x)
    A('P3_LOOP:')
    q0, v0 = list(L.q), list(V.q)
    for slot in range(4):
        for st in range(8):
            nst = st + LA
            if nst == 8:
                L.drain()
                A('s_barrier')
                if slot == 3:
                    A('v_xor_b32 v5, 0x10000, v5')
                    A('v_xor_b32 v6, 0x10000, v6')
            rds = wr(slot, nst) if nst < 8 else wr((slot+1) % 4, nst-8)
            for ct in range(2):
                L.need(('W', st%4, ct))
                V.need(('O', slot, st))
                if 'hack16' in VAR:
                    q = ACC+16*ct+8*(st&1)
                    A(f'v_mfma_f32_16x16x32_bf16 {v(q,4)}, {v(WB+8*(st%4)+4*ct,4)}, {oreg(slot,st)}, {v(q,4)}')
                    L.issue(*rds[2*ct])
                    A(f'v_mfma_f32_16x16x32_bf16 {v(q+4,4)}, {oreg(slot,st)}, {v(WB+8*(st%4)+4*ct,4)}, {v(q+4,4)}')
                    L.issue(*rds[2*ct+1])
                else:
                    A(f'v_mfma_f32_32x32x16_bf16 {v(ACC+16*ct,16)}, {v(WB+8*(st%4)+4*ct,4)}, {oreg(slot,st)}, {v(ACC+16*ct,16)}')
                    L.issue(*rds[2*ct]); L.issue(*rds[2*ct+1])
                if ct == 0:
                    if slot == 4-LK and st == 0:
                        A('s_cmp_eq_u32 s38, 3')
                        A(f's_cselect_b32 s{SWS+2}, 0, s{SWS+2}')
                    V.issue(*oload((slot+LK) % 4, st))
                elif st == 7:
                    if slot == 3-LK:
                        A('s_cmp_eq_u32 s38, 1')
                        A('s_cselect_b32 s29, 0x10000, 0')
                        A('s_add_u32 s36, s36, s29')
                    for x in adv: A(x)
                elif st == 3 and slot == opt('sig', 1):
                    signal(A, 128)
                    A('s_mov_b32 s55, 0x40000000')
    A('s_add_u32 s38, s38, 1')
    A('s_cmp_lt_u32 s38, 4')
    assert L.q == q0, (L.q, q0)
    assert V.q == v0, (V.q, v0)
    A('s_cbranch_scc1 P3_LOOP')
    stamp(A, 8)
    A('v_and_b32 v8, 31, v1')
    A('v_lshlrev_b32 v8, 11, v8')
    A('v_lshrrev_b32 v9, 5, v1')
    A('v_lshl_add_u32 v8, v9, 4, v8')
    A('s_lshl_b32 s29, s35, 16')
    A(f's_lshl_b32 s30, s{sCB}, 7')
    A('s_add_u32 s29, s29, s30')
    A('s_nop 6')
    D = 80
    A('s_waitcnt vmcnt(0)')
    for ct in range(2):
        for g in range(4):
            b = ACC+16*ct+4*g
            d = D+8*ct+2*g
            A(f'v_cvt_pk_bf16_f32 v{d}, v{b}, v{b+1}')
            A(f'v_cvt_pk_bf16_f32 v{d+1}, v{b+2}, v{b+3}')
    A('s_nop 1')
    for j in range(4):
        d = D+4*j
        A(f'v_permlane32_swap_b32 v{d}, v{d+2}')
        A(f'v_permlane32_swap_b32 v{d+1}, v{d+3}')
        A(f'buffer_store_dwordx4 {v(d,4)}, v8, s[{SOUT}:{SOUT+3}], s29 offen offset:{j*32}' + (' sc1' if 'outsc1' in VAR else '') + (' nt' if 'outnt' in VAR else ''))

def build():
    ref = open(f'cdna_kernels/{NAME}.s.ref').read().split('\n')
    head = [l for l in ref if l.startswith(';') and '@launch' not in l and 'Override' not in l and 'grid=ceil' not in l]
    out = '\n'.join(head) + '\n'
    if 'aslist' in VAR:
        out += f'; @launch kernel={KNAME} grid=(256,1,1) block=(512,1,1) lds={LDS_BYTES}\n'
    else:
        out += f'; @launch grid=(256,1,1) block=(512,1,1) lds={LDS_BYTES}\n'
    out += '.amdgcn_target "amdgcn-amd-amdhsa--gfx950"\n.text\n'
    A = Asm()
    kernel(A)
    out += A.text()
    out += '.section .rodata,"a"\n' + kd(KNAME, 256, NARCH)
    return out

if __name__ == '__main__':
    args = [x for x in sys.argv[1:] if not x.startswith('--')]
    if '--instr' in sys.argv: INSTR = True
    if '--lst' in sys.argv: LST = True
    if '--ct4' in sys.argv: CT = 4
    for x in sys.argv:
        if x.startswith('--var='): VAR = x[6:]
    dst = args[0] if args else f'cdna_kernels/{NAME}.s'
    open(dst, 'w').write(build())
```

```python
import math, sys
from asmlib import *

NAME = 'gated_mix__grouped_kv_mqa__grouped_kv_mqa__prompt'
KNAME = NAME + '_kernel'
WS_KV = 0
WS_G = 512 << 10
WS_FLAG = 576 << 10
WS_OF = 1 << 20
CT = 4
WS_BYTES = 9 << 20
QK_SCALE = math.log2(math.e) / math.sqrt(32.0)
LOG2E = math.log2(math.e)
INSTR = False
LST = False
VAR = ''
WS_DBG = 32 << 20
WS_DBG2 = 40 << 20

SLOT = 32768
L_GATE = 4 * SLOT
LDS_BYTES = 163840
L_KVR = 98304

SX, SW, SKV, SWS, SG = 4, 8, 12, 16, 20
SWO, SOUT = 8, 12
sW, sTB, sCB, sST = 24, 25, 26, 27
W = f's[{SWS}:{SWS+3}]'
DBG = 58
NARCH = 176
SB, OB = 16, 80
AL, AK, AV = 0, 16, 48
QB = 144
IDX, SEL = 9, 12
NSIG, NPOLL, NCHK = 2, 11, 13

def opt(name, default):
    for tok in VAR.split('_'):
        if tok.startswith(name) and tok[len(name):].isdigit():
            return int(tok[len(name):])
    return default

def srd(A, d, lo, hi, nbytes):
    A(f's_mov_b32 s{d}, s{lo}')
    A(f's_and_b32 s{d+1}, s{hi}, 0xffff')
    A(f's_mov_b32 s{d+2}, {nbytes:#x}')
    A(f's_mov_b32 s{d+3}, 0x20000')

def stamp(A, i):
    if INSTR:
        A(f's_mem{"time" if "allcyc" in VAR else "realtime"} s[{64+2*i}:{65+2*i}]')
NST = 10
def stamp_end(A):
    if opt('echo', None) is not None:
        e = opt('echo', 0); i, j = e // 10, e % 10
        A('s_waitcnt vmcnt(0) lgkmcnt(0)')
        stamp(A, NST-1)
        A('s_waitcnt lgkmcnt(0)')
        A(f's_sub_u32 s29, s{64+2*j}, s{64+2*i}')
        A('ECHO:')
        A('s_memrealtime s[30:31]')
        A('s_waitcnt lgkmcnt(0)')
        A(f's_sub_u32 s30, s30, s{64+2*(NST-1)}')
        A('s_cmp_lt_u32 s30, s29')
        A('s_cbranch_scc1 ECHO')
        return
    if not INSTR: return
    A('s_waitcnt vmcnt(0) lgkmcnt(0)')
    stamp(A, NST-1)
    A('s_getreg_b32 s62, hwreg(HW_REG_XCC_ID)')
    A('s_waitcnt lgkmcnt(0)')
    A('s_mov_b64 exec, 1')
    A('s_lshl_b32 s63, s2, 2')
    A(f's_add_u32 s63, s63, s{sW}')
    A('s_lshl_b32 s63, s63, 6')
    A(f's_add_u32 s63, s63, {WS_DBG}')
    A('v_mov_b32 v0, s63')
    for i in range(NST):
        A(f'v_mov_b32 v1, s{64+2*i}')
        A(f'global_store_dword v0, v1, s[60:61] offset:{4*i}')
    A('v_mov_b32 v1, s62')
    A(f'global_store_dword v0, v1, s[60:61] offset:{4*NST}')
    A('s_waitcnt vmcnt(0)')
def lstamp(A, vreg, idx):
    if not LST: return
    A('s_memtime s[64:65]' if ('cyc' in VAR and vreg == 32) else 's_memrealtime s[64:65]')
    A('s_waitcnt lgkmcnt(0)')
    if isinstance(idx, str):
        A(f's_mov_b32 m0, {idx}')
        A(f'v_writelane_b32 v{vreg}, s64, m0')
    else:
        A(f'v_writelane_b32 v{vreg}, s64, {idx}')
def ldump(A):
    if not LST: return
    A('s_lshl_b32 s80, s2, 2')
    A(f's_add_u32 s80, s80, s{sW}')
    A('s_lshl_b32 s80, s80, 10')
    A(f's_add_u32 s80, s80, {WS_DBG2}')
    A('v_lshlrev_b32 v0, 2, v1')
    A('v_add_u32 v0, s80, v0')
    A('global_store_dword v0, v30, s[60:61]')
    A('global_store_dword v0, v31, s[60:61] offset:256')
    A('global_store_dword v0, v32, s[60:61] offset:512')
    A('s_waitcnt vmcnt(0)')

def poll(A, tag, load, vwant, sleep, cmp='ne'):
    A('s_mov_b32 s30, 0x40000')
    A(f'POLL_{tag}:')
    A(load)
    A('s_waitcnt vmcnt(0)')
    A(f'v_cmp_{cmp}_u32 vcc, v10, v{vwant}')
    A('s_sub_u32 s30, s30, 1')
    A(f's_cbranch_scc1 POLLD_{tag}')
    A(f's_cbranch_vccz POLLD_{tag}')
    A(f's_sleep {sleep}')
    A(f's_branch POLL_{tag}')
    A(f'POLLD_{tag}:')

tail = []

def kernel(A):
    A(f'.globl {KNAME}\n.p2align 8\n.type {KNAME},@function\n{KNAME}:')
    A('s_cmp_ge_u32 s2, 256')
    A('s_cbranch_scc1 END2')
    stamp(A, 0)
    if 'flip' in VAR: A('s_xor_b32 s2, s2, 1')
    A('s_load_dwordx4 s[40:43], s[0:1], 0')
    A('s_load_dwordx4 s[44:47], s[0:1], 16')
    A('s_load_dwordx4 s[48:51], s[0:1], 48')
    A('s_load_dwordx2 s[52:53], s[0:1], 64')
    A('s_load_dwordx2 s[54:55], s[0:1], 80')
    A('s_load_dwordx4 s[56:59], s[0:1], 88')
    A('s_load_dwordx2 s[60:61], s[0:1], 104')
    A('v_lshrrev_b32 v8, 6, v0')
    A('v_and_b32 v1, 63, v0')
    A(f'v_readfirstlane_b32 s{sW}, v8')
    A('s_and_b32 s29, s2, 1')
    A('s_lshl_b32 s29, s29, 3')
    A('s_bfe_u32 s30, s2, 0x30003')
    A(f's_add_u32 s{sCB}, s29, s30')
    A('s_bfe_u32 s28, s2, 0x20001')
    A('s_lshl_b32 s31, s28, 2')
    A('s_lshr_b32 s32, s2, 6')
    A(f's_add_u32 s{sTB}, s31, s32')
    A('s_lshl_b32 s29, s32, 1')
    A('s_add_u32 s28, s28, s29')
    A('s_and_b32 s29, s30, 4')
    A('s_add_u32 s28, s28, s29')
    A('s_and_b32 s28, s28, 7')
    A(f's_and_b32 s{sST}, s2, 7')
    A(f's_lshl_b32 s{sST}, s{sST}, 1')
    A('v_lshlrev_b32 v2, 4, v1')
    A(f's_cmp_lt_u32 s{sW}, 4')
    A('s_cbranch_scc1 COMPUTE')
    helper(A)
    A('COMPUTE:')
    p1_compute(A)
    attention(A)
    p3_compute(A)
    A('END:')
    stamp_end(A)
    A('END2:')
    A('s_endpgm')
    A.lines += tail

def helper(A):
    A(f's_sub_u32 s{sW}, s{sW}, 4')
    A('v_lshrrev_b32 v8, 3, v1')
    A('v_lshlrev_b32 v8, 11, v8')
    A('v_lshrrev_b32 v9, 4, v1')
    A('v_and_b32 v10, 7, v1')
    A('v_xor_b32 v10, v10, v9')
    A('v_lshl_add_u32 v16, v10, 4, v8')
    A('v_xor_b32 v10, 4, v10')
    A('v_lshl_add_u32 v17, v10, 4, v8')
    A('v_add_u32 v17, 15360, v17')
    A('v_add_u32 v18, 30720, v16')
    A('v_add_u32 v19, 30720, v17')
    A(f's_lshl_b32 s34, s{sTB}, 18')
    A(f's_lshl_b32 s36, s{sW}, 12')
    A('s_mov_b32 s38, 0')
    A('s_bitcmp1_b32 s2, 0')
    A('s_cbranch_scc1 H_ODD')
    A(f's_and_b32 s29, s{sCB}, 3')
    A('s_lshl_b32 s29, s29, 16')
    A('s_add_u32 s33, s34, s29')
    A(f's_and_b32 s29, s{sW}, 1')
    A('s_lshl_b32 s29, s29, 15')
    A('s_add_u32 s33, s33, s29')
    A(f's_lshr_b32 s29, s{sW}, 1')
    A('s_lshl_b32 s29, s29, 7')
    A('s_add_u32 s33, s33, s29')
    A(f's_lshl_b32 s35, s{sW}, 11')
    A('s_mov_b32 s37, s35')
    A('s_waitcnt lgkmcnt(0)')
    srd(A, SX, 40, 41, 4 << 20)
    A(f's_bitcmp1_b32 s{sCB}, 2')
    A('s_cselect_b32 s44, s50, s44')
    A('s_cselect_b32 s45, s51, s45')
    A('s_cselect_b32 s46, s52, s46')
    A('s_cselect_b32 s47, s53, s47')
    srd(A, SKV, 44, 45, 65536)
    srd(A, SG, 46, 47, 65536)
    lstamp(A, 30, 20)
    A('H_KV:')
    A('s_cmp_lt_u32 s38, 3')
    A('s_cbranch_scc1 H_KV2')
    A('s_waitcnt vmcnt(12)')
    A('s_barrier')
    A('H_KV2:')
    if LST: A('s_add_u32 s49, s38, 48')
    lstamp(A, 31, 's49')
    A('s_lshl_b32 s29, s28, 8')
    A('s_add_u32 s29, s29, s33')
    A('s_mov_b32 m0, s37')
    A('s_lshl_b32 s30, s28, 13')
    for i in range(2):
        A(f'buffer_load_dwordx4 v{16+i}, s[{SX}:{SX+3}], s29 offen offset:{i*1024} lds')
    A('s_add_u32 m0, s37, 8192')
    A('s_add_u32 s30, s30, s35')
    for i in range(2):
        A(f'buffer_load_dwordx4 v2, s[{SKV}:{SKV+3}], s30 offen offset:{i*1024} lds')
    A('s_add_u32 m0, s37, 16384')
    A('s_add_u32 s28, s28, 1')
    for i in range(2):
        A(f'buffer_load_dwordx4 v2, s[{SG}:{SG+3}], s30 offen offset:{i*1024} lds')
    lstamp(A, 30, 's49')
    A('s_and_b32 s28, s28, 7')
    A(f's_add_u32 s37, s37, {SLOT}')
    A(f's_and_b32 s37, s37, {4*SLOT-1:#x}')
    A('s_add_u32 s38, s38, 1')
    A('s_cmp_lt_u32 s38, 8')
    A('s_cbranch_scc1 H_KV')
    A('s_mov_b32 s38, 0')
    A('s_mov_b32 s62, 1')
    A('s_waitcnt vmcnt(12)')
    A('s_barrier')
    A('s_branch H_Q')
    A('H_ODD:')
    A('s_mov_b32 s62, 99')
    A('s_waitcnt lgkmcnt(0)')
    srd(A, SX, 40, 41, 4 << 20)
    A('s_mov_b32 s42, s48')
    A('s_mov_b32 s43, s49')
    A('H_Q:')
    A('s_mov_b32 s37, s36')
    A('v_bfe_u32 v10, v1, 2, 2')
    A('v_xor_b32 v10, v10, v9')
    A('v_lshlrev_b32 v10, 6, v10')
    A('v_lshl_add_u32 v10, v9, 11, v10')
    A('v_and_b32 v8, 3, v1')
    A('v_lshl_add_u32 v20, v8, 4, v10')
    A('v_add_u32 v21, 7168, v20')
    A('v_add_u32 v22, 14336, v20')
    A('v_add_u32 v23, 21504, v20')
    srd(A, SW, 42, 43, 2 << 20)
    A(f's_lshl_b32 s29, s{sW}, 16')
    A('s_add_u32 s34, s34, s29')
    A(f's_and_b32 s35, s{sCB}, 7')
    A('s_lshl_b32 s35, s35, 8')
    A(f's_lshl_b32 s29, s{sW}, 15')
    A('s_add_u32 s35, s35, s29')
    A('H_LOOP:')
    A('s_cmp_ge_u32 s38, 5')
    A('s_cbranch_scc1 H_W16')
    A('s_cmp_lg_u32 s38, s62')
    A('s_cbranch_scc1 H_NX')
    A('s_waitcnt vmcnt(14)')
    A('s_barrier')
    A('s_waitcnt vmcnt(8)')
    A('s_barrier')
    A('H_NX:')
    A('s_bitcmp1_b32 19, s38')
    A('s_cbranch_scc1 H_ISSUE')
    A('s_waitcnt vmcnt(8)')
    A('H_W16:')
    A('s_waitcnt vmcnt(16)')
    lstamp(A, 30, 's38')
    A('s_barrier')
    A('H_ISSUE:')
    lstamp(A, 31, 's38')
    A(f's_lshl_b32 s29, s{sST}, 7')
    A('s_add_u32 s29, s29, s34')
    A('s_mov_b32 m0, s37')
    A(f's_lshl_b32 s30, s{sST}, 17')
    for i in range(4):
        A(f'buffer_load_dwordx4 v{16+i}, s[{SX}:{SX+3}], s29 offen offset:{i*1024} lds')
    A('s_add_u32 m0, s37, 16384')
    A('s_add_u32 s30, s30, s35')
    for i in range(4):
        A(f'buffer_load_dwordx4 v{20+i}, s[{SW}:{SW+3}], s30 offen offset:{i*1024} lds')
    A(f's_add_u32 s{sST}, s{sST}, 1')
    A(f's_and_b32 s{sST}, s{sST}, 15')
    A(f's_add_u32 s37, s37, {SLOT}')
    A(f's_and_b32 s37, s37, {4*SLOT-1:#x}')
    lstamp(A, 32, 's38')
    A('s_add_u32 s38, s38, 1')
    A('s_cmp_lt_u32 s38, 16')
    A('s_cbranch_scc1 H_LOOP')
    A('s_load_dwordx2 s[40:41], s[0:1], 32')
    A('s_load_dwordx2 s[42:43], s[0:1], 72')
    srd(A, SWS, 60, 61, WS_BYTES)
    A(f's_lshr_b32 s32, s{sCB}, 3')
    A('s_lshl_b32 s32, s32, 18')
    A('s_add_u32 s32, s32, s36')
    A('s_lshr_b32 s33, s2, 4')
    A('s_lshl_b32 s33, s33, 14')
    def kv_chunk(c):
        A(f's_add_u32 m0, s36, {L_KVR + ((c+2)&3)*16384}')
        A('s_add_u32 s31, s32, s33')
        for i in range(4):
            A(f'buffer_load_dwordx4 v2, {W}, s31 offen offset:{i*1024} sc1 lds')
        A('s_add_u32 s33, s33, 16384')
        A('s_and_b32 s33, s33, 0x3ffff')
    for n, i in ((16, 16), (8, 17), (8, 18)):
        A(f's_waitcnt vmcnt({n})')
        lstamp(A, 30, i)
        A('s_barrier')
        lstamp(A, 31, i)
        if i == 17:
            kv_chunk(0)
            kv_chunk(1)
    A('v_lshrrev_b32 v8, 3, v1')
    A('v_lshlrev_b32 v8, 11, v8')
    A('v_lshrrev_b32 v10, 2, v1')
    A('v_lshrrev_b32 v12, 4, v1')
    A('v_xor_b32 v10, v10, v12')
    A('v_and_b32 v10, 1, v10')
    A('v_lshl_add_u32 v8, v10, 6, v8')
    A('v_and_b32 v10, 3, v1')
    A('v_lshl_add_u32 v16, v10, 4, v8')
    A('v_add_u32 v17, 15360, v16')
    A('v_add_u32 v18, 30720, v16')
    A('v_add_u32 v19, 46080, v16')
    A(f's_lshl_b32 s34, s{sCB}, 7')
    A(f's_lshl_b32 s29, s{sW}, 17')
    A('s_add_u32 s34, s34, s29')
    A('s_bfe_u32 s29, s2, 0x20001')
    A(f's_lshr_b32 s{sST}, s{sCB}, 3')
    A(f's_lshl_b32 s{sST}, s{sST}, 2')
    A(f's_add_u32 s{sST}, s{sST}, s29')
    A('s_waitcnt lgkmcnt(0)')
    A('s_and_b32 s41, s41, 0xffff')
    A('s_and_b32 s43, s43, 0xffff')
    A(f's_mov_b32 s{SWO+2}, 0x200000')
    A(f's_mov_b32 s{SWO+3}, 0x20000')
    A('v_mov_b32 v9, 0')
    A('v_mov_b32 v11, 64')
    A('v_add_u32 v13, s36, v2')
    A('v_add_u32 v14, 0x10000, v13')
    A(f's_lshl_b32 s44, s{sTB}, 8')
    A(f's_add_u32 s44, s44, {WS_FLAG}')
    A(f's_cmp_eq_u32 s{sW}, 0')
    A('s_cselect_b32 s45, s44, 0x40000000')
    A('s_waitcnt vmcnt(4)')
    lstamp(A, 30, 19)
    A('s_barrier')
    lstamp(A, 31, 19)
    def hold(j, i):
        return v(48+16*j+4*i, 4) if j < 8 else a(16*(j-8)+4*i, 4)
    def wo_stage(n):
        A(f's_cmp_ge_u32 s{sST}, 4')
        A(f's_cselect_b32 s{SWO}, s42, s40')
        A(f's_cselect_b32 s{SWO+1}, s43, s41')
        A(f's_and_b32 s29, s{sST}, 3')
        A('s_lshl_b32 s29, s29, 19')
        if n == 8: A('s_add_u32 s34, s34, 0x10000')
        if n < 6: A(f's_add_u32 m0, s36, {n*16384}')
        A('s_add_u32 s29, s29, s34')
        for i in range(4):
            if n < 6:
                A(f'buffer_load_dwordx4 v{16+i}, s[{SWO}:{SWO+3}], s29 offen offset:{i*1024} lds')
            else:
                A(f'buffer_load_dwordx4 {hold(n-6,i)}, v{16+i}, s[{SWO}:{SWO+3}], s29 offen offset:{i*1024}')
        A(f's_add_u32 s{sST}, s{sST}, 1')
        A(f's_and_b32 s{sST}, s{sST}, 7')
    V = Cnt(A, 'vmcnt', 63)
    def track(tag, n=4):
        V.q += [tag]*n
    track(('c', 1))
    kv_chunk(2); track(('c', 2))
    kv_chunk(3); track(('c', 3))
    if 'hpf' in VAR.split('_'):
        A('s_getpc_b64 s[62:63]')
        A('HPF_PC:')
        A(f's_lshl_b32 s29, s{sW}, 13')
        A('s_add_u32 s29, s29, AT_LOOP-HPF_PC')
        A('v_lshlrev_b32 v20, 7, v1')
        A('v_add_u32 v20, s29, v20')
        A('v_min_u32 v20, AT_SLOW-HPF_PC, v20')
        A('global_load_dword v21, v20, s[62:63]')
        track(('h', 0), 1)
    nwo = 0
    for i in range(13):
        V.need(('c', i+1) if i < 15-CT else ('c', i+3))
        A('s_barrier')
        if i + 4 < 16:
            kv_chunk(i+4); track(('c', i+4))
        for _ in range(2 if i < 4 else 1):
            if nwo < 16:
                wo_stage(nwo); track(('w', nwo)); nwo += 1
    assert nwo == 16
    A('s_waitcnt vmcnt(0)')
    A(f's_cmp_lg_u32 s{sW}, 0')
    A('s_cbranch_scc1 H_NOPOLL2')
    A('s_setprio 3')
    A(f's_sleep {64 if CT == 4 else 96}')
    poll(A, 'O', f'buffer_load_dword v10, v9, {W}, s44 offen sc1', 11, 8, 'lt')
    A('H_NOPOLL2:')
    A('s_barrier')
    lstamp(A, 31, 32)
    for j in range(2):
        for i in range(4):
            A(f'ds_write_b128 v14, {hold(j,i)} offset:{(2+j)*16384+i*1024}')
    for j in range(8):
        if j == 4:
            A(f'buffer_load_dword v10, v9, {W}, s45 offen offset:128 sc1')
        if j == 5:
            A('s_waitcnt vmcnt(0)')
            A(f's_cmp_lg_u32 s{sW}, 0')
            A('s_cbranch_scc1 H_NOPOLL3')
            A('v_cmp_lt_u32 vcc, v10, v11')
            A('s_nop 1')
            A('s_cbranch_vccz H_NOPOLL3')
            poll(A, 'O2', f'buffer_load_dword v10, v9, {W}, s44 offen offset:128 sc1', 11, 2, 'lt')
            A('H_NOPOLL3:')
        A('s_waitcnt lgkmcnt(0)')
        A('s_barrier')
        lstamp(A, 31, 33+j)
        for i in range(4):
            A(f'ds_write_b128 v{13 + j//4}, {hold(j+2,i)} offset:{(j%4)*16384+i*1024}')
    A('s_waitcnt lgkmcnt(0)')
    if LST:
        for j in range(7):
            A('s_barrier')
            lstamp(A, 31, 41+j)
    ldump(A)
    A('s_endpgm')

def kv_adv():
    return ['s_add_u32 s33, s33, 4096', 's_and_b32 s33, s33, 0x3ffff', 's_add_u32 s34, s32, s33']
def kv_loads(b):
    return [f'buffer_load_dwordx4 {a(AK+8*b,4)}, v2, {W}, s34 offen sc1',
            f'buffer_load_dwordx4 {a(AK+8*b+4,4)}, v2, {W}, s34 offen offset:1024 sc1',
            f'buffer_load_dwordx4 {a(AV+8*b,4)}, v2, {W}, s34 offen offset:2048 sc1',
            f'buffer_load_dwordx4 {a(AV+8*b+4,4)}, v2, {W}, s34 offen offset:3072 sc1']
def kvr(st, b):
    return [f'ds_read_b128 {a(AK+8*b,4)}, v0 offset:{st*4096}',
            f'ds_read_b128 {a(AK+8*b+4,4)}, v0 offset:{st*4096+1024}',
            f'ds_read_b128 {a(AV+8*b,4)}, v0 offset:{st*4096+2048}',
            f'ds_read_b128 {a(AV+8*b+4,4)}, v0 offset:{st*4096+3072}']
sel_code = [f'v_mov_b32 v{SEL+3}, 0x3f803f80', f'v_and_b32 v{SEL+2}, 7, v1', f'v_cmp_eq_u32 vcc, 0, v{SEL+2}',
            f'v_cmp_eq_u32 s[46:47], 4, v{SEL+2}', f'v_mov_b32 v{IDX}, 0xdddddddd', 's_nop 0',
            f'v_cndmask_b32 v{SEL}, 0, v{SEL+3}, vcc', f'v_cndmask_b32 v{SEL+1}, 0, v{SEL+3}, vcc',
            f'v_cndmask_b32 v{SEL+2}, 0, v{SEL+3}, s[46:47]', f'v_cndmask_b32 v{SEL+3}, 0, v{SEL+3}, s[46:47]']

def p1_compute(A):
    XA, WA = 3, 7
    KXA, KWA, GA, GB, KST, KAC, VAC, GAC = 144, 146, 147, 148, 149, 152, 156, 160
    A('v_lshlrev_b32 v3, 7, v1')
    A('s_and_b32 s30, s2, 0xfe')
    A(f's_add_u32 s30, s30, s{sW}')
    A('s_lshl_b32 s30, s30, 13')
    A(f's_lshr_b32 s29, s{sW}, 1')
    A('s_andn2_b32 s29, s2, s29')
    A('s_bitcmp1_b32 s29, 0')
    A('s_cselect_b32 s30, s30, 0x40000000')
    if 'nopf' in VAR: A('s_mov_b32 s30, 0x40000000')
    A(f's_lshl_b32 s29, s{sW}, 10')
    A('s_and_b32 s29, s29, 1024')
    A(f's_add_u32 m0, s29, {L_GATE}')
    A('s_waitcnt lgkmcnt(0)')
    srd(A, SG, 54, 55, 2048)
    A(f'buffer_load_dwordx4 v2, s[{SG}:{SG+3}], s29 offen lds')
    if 'cpf' in VAR:
        A('s_getpc_b64 s[62:63]')
        A('CPF_PC:')
        A(f's_lshl_b32 s29, s{sW}, 13')
        A('v_add_u32 v4, s29, v3')
        A('v_min_u32 v4, END2-CPF_PC+3584, v4')
        A('global_load_dword v175, v4, s[62:63] offset:-3584')
    srd(A, SW, 42, 43, 2 << 20)
    srd(A, SWS, 60, 61, WS_BYTES)
    A(f's_lshl_b32 s55, s{sTB}, 8')
    A(f's_add_u32 s55, s55, {WS_FLAG}')
    A(f's_lshl_b32 s29, s{sCB}, 2')
    A(f's_add_u32 s29, s29, s{sW}')
    A('s_cmp_eq_u32 s29, 3')
    A('s_cselect_b32 s29, s55, 0x40000000')
    A('v_lshlrev_b32 v8, 2, v1')
    A('v_mov_b32 v9, 0')
    A(f'buffer_store_dword v9, v8, {W}, s29 offen sc1')
    A(f'buffer_load_dword v0, v3, s[{SW}:{SW+3}], s30 offen')
    A('v_and_b32 v8, 15, v1')
    A(f's_and_b32 s29, s{sW}, 1')
    A('s_lshl_b32 s29, s29, 4')
    A('v_add_u32 v8, s29, v8')
    A('v_lshrrev_b32 v9, 4, v1')
    A('v_bfe_u32 v10, v8, 1, 3')
    A('v_xor_b32 v10, v10, v9')
    A('v_lshlrev_b32 v8, 7, v8')
    A(f'v_lshl_add_u32 v{KXA}, v10, 4, v8')
    A('v_xor_b32 v10, 4, v10')
    A(f'v_lshl_add_u32 v{KXA+1}, v10, 4, v8')
    A('v_bfe_u32 v11, v1, 2, 2')
    A('v_and_b32 v14, 3, v1')
    A('v_lshl_add_u32 v12, v9, 3, v11')
    A('v_lshlrev_b32 v12, 6, v12')
    A('v_lshl_add_u32 v12, v14, 3, v12')
    A(f's_lshr_b32 s29, s{sW}, 1')
    A('s_lshl_b32 s29, s29, 5')
    A(f'v_add_u32 v{KWA}, s29, v12')
    A(f'v_lshlrev_b32 v{GB}, 4, v9')
    A(f'v_add_u32 v{GB}, {L_GATE}, v{GB}')
    A('s_lshl_b32 s29, s28, 8')
    A(f'v_add_u32 v{GA}, s29, v{GB}')
    for r in range(12):
        A(f'v_mov_b32 v{KAC+r}, 0')
    A('v_and_b32 v8, 15, v1')
    A('v_bfe_u32 v9, v1, 4, 1')
    A('v_lshrrev_b32 v10, 5, v1')
    A('v_lshl_add_u32 v12, v9, 5, v8')
    A('v_lshlrev_b32 v12, 4, v12')
    A('v_lshl_add_u32 v12, v10, 3, v12')
    A('v_lshl_add_u32 v13, v10, 5, v8')
    A('v_lshlrev_b32 v13, 4, v13')
    A('v_lshl_add_u32 v13, v9, 3, v13')
    A(f's_and_b32 s29, s{sW}, 1')
    A(f's_lshr_b32 s30, s{sW}, 1')
    A('s_lshl_b32 s31, s29, 8')
    A('s_lshl_b32 s32, s30, 10')
    A('s_add_u32 s31, s31, s32')
    A(f'v_add_u32 v{KST}, s31, v12')
    A('s_lshl_b32 s31, s29, 10')
    A('s_lshl_b32 s32, s30, 8')
    A('s_add_u32 s31, s31, s32')
    A(f'v_add_u32 v{KST+1}, s31, v13')
    A(f'v_lshlrev_b32 v{KST+2}, 2, v1')
    A('v_and_b32 v15, 31, v1')
    A('v_lshrrev_b32 v9, 5, v1')
    A('v_bfe_u32 v10, v1, 1, 3')
    A('v_xor_b32 v10, v10, v9')
    A('v_lshlrev_b32 v15, 7, v15')
    A(f's_and_b32 s29, s{sW}, 1')
    A('s_lshl_b32 s29, s29, 13')
    A('v_add_u32 v15, s29, v15')
    for st in range(4):
        A(f'v_xor_b32 v12, {2*st}, v10')
        A(f'v_lshl_add_u32 v{XA+st}, v12, 4, v15')
    A('v_lshl_add_u32 v12, v9, 3, v11')
    A('v_bfe_u32 v13, v1, 4, 1')
    A('v_lshlrev_b32 v13, 5, v13')
    A('v_lshl_add_u32 v13, v14, 3, v13')
    A(f's_and_b32 s30, s{sW}, 2')
    A('v_xor_b32 v14, s30, v11')
    A(f'v_lshl_add_u32 v{WA}, v14, 6, v13')
    A('v_xor_b32 v14, 1, v14')
    A(f'v_lshl_add_u32 v{WA+1}, v14, 6, v13')
    A('v_lshlrev_b32 v14, 8, v12')
    A(f'v_add_u32 v{WA}, v{WA}, v14')
    A(f'v_add_u32 v{WA+1}, v{WA+1}, v14')
    for r in range(SB, SB+64):
        A(f'v_mov_b32 v{r}, 0')
    for r in range(16):
        A(f'v_accvgpr_write_b32 a{AL+r}, 0')
    for r in range(4):
        A(f'v_accvgpr_write_b32 a{AV+12+r}, 0')
    for l in sel_code: A(l)
    A(f's_bfe_u32 s32, s{sCB}, 0x10002')
    A('s_lshl_b32 s37, s32, 31')
    A('s_lshl_b32 s31, s32, 13')
    A('s_lshl_b32 s32, s32, 18')
    A(f's_lshl_b32 s30, s{sTB}, 2')
    A(f's_and_b32 s29, s{sCB}, 3')
    A('s_add_u32 s30, s30, s29')
    A('s_lshl_b32 s35, s30, 12')
    A('s_add_u32 s35, s35, s32')
    A('s_lshl_b32 s36, s30, 7')
    A('s_add_u32 s36, s36, s31')
    A(f's_and_b32 s31, s{sW}, 1')
    A('s_lshl_b32 s31, s31, 6')
    A('s_add_u32 s36, s36, s31')
    A(f's_add_u32 s36, s36, {WS_G}')
    A(f's_cmp_lt_u32 s{sW}, 2')
    A('s_cselect_b32 s36, s36, 0x40000000')
    A(f's_xor_b32 s37, s37, {f32bits(-LOG2E):#x}')
    A(f's_lshr_b32 s32, s{sCB}, 3')
    A('s_lshl_b32 s32, s32, 18')
    A(f's_mov_b32 s39, {SLOT}')
    A(f's_cmp_eq_u32 s{sW}, 3')
    A(f's_cselect_b32 s45, {(1<<NSIG)|(1<<NPOLL)|(1<<NCHK):#x}, 0')
    A(f's_lshl_b32 s29, s{sTB}, 2')
    A(f's_and_b32 s30, s{sW}, 1')
    A('s_lshl_b32 s30, s30, 1')
    A('s_add_u32 s29, s29, s30')
    A('s_lshl_b32 s48, s29, 7')
    A('s_lshr_b32 s30, s32, 5')
    A('s_add_u32 s48, s48, s30')
    A(f's_add_u32 s48, s48, {WS_G}')
    A('s_lshl_b32 s50, s29, 17')
    A(f's_lshl_b32 s31, s{sCB}, 2')
    A(f's_and_b32 s29, s{sW}, 2')
    A('s_add_u32 s31, s31, s29')
    A('s_lshl_b32 s31, s31, 10')
    A('s_add_u32 s50, s50, s31')
    A(f's_add_u32 s50, s50, {WS_OF}')
    A('s_add_u32 s51, s50, 0x20000')
    A('s_add_u32 s52, s50, 0x10000')
    A('s_add_u32 s53, s51, 0x10000')
    A('s_mov_b32 s49, 0')
    A('s_mov_b32 s33, 32768')
    stamp(A, 1)
    def rd_list(st):
        sb = OB + 16*st
        def ra(aa, rho): return (f'ds_read_b64_tr_b16 {v(sb+4*aa+2*rho,2)}, v{WA+aa} offset:{16384+st*4096+rho*1024}', (st, 'A', aa))
        def rb(b): return (f'ds_read_b128 {v(sb+8+4*b,4)}, v{XA+st} offset:{b*4096}', (st, 'B', b))
        return [ra(0,0), ra(0,1), rb(0), rb(1), ra(1,0), ra(1,1)]
    allr = [r for st in range(4) for r in rd_list(st)]
    L = Cnt(A, 'lgkmcnt', 15)
    A('s_mov_b32 s38, 0')
    A('s_waitcnt vmcnt(3)' if 'cpf' in VAR else 's_waitcnt vmcnt(2)')
    A('s_barrier')
    A('s_bitcmp1_b32 s2, 0')
    A('s_cbranch_scc1 P1_Q0')
    FB = 16
    def rd(st):
        fb = FB + 16*st
        for rho in range(2):
            L.issue(f'ds_read_b64_tr_b16 {a(fb+2*rho,2)}, v{KWA} offset:{8192+st*2048+rho*256}', ('k', st))
        L.issue(f'ds_read_b128 {a(fb+8,4)}, v{KXA+(st&1)} offset:{(st>>1)*4096}', ('k', st))
        for rho in range(2):
            L.issue(f'ds_read_b64_tr_b16 {a(fb+4+2*rho,2)}, v{KWA} offset:{16384+st*2048+rho*256}', ('k', st))
        L.issue(f'ds_read_b128 {a(fb+12,4)}, v{GA} offset:{st*64}', ('k', st))
    def mm(st):
        fb = FB + 16*st
        L.need(('k', st))
        A(f'v_mfma_f32_16x16x32_bf16 {v(KAC,4)}, {a(fb,4)}, {a(fb+8,4)}, {v(KAC,4)}')
        A(f'v_mfma_f32_16x16x32_bf16 {v(VAC,4)}, {a(fb+8,4)}, {a(fb+4,4)}, {v(VAC,4)}')
        A(f'v_mfma_f32_16x16x32_bf16 {v(GAC,4)}, {a(fb+12,4)}, {a(fb+8,4)}, {v(GAC,4)}')
    for st in range(2): rd(st)
    A('KV_LOOP:')
    q0 = list(L.q)
    for st in range(2):
        mm(st)
        rd(st + 2)
    A('s_and_b32 s29, s38, 3')
    A('s_cmp_eq_u32 s29, 3')
    A(f's_cselect_b32 s29, {(-3*SLOT) & 0xffffffff:#x}, s39')
    for r in (KXA, KXA+1, KWA):
        A(f'v_add_u32 v{r}, s29, v{r}')
    A('s_add_u32 s28, s28, 1')
    A('s_and_b32 s28, s28, 7')
    A('s_lshl_b32 s29, s28, 8')
    A(f'v_add_u32 v{GA}, s29, v{GB}')
    A('s_add_u32 s38, s38, 1')
    A('s_cmp_lt_u32 s38, 8')
    L.drain()
    A('s_cbranch_scc0 KV_TAIL')
    A('s_barrier')
    for st in range(2, 4):
        rd(st - 2)
        mm(st)
    assert L.q == q0
    A('s_branch KV_LOOP')
    A('KV_TAIL:')
    L.q = []
    mm(2)
    mm(3)
    for r in range(4):
        A(f'v_accvgpr_write_b32 a{AV+12+r}, 0')
    A('s_nop 1')
    A(f's_mov_b32 s31, {f32bits(QK_SCALE):#x}')
    for r in range(4):
        A(f'v_mul_f32 v{KAC+r}, s31, v{KAC+r}')
    A(f'v_mul_f32 v{GAC}, s37, v{GAC}')
    A(f'v_cvt_pk_bf16_f32 v{VAC}, v{VAC}, v{VAC+1}')
    A(f'v_exp_f32 v{GAC}, v{GAC}')
    A(f'v_cvt_pk_bf16_f32 v{VAC+1}, v{VAC+2}, v{VAC+3}')
    A(f'v_add_f32 v{GAC}, 1.0, v{GAC}')
    A(f'v_cvt_pk_bf16_f32 v{KAC}, v{KAC}, v{KAC+1}')
    A(f'v_rcp_f32 v{GAC}, v{GAC}')
    A(f'v_cvt_pk_bf16_f32 v{KAC+1}, v{KAC+2}, v{KAC+3}')
    A(f'buffer_store_dwordx2 {v(VAC,2)}, v{KST+1}, {W}, s35 offen offset:2048 sc1')
    A(f'buffer_store_dwordx2 {v(KAC,2)}, v{KST}, {W}, s35 offen sc1')
    A('s_mov_b64 exec, 0xffff')
    A(f'buffer_store_dword v{GAC}, v{KST+2}, {W}, s36 offen sc1')
    A('s_mov_b64 exec, -1')
    A('s_barrier')
    A('P1_Q0:')
    for r in allr[:15]: A(r[0])
    A('P1_Q:')
    stamp(A, 2)
    def group(st, rds, other=(), nother=2):
        rds = list(rds); other = list(other)
        sb = OB + 16*st
        for aa in range(2):
            for b in range(2):
                acc = SB + 16*(aa*2+b)
                L.need((st, 'A', aa), (st, 'B', b))
                if 'hack16' in VAR:
                    q = acc + 8*(st&1)
                    A(f'v_mfma_f32_16x16x32_bf16 {v(q,4)}, {v(sb+4*aa,4)}, {v(sb+8+4*b,4)}, {v(q,4)}')
                    if rds: L.issue(*rds.pop(0))
                    A(f'v_mfma_f32_16x16x32_bf16 {v(q+4,4)}, {v(sb+8+4*b,4)}, {v(sb+4*aa,4)}, {v(q+4,4)}')
                    if rds: L.issue(*rds.pop(0))
                else:
                  A(f'v_mfma_f32_32x32x16_bf16 {v(acc,16)}, {v(sb+4*aa,4)}, {v(sb+8+4*b,4)}, {v(acc,16)}')
                  for _ in range(2):
                    if rds: L.issue(*rds.pop(0))
                for _ in range(nother):
                    if other: A(other.pop(0))
        assert not rds
        for o in other: A(o)
    L.q = []
    A('s_mov_b32 s38, 0')
    L.q = [r[1] for r in allr[:15]]
    L.issue(*allr[15])
    adr = [f'v_add_u32 v{r}, s29, v{r}' for r in (XA, XA+1, XA+2, XA+3, WA, WA+1)]
    def stage(mode, extra=()):
        L.need(*[r[1] for r in allr[:8]])
        group(0, allr[16:24], ['s_and_b32 s29, s38, 3', 's_cmp_eq_u32 s29, 3', f's_cselect_b32 s29, {(-3*SLOT) & 0xffffffff:#x}, s39',
                               's_add_u32 s38, s38, 1', f's_cmp_eq_u32 s38, {NSIG}' if mode == 'loop' else ''])
        if mode == 'last':
            z = [f'v_mov_b32 v{OB+r}, 0' for r in range(64)]
            L.need(*[r[1] for r in allr[8:16]])
            group(1, [], list(extra) + z[:16], 5)
            L.drain()
            A('s_barrier')
            for r in kvr(0, 0): A(r)
            cv = [[f'v_cvt_pk_bf16_f32 v{QB+8*t+i}, v{SB+16*t+2*i}, v{SB+16*t+2*i+1}' for i in range(8)] for t in range(4)]
            fill = z[16:32] + ['', '', '', ''] + cv[0] + ['', ''] + cv[1] + ['', '']
            for t in range(4):
                aa, b = t >> 1, t & 1
                for st in (2, 3):
                    sb = OB + 16*st
                    A(f'v_mfma_f32_32x32x16_bf16 {v(SB+16*t,16)}, {v(sb+4*aa,4)}, {v(sb+8+4*b,4)}, {v(SB+16*t,16)}')
                    for _ in range(5):
                        if fill: A(fill.pop(0))
            assert not fill
            A('s_waitcnt lgkmcnt(0)')
            A(qk(0, 0, 0))
            for l in cv[2]: A(l)
            A(qk(0, 0, 1))
            for l in z[32:]: A(l)
            for l in cv[3]: A(l)
            for r in range(8):
                A(f'v_mov_b32 v{SB+48+8+r}, 0')
            return
        L.need(*[r[1] for r in allr[8:16]])
        group(1, [], list(extra) + adr, 3)
        if mode == 'loop':
            A('s_cbranch_scc1 Q_PRE')
            A('Q_PRE_RET:')
        L.drain()
        A('s_barrier')
        group(2, allr[0:8], ['', '', '', '', '', '', 's_bitcmp1_b32 s45, s38', 's_cbranch_scc1 Q_POST\nQ_POST_RET:'] if mode == 'loop' else [])
        group(3, allr[8:16])
    A('Q_LOOP:')
    q0 = list(L.q)
    stage('loop')
    assert L.q == q0, (L.q, q0)
    A('s_cmp_lt_u32 s38, 15')
    A('s_cbranch_scc1 Q_LOOP')
    T = A
    A('s_branch Q_LAST')
    T('Q_PRE:')
    T('s_waitcnt vmcnt(0)')
    T('s_branch Q_PRE_RET')
    T('Q_POST:')
    T(f's_cmp_eq_u32 s38, {NPOLL}')
    T('s_cbranch_scc1 Q_POLL')
    T(f's_cmp_eq_u32 s38, {NCHK}')
    T('s_cbranch_scc1 Q_CHECK')
    T('s_and_b32 s30, s2, 1')
    T('s_lshl_b32 s30, s30, 7')
    T('v_mov_b32 v0, s30')
    T('v_mov_b32 v11, 1')
    T('s_mov_b64 exec, 1')
    T(f'global_atomic_add v0, v11, s[{DBG}:{DBG+1}] sc1')
    T('s_mov_b64 exec, -1')
    T('s_branch Q_POST_RET')
    T('Q_POLL:')
    T('v_and_b32 v0, 1, v1')
    T('v_lshlrev_b32 v0, 7, v0')
    T('v_mov_b32 v11, 128')
    T(f'global_load_dword v10, v0, s[{DBG}:{DBG+1}] sc1')
    T('s_branch Q_POST_RET')
    T('Q_CHECK:')
    T('s_waitcnt vmcnt(0)')
    T('v_cmp_lt_u32 vcc, v10, v11')
    T('s_nop 1')
    T('s_cbranch_vccz Q_POST_RET')
    poll(T, 'KV', f'global_load_dword v10, v0, s[{DBG}:{DBG+1}] sc1', 11, 8, 'lt')
    T('s_branch Q_POST_RET')
    A('Q_LAST:')
    stage('last', [f'v_add_u32 v0, {L_KVR+32768}, v2', 'v_and_b32 v10, 31, v1', 'v_lshlrev_b32 v10, 2, v10',
                   f'buffer_load_dword v11, v10, {W}, s48 offen offset:128 sc1', f'buffer_load_dword v10, v10, {W}, s48 offen sc1'])
    stamp(A, 3)

def qk(t, kb, half, sb=None):
    sb = t if sb is None else sb
    c = '0' if half == 0 else v(SB+16*sb, 16)
    return f'v_mfma_f32_32x32x16_bf16 {v(SB+16*sb,16)}, {a(AK+8*kb+4*half,4)}, {v(QB+8*t+4*half,4)}, {c}'
def pv(t, vb, half, sb=None):
    sb = t if sb is None else sb
    return f'v_smfmac_f32_32x32x32_bf16 {v(OB+16*t,16)}, {a(AV+8*vb+4*half,4)}, {v(SB+16*sb+8*half,8)}, v{IDX}'
def sm(t, half, sb=None):
    sb = t if sb is None else sb
    return f'v_smfmac_f32_16x16x64_bf16 {a(AL+4*t,4)}, {v(SEL,4)}, {v(SB+16*sb+8*half,8)}, v{IDX}'
def ex(t, i):
    return f'v_exp_f32 v{SB+16*t+i}, v{SB+16*t+i}'

def slot(A, cur, nxt, prv, x):
    t, kb, sb = cur
    A(qk(nxt[0], nxt[1], 0, nxt[2]) if nxt else '')
    A(x.get(0, ''))
    for e in (0, 1, 2): A(ex(sb, e))
    A(qk(nxt[0], nxt[1], 1, nxt[2]) if nxt else '')
    A(x.get(1, ''))
    for e in (3, 4, 5): A(ex(sb, e))
    A(pv(prv[0], prv[1], 1, prv[2]))
    A(x.get(2, ''))
    for e in (6, 7, 8): A(ex(sb, e))
    A(sm(prv[0], 1, prv[2]))
    A(x.get(3, ''))
    for e in (9, 10): A(ex(sb, e))
    A(pv(t, kb, 0, sb))
    A(x.get(4, ''))
    for e in (11, 12, 13): A(ex(sb, e))
    A(sm(t, 0, sb))
    A(x.get(5, ''))
    for e in (14, 15): A(ex(sb, e))

def tile_out(A, t, check):
    aa, b = t >> 1, t & 1
    o = OB + 16*t
    A(f'v_accvgpr_read_b32 v0, a{AL+4*t}')
    A('v_rcp_f32 v8, v0')
    if check:
        A('v_min_f32 v4, v4, v0')
        A('v_max_f32 v5, v5, v0')
        A('v_fma_f32 v6, v0, 0, v6')
    else:
        A('s_nop 0')
    A(f'v_mul_f32 v8, v8, v{10+b}')
    for h in range(2):
        for r in range(8*h, 8*h+8, 2):
            A(f'v_pk_mul_f32 {v(o+r,2)}, {v(o+r,2)}, v[8:9] op_sel_hi:[1,0]')
        if check:
            for r in range(8*h, 8*h+8, 2):
                A(f'v_pk_fma_f32 v[6:7], {v(o+r,2)}, 0, v[6:7]')
        for r in range(4):
            A(f'v_cvt_pk_bf16_f32 v{o+8*h+r}, v{o+8*h+2*r}, v{o+8*h+2*r+1}')
        A(f'buffer_store_dwordx4 {v(o+8*h,4)}, v2, {W}, s{50+t} offen offset:{h*1024} sc1')

def check(A):
    A(f'v_cmp_gt_f32 vcc, {f32bits(2.0**-16):#x}, v4')
    A(f's_mov_b32 s29, {f32bits(2.0**64):#x}')
    A('v_cmp_lt_f32 s[46:47], s29, v5')
    A('v_cmp_u_f32 s[30:31], v6, v7')
    A('s_nop 1')
    A('s_or_b64 s[46:47], s[46:47], vcc')
    A('s_or_b64 s[46:47], s[46:47], s[30:31]')
    if 'forceslow' in VAR:
        A('s_cmp_eq_u32 0, 0')
def signal(A, off):
    A('v_mov_b32 v8, 0')
    A('v_mov_b32 v0, 1')
    A('s_mov_b64 exec, 1')
    A(f'buffer_atomic_add v0, v8, {W}, s55 offen offset:{off} sc1')
    A('s_mov_b64 exec, -1')

def attention(A):
    A(f's_mov_b32 s36, {16-CT}')
    A(f'v_add_u32 v3, {L_KVR}, v2')
    A('v_mov_b32 v4, 1.0')
    A('v_mov_b32 v5, 1.0')
    A('v_mov_b32 v6, 0')
    A('v_mov_b32 v7, 0')
    stamp(A, 4)
    A('.p2align 6')
    A('AT_LOOP:')
    for i in range(4):
        for t in range(4):
            nt, nb = (t+1) % 4, ((i if t < 3 else i+1) % 2)
            pt, pb = (t-1) % 4, ((i if t > 0 else i-1) % 2)
            x = {3: kvr((i+1) % 4, (i+1) % 2)[t]}
            if t == 0: x[0] = 's_waitcnt lgkmcnt(0)' + ('\ns_barrier' if i == 3 else '')
            if t == 2 and i == 3: x[1] = 's_sub_u32 s36, s36, 1'
            if t == 1 and i == 2: x[1] = 's_add_u32 s33, s33, 16384'
            if t == 2 and i == 2: x[1] = 's_and_b32 s33, s33, 0xffff'
            if t == 0 and i == 3: x[2] = 'v_add_u32 v0, s33, v3'
            if t == 2: x[5] = 's_waitcnt lgkmcnt(1)'
            if t == 3 and i == 3: x[5] = 's_cmp_lg_u32 s36, 0'
            slot(A, (t, i % 2, t), (nt, nb, nt), (pt, pb, pt), x)
    A('s_cbranch_scc1 AT_LOOP')
    NS = 4*CT
    def kvt(g):
        st = g % NS
        c = 16 - CT + st//4
        off = ((c+2) & 3)*16384 + (st % 4)*4096
        b = g % 4
        return [f'ds_read_b128 {a(AK+8*b,4)}, v3 offset:{off}', f'ds_read_b128 {a(AK+8*b+4,4)}, v3 offset:{off+1024}',
                f'ds_read_b128 {a(AV+8*b,4)}, v3 offset:{off+2048}', f'ds_read_b128 {a(AV+8*b+4,4)}, v3 offset:{off+3072}']
    seq = [(2*(g//NS) + j, g % 4) for g in range(2*NS) for j in range(2)]
    seq = [(t, b, n % 4) for n, (t, b) in enumerate(seq)]
    N = len(seq)
    for n in range(N):
        g, j = n//2, n % 2
        x = {}
        if n == 0:
            r1, r2 = kvt(1), kvt(2)
            x[0] = 's_waitcnt lgkmcnt(0)\n' + r1[0]
            x[1] = r1[1]
            x[3] = r1[2] + '\n' + r1[3]
            x[5] = r2[0] + '\n' + r2[1] + '\ns_waitcnt lgkmcnt(4)'
        elif n == 1:
            x[3] = r2[2]
            x[5] = r2[3]
        else:
            if g + 2 < 2*NS:
                r = kvt(g+2)
                x[3] = r[2*j]
                x[5] = r[2*j+1]
            if j == 0: x[0] = 's_waitcnt lgkmcnt(2)' if g + 1 < 2*NS else 's_waitcnt lgkmcnt(0)'
        if n == 2: x[1] = 's_waitcnt vmcnt(0)'
        if CT == 4 and n == 17: x[1] = 's_barrier'
        slot(A, seq[n], seq[n+1] if n < N-1 else None, seq[n-1] if n else (3, 1, 3), x)
        if n == N//2 - 1: tile_out(A, 0, True)
        if n == N//2:
            tile_out(A, 1, True)
            check(A)
            A('s_cselect_b32 s54, 1, 0')
        if n == N//2 + 5:
            A('s_waitcnt vmcnt(0)')
            A('s_cmp_lg_u32 s54, 0')
            A('s_cbranch_scc1 AT_NOSIG')
            signal(A, 0)
            A('AT_NOSIG:')
    stamp(A, 5)
    A('s_nop 1')
    A(sm(3, 1, 3))
    A(pv(3, 3, 1, 3))
    tile_out(A, 2, True)
    tile_out(A, 3, True)
    check(A)
    A('s_cbranch_scc1 AT_SLOW')
    A('AT_DONE:')
    S = Asm()
    S('AT_SLOW:')
    S('s_waitcnt vmcnt(0)')
    for t in range(4):
        S(f'v_mov_b32 v{4+t}, 0xff800000')
    S('s_mov_b32 s34, s32')
    S('s_mov_b32 s36, 64')
    S('SL_MAX:')
    for l in kv_loads(0)[:2]: S(l)
    S('s_waitcnt vmcnt(0)')
    for t in range(4):
        S(qk(t, 0, 0)); S(qk(t, 0, 1))
    S('s_nop 15')
    for t in range(4):
        for r in range(0, 16, 2):
            S(f'v_max3_f32 v{4+t}, v{4+t}, v{SB+16*t+r}, v{SB+16*t+r+1}')
    S('s_add_u32 s34, s34, 4096')
    S('s_sub_u32 s36, s36, 1')
    S('s_cmp_lg_u32 s36, 0')
    S('s_cbranch_scc1 SL_MAX')
    for t in range(4):
        S(f'v_mov_b32 v8, v{4+t}')
        S('s_nop 1')
        S(f'v_permlane32_swap_b32 v8, v{4+t}')
        S('s_nop 1')
        S(f'v_max_f32 v{4+t}, v{4+t}, v8')
    for r in range(16):
        S(f'v_accvgpr_write_b32 a{AL+r}, 0')
    for r in range(64):
        S(f'v_mov_b32 v{OB+r}, 0')
    S('s_mov_b32 s34, s32')
    S('s_mov_b32 s36, 64')
    S('SL_ACC:')
    for l in kv_loads(0): S(l)
    S('s_waitcnt vmcnt(0)')
    for t in range(4):
        S(qk(t, 0, 0)); S(qk(t, 0, 1))
    S('s_nop 15')
    for t in range(4):
        for r in range(16):
            S(f'v_sub_f32 v{SB+16*t+r}, v{SB+16*t+r}, v{4+t}')
        for r in range(16):
            S(ex(t, r))
    S('s_nop 3')
    for t in range(4):
        for h in range(2):
            S(pv(t, 0, h)); S(sm(t, h))
    S('s_add_u32 s34, s34, 4096')
    S('s_sub_u32 s36, s36, 1')
    S('s_cmp_lg_u32 s36, 0')
    S('s_cbranch_scc1 SL_ACC')
    S('s_nop 15')
    for t in (2, 3):
        tile_out(S, t, False)
    S('s_cmp_eq_u32 s54, 0')
    S('s_cbranch_scc1 AT_DONE')
    for t in (0, 1):
        tile_out(S, t, False)
    S('s_waitcnt vmcnt(0)')
    signal(S, 0)
    S('s_branch AT_DONE')
    tail.extend(S.lines)

def p3_compute(A):
    WB, ACC = 16, 48
    def oreg(slot, st):
        i = 32*slot + 4*st
        i = (i + 64) % 128
        return v(80+i, 4) if i < 96 else a(i-96, 4)
    A(f's_lshl_b32 s35, s{sTB}, 2')
    A(f's_add_u32 s35, s35, s{sW}')
    A('s_lshl_b32 s36, s35, 17')
    A(f's_add_u32 s36, s36, {WS_OF}')
    A('s_bfe_u32 s32, s2, 0x20001')
    A(f's_lshr_b32 s37, s{sCB}, 3')
    A('s_lshl_b32 s37, s37, 2')
    A('s_add_u32 s37, s37, s32')
    A('s_lshl_b32 s37, s37, 13')
    A('v_add_u32 v3, 4096, v2')
    V = Cnt(A, 'vmcnt', 63)
    L = Cnt(A, 'lgkmcnt', 15)
    LK = opt('lk', 2)
    def oload(slot, st):
        return (f'buffer_load_dwordx4 {oreg(slot,st)}, v{2+st//4}, {W}, s30 offen offset:{(st%4)*1024} sc1', ('O', slot, st))
    adv = ['s_add_u32 s37, s37, 8192', 's_and_b32 s37, s37, 0xffff', 's_add_u32 s30, s36, s37']
    A(adv[2])
    def wr(slot, st):
        out = []
        for ct in range(2):
            for rho in range(2):
                out.append((f'ds_read_b64_tr_b16 {v(WB+8*(st%4)+4*ct+2*rho,2)}, v{5+ct} offset:{slot*16384+st*2048+rho*1024}', ('W', st%4, ct)))
        return out
    LA = 2
    stamp(A, 6)
    A('s_barrier')
    stamp(A, 7)
    for st in range(8): V.issue(*oload(0, st))
    for x in adv: A(x)
    A('v_bfe_u32 v8, v1, 2, 2')
    A('v_lshrrev_b32 v9, 5, v1')
    A('v_lshl_add_u32 v9, v9, 2, v8')
    A('v_lshlrev_b32 v9, 7, v9')
    A('v_bfe_u32 v10, v1, 4, 1')
    A('v_lshl_add_u32 v9, v10, 5, v9')
    A('v_and_b32 v10, 3, v1')
    A('v_lshl_add_u32 v9, v10, 3, v9')
    A('v_lshrrev_b32 v8, 1, v8')
    A('v_lshl_add_u32 v5, v8, 6, v9')
    A('v_xor_b32 v8, 1, v8')
    A('v_lshl_add_u32 v6, v8, 6, v9')
    for r in range(32):
        A(f'v_mov_b32 v{ACC+r}, 0')
    A('s_mov_b32 s38, 0')
    srd(A, SOUT, 56, 57, 4 << 20)
    for st in range(LA):
        for r in wr(0, st): L.issue(*r)
    for sl in range(1, LK):
        for st in range(8): V.issue(*oload(sl, st))
        for x in adv: A(x)
    A('P3_LOOP:')
    q0, v0 = list(L.q), list(V.q)
    for slot in range(4):
        for st in range(8):
            nst = st + LA
            if nst == 8:
                L.drain()
                A('s_barrier')
                if slot == 3:
                    A('v_xor_b32 v5, 0x10000, v5')
                    A('v_xor_b32 v6, 0x10000, v6')
            rds = wr(slot, nst) if nst < 8 else wr((slot+1) % 4, nst-8)
            for ct in range(2):
                L.need(('W', st%4, ct))
                V.need(('O', slot, st))
                if 'hack16' in VAR:
                    q = ACC+16*ct+8*(st&1)
                    A(f'v_mfma_f32_16x16x32_bf16 {v(q,4)}, {v(WB+8*(st%4)+4*ct,4)}, {oreg(slot,st)}, {v(q,4)}')
                    L.issue(*rds[2*ct])
                    A(f'v_mfma_f32_16x16x32_bf16 {v(q+4,4)}, {oreg(slot,st)}, {v(WB+8*(st%4)+4*ct,4)}, {v(q+4,4)}')
                    L.issue(*rds[2*ct+1])
                else:
                    A(f'v_mfma_f32_32x32x16_bf16 {v(ACC+16*ct,16)}, {v(WB+8*(st%4)+4*ct,4)}, {oreg(slot,st)}, {v(ACC+16*ct,16)}')
                    L.issue(*rds[2*ct]); L.issue(*rds[2*ct+1])
                if ct == 0:
                    if slot == 4-LK and st == 0:
                        A('s_cmp_eq_u32 s38, 3')
                        A(f's_cselect_b32 s{SWS+2}, 0, s{SWS+2}')
                    V.issue(*oload((slot+LK) % 4, st))
                elif st == 7:
                    if slot == 3-LK:
                        A('s_cmp_eq_u32 s38, 1')
                        A('s_cselect_b32 s29, 0x10000, 0')
                        A('s_add_u32 s36, s36, s29')
                    for x in adv: A(x)
                elif st == 3 and slot == opt('sig', 1):
                    signal(A, 128)
                    A('s_mov_b32 s55, 0x40000000')
    A('s_add_u32 s38, s38, 1')
    A('s_cmp_lt_u32 s38, 4')
    assert L.q == q0, (L.q, q0)
    assert V.q == v0, (V.q, v0)
    A('s_cbranch_scc1 P3_LOOP')
    stamp(A, 8)
    A('v_and_b32 v8, 31, v1')
    A('v_lshlrev_b32 v8, 11, v8')
    A('v_lshrrev_b32 v9, 5, v1')
    A('v_lshl_add_u32 v8, v9, 4, v8')
    A('s_lshl_b32 s29, s35, 16')
    A(f's_lshl_b32 s30, s{sCB}, 7')
    A('s_add_u32 s29, s29, s30')
    A('s_nop 6')
    D = 80
    A('s_waitcnt vmcnt(0)')
    for ct in range(2):
        for g in range(4):
            b = ACC+16*ct+4*g
            d = D+8*ct+2*g
            A(f'v_cvt_pk_bf16_f32 v{d}, v{b}, v{b+1}')
            A(f'v_cvt_pk_bf16_f32 v{d+1}, v{b+2}, v{b+3}')
    A('s_nop 1')
    for j in range(4):
        d = D+4*j
        A(f'v_permlane32_swap_b32 v{d}, v{d+2}')
        A(f'v_permlane32_swap_b32 v{d+1}, v{d+3}')
        A(f'buffer_store_dwordx4 {v(d,4)}, v8, s[{SOUT}:{SOUT+3}], s29 offen offset:{j*32}' + (' sc1' if 'outsc1' in VAR else '') + (' nt' if 'outnt' in VAR else ''))

def build():
    ref = open(f'cdna_kernels/{NAME}.s.ref').read().split('\n')
    head = [l for l in ref if l.startswith(';') and '@launch' not in l and 'Override' not in l and 'grid=ceil' not in l]
    out = '\n'.join(head) + '\n'
    if 'aslist' in VAR:
        out += f'; @launch kernel={KNAME} grid=(256,1,1) block=(512,1,1) lds={LDS_BYTES}\n'
    else:
        out += f'; @launch grid=(256,1,1) block=(512,1,1) lds={LDS_BYTES}\n'
    out += '.amdgcn_target "amdgcn-amd-amdhsa--gfx950"\n.text\n'
    A = Asm()
    kernel(A)
    out += A.text()
    out += '.section .rodata,"a"\n' + kd(KNAME, 256, NARCH)
    return out

if __name__ == '__main__':
    args = [x for x in sys.argv[1:] if not x.startswith('--')]
    if '--instr' in sys.argv: INSTR = True
    if '--lst' in sys.argv: LST = True
    if '--ct4' in sys.argv: CT = 4
    for x in sys.argv:
        if x.startswith('--var='): VAR = x[6:]
    dst = args[0] if args else f'cdna_kernels/{NAME}.s'
    open(dst, 'w').write(build())
```

```python
import math, sys
from asmlib import *

NAME = 'gated_mix__grouped_kv_mqa__grouped_kv_mqa__prompt'
KNAME = NAME + '_kernel'
WS_KV = 0
WS_G = 512 << 10
WS_FLAG = 576 << 10
WS_OF = 1 << 20
CT = 4
WS_BYTES = 9 << 20
QK_SCALE = math.log2(math.e) / math.sqrt(32.0)
LOG2E = math.log2(math.e)
INSTR = False
LST = False
VAR = ''
WS_DBG = 32 << 20
WS_DBG2 = 40 << 20

SLOT = 32768
L_GATE = 4 * SLOT
LDS_BYTES = 163840
L_KVR = 98304

SX, SW, SKV, SWS, SG = 4, 8, 12, 16, 20
SWO, SOUT = 8, 12
sW, sTB, sCB, sST = 24, 25, 26, 27
W = f's[{SWS}:{SWS+3}]'
DBG = 58
NARCH = 176
SB, OB = 16, 80
AL, AK, AV = 0, 16, 48
QB = 144
IDX, SEL = 9, 12
NSIG, NPOLL, NCHK = 2, 11, 13

def opt(name, default):
    for tok in VAR.split('_'):
        if tok.startswith(name) and tok[len(name):].isdigit():
            return int(tok[len(name):])
    return default

def srd(A, d, lo, hi, nbytes):
    A(f's_mov_b32 s{d}, s{lo}')
    A(f's_and_b32 s{d+1}, s{hi}, 0xffff')
    A(f's_mov_b32 s{d+2}, {nbytes:#x}')
    A(f's_mov_b32 s{d+3}, 0x20000')

def stamp(A, i):
    if INSTR:
        A(f's_mem{"time" if "allcyc" in VAR else "realtime"} s[{64+2*i}:{65+2*i}]')
NST = 10
def stamp_end(A):
    if opt('echo', None) is not None:
        e = opt('echo', 0); i, j = e // 10, e % 10
        A('s_waitcnt vmcnt(0) lgkmcnt(0)')
        stamp(A, NST-1)
        A('s_waitcnt lgkmcnt(0)')
        A(f's_sub_u32 s29, s{64+2*j}, s{64+2*i}')
        A('ECHO:')
        A('s_memrealtime s[30:31]')
        A('s_waitcnt lgkmcnt(0)')
        A(f's_sub_u32 s30, s30, s{64+2*(NST-1)}')
        A('s_cmp_lt_u32 s30, s29')
        A('s_cbranch_scc1 ECHO')
        return
    if not INSTR: return
    A('s_waitcnt vmcnt(0) lgkmcnt(0)')
    stamp(A, NST-1)
    if 'p3t' in VAR:
        A('s_lshl_b32 s89, s2, 2')
        A(f's_add_u32 s89, s89, s{sW}')
        A('s_lshl_b32 s89, s89, 10')
        A(f's_add_u32 s89, s89, {WS_DBG2}')
        A('v_lshlrev_b32 v0, 2, v1')
        A('v_add_u32 v0, s89, v0')
        A('global_store_dword v0, v11, s[60:61]')
        A('global_store_dword v0, v10, s[60:61] offset:256')
    A('s_getreg_b32 s62, hwreg(HW_REG_XCC_ID)')
    A('s_waitcnt lgkmcnt(0)')
    A('s_mov_b64 exec, 1')
    A('s_lshl_b32 s63, s2, 2')
    A(f's_add_u32 s63, s63, s{sW}')
    A('s_lshl_b32 s63, s63, 6')
    A(f's_add_u32 s63, s63, {WS_DBG}')
    A('v_mov_b32 v0, s63')
    for i in range(NST):
        A(f'v_mov_b32 v1, s{64+2*i}')
        A(f'global_store_dword v0, v1, s[60:61] offset:{4*i}')
    A('v_mov_b32 v1, s62')
    A(f'global_store_dword v0, v1, s[60:61] offset:{4*NST}')
    A('s_waitcnt vmcnt(0)')
def lstamp(A, vreg, idx):
    if not LST: return
    A('s_memtime s[64:65]' if ('cyc' in VAR and vreg == 32) else 's_memrealtime s[64:65]')
    A('s_waitcnt lgkmcnt(0)')
    if isinstance(idx, str):
        A(f's_mov_b32 m0, {idx}')
        A(f'v_writelane_b32 v{vreg}, s64, m0')
    else:
        A(f'v_writelane_b32 v{vreg}, s64, {idx}')
def ldump(A):
    if not LST: return
    A('s_lshl_b32 s80, s2, 2')
    A(f's_add_u32 s80, s80, s{sW}')
    A('s_lshl_b32 s80, s80, 10')
    A(f's_add_u32 s80, s80, {WS_DBG2}')
    A('v_lshlrev_b32 v0, 2, v1')
    A('v_add_u32 v0, s80, v0')
    A('global_store_dword v0, v30, s[60:61]')
    A('global_store_dword v0, v31, s[60:61] offset:256')
    A('global_store_dword v0, v32, s[60:61] offset:512')
    A('s_waitcnt vmcnt(0)')

def poll(A, tag, load, vwant, sleep, cmp='ne'):
    A('s_mov_b32 s30, 0x40000')
    A(f'POLL_{tag}:')
    A(load)
    A('s_waitcnt vmcnt(0)')
    A(f'v_cmp_{cmp}_u32 vcc, v10, v{vwant}')
    A('s_sub_u32 s30, s30, 1')
    A(f's_cbranch_scc1 POLLD_{tag}')
    A(f's_cbranch_vccz POLLD_{tag}')
    A(f's_sleep {sleep}')
    A(f's_branch POLL_{tag}')
    A(f'POLLD_{tag}:')

tail = []

def kernel(A):
    A(f'.globl {KNAME}\n.p2align 8\n.type {KNAME},@function\n{KNAME}:')
    A('s_cmp_ge_u32 s2, 256')
    A('s_cbranch_scc1 END2')
    stamp(A, 0)
    if 'flip' in VAR: A('s_xor_b32 s2, s2, 1')
    A('s_load_dwordx4 s[40:43], s[0:1], 0')
    A('s_load_dwordx4 s[44:47], s[0:1], 16')
    A('s_load_dwordx4 s[48:51], s[0:1], 48')
    A('s_load_dwordx2 s[52:53], s[0:1], 64')
    A('s_load_dwordx2 s[54:55], s[0:1], 80')
    A('s_load_dwordx4 s[56:59], s[0:1], 88')
    A('s_load_dwordx2 s[60:61], s[0:1], 104')
    A('v_lshrrev_b32 v8, 6, v0')
    A('v_and_b32 v1, 63, v0')
    A(f'v_readfirstlane_b32 s{sW}, v8')
    A('s_and_b32 s29, s2, 1')
    A('s_lshl_b32 s29, s29, 3')
    A('s_bfe_u32 s30, s2, 0x30003')
    A(f's_add_u32 s{sCB}, s29, s30')
    A('s_bfe_u32 s28, s2, 0x20001')
    A('s_lshl_b32 s31, s28, 2')
    A('s_lshr_b32 s32, s2, 6')
    A(f's_add_u32 s{sTB}, s31, s32')
    A('s_lshl_b32 s29, s32, 1')
    A('s_add_u32 s28, s28, s29')
    A('s_and_b32 s29, s30, 4')
    A('s_add_u32 s28, s28, s29')
    A('s_and_b32 s28, s28, 7')
    A(f's_and_b32 s{sST}, s2, 7')
    A(f's_lshl_b32 s{sST}, s{sST}, 1')
    A('v_lshlrev_b32 v2, 4, v1')
    A(f's_cmp_lt_u32 s{sW}, 4')
    A('s_cbranch_scc1 COMPUTE')
    helper(A)
    A('COMPUTE:')
    p1_compute(A)
    attention(A)
    p3_compute(A)
    A('END:')
    stamp_end(A)
    A('END2:')
    A('s_endpgm')
    A.lines += tail


def opf(A, half):
    for i in range(4):
        A(f's_add_u32 s29, s46, {i*0x20000 + half*0x10000}')
        A(f'buffer_load_dword v{20+i}, v12, {W}, s29 offen sc1')

def helper(A):
    A(f's_sub_u32 s{sW}, s{sW}, 4')
    A('v_lshrrev_b32 v8, 3, v1')
    A('v_lshlrev_b32 v8, 11, v8')
    A('v_lshrrev_b32 v9, 4, v1')
    A('v_and_b32 v10, 7, v1')
    A('v_xor_b32 v10, v10, v9')
    A('v_lshl_add_u32 v16, v10, 4, v8')
    A('v_xor_b32 v10, 4, v10')
    A('v_lshl_add_u32 v17, v10, 4, v8')
    A('v_add_u32 v17, 15360, v17')
    A('v_add_u32 v18, 30720, v16')
    A('v_add_u32 v19, 30720, v17')
    A(f's_lshl_b32 s34, s{sTB}, 18')
    A(f's_lshl_b32 s36, s{sW}, 12')
    A('s_mov_b32 s38, 0')
    A('s_bitcmp1_b32 s2, 0')
    A('s_cbranch_scc1 H_ODD')
    A(f's_and_b32 s29, s{sCB}, 3')
    A('s_lshl_b32 s29, s29, 16')
    A('s_add_u32 s33, s34, s29')
    A(f's_and_b32 s29, s{sW}, 1')
    A('s_lshl_b32 s29, s29, 15')
    A('s_add_u32 s33, s33, s29')
    A(f's_lshr_b32 s29, s{sW}, 1')
    A('s_lshl_b32 s29, s29, 7')
    A('s_add_u32 s33, s33, s29')
    A(f's_lshl_b32 s35, s{sW}, 11')
    A('s_mov_b32 s37, s35')
    A('s_waitcnt lgkmcnt(0)')
    srd(A, SX, 40, 41, 4 << 20)
    A(f's_bitcmp1_b32 s{sCB}, 2')
    A('s_cselect_b32 s44, s50, s44')
    A('s_cselect_b32 s45, s51, s45')
    A('s_cselect_b32 s46, s52, s46')
    A('s_cselect_b32 s47, s53, s47')
    srd(A, SKV, 44, 45, 65536)
    srd(A, SG, 46, 47, 65536)
    lstamp(A, 30, 20)
    A('H_KV:')
    A('s_cmp_lt_u32 s38, 3')
    A('s_cbranch_scc1 H_KV2')
    A('s_waitcnt vmcnt(12)')
    A('s_barrier')
    A('H_KV2:')
    if LST: A('s_add_u32 s49, s38, 48')
    lstamp(A, 31, 's49')
    A('s_lshl_b32 s29, s28, 8')
    A('s_add_u32 s29, s29, s33')
    A('s_mov_b32 m0, s37')
    A('s_lshl_b32 s30, s28, 13')
    for i in range(2):
        A(f'buffer_load_dwordx4 v{16+i}, s[{SX}:{SX+3}], s29 offen offset:{i*1024} lds')
    A('s_add_u32 m0, s37, 8192')
    A('s_add_u32 s30, s30, s35')
    for i in range(2):
        A(f'buffer_load_dwordx4 v2, s[{SKV}:{SKV+3}], s30 offen offset:{i*1024} lds')
    A('s_add_u32 m0, s37, 16384')
    A('s_add_u32 s28, s28, 1')
    for i in range(2):
        A(f'buffer_load_dwordx4 v2, s[{SG}:{SG+3}], s30 offen offset:{i*1024} lds')
    lstamp(A, 30, 's49')
    A('s_and_b32 s28, s28, 7')
    A(f's_add_u32 s37, s37, {SLOT}')
    A(f's_and_b32 s37, s37, {4*SLOT-1:#x}')
    A('s_add_u32 s38, s38, 1')
    A('s_cmp_lt_u32 s38, 8')
    A('s_cbranch_scc1 H_KV')
    A('s_mov_b32 s38, 0')
    A('s_mov_b32 s62, 1')
    A('s_waitcnt vmcnt(12)')
    A('s_barrier')
    A('s_branch H_Q')
    A('H_ODD:')
    A('s_mov_b32 s62, 99')
    A('s_waitcnt lgkmcnt(0)')
    srd(A, SX, 40, 41, 4 << 20)
    A('s_mov_b32 s42, s48')
    A('s_mov_b32 s43, s49')
    A('H_Q:')
    A('s_mov_b32 s37, s36')
    A('v_bfe_u32 v10, v1, 2, 2')
    A('v_xor_b32 v10, v10, v9')
    A('v_lshlrev_b32 v10, 6, v10')
    A('v_lshl_add_u32 v10, v9, 11, v10')
    A('v_and_b32 v8, 3, v1')
    A('v_lshl_add_u32 v20, v8, 4, v10')
    A('v_add_u32 v21, 7168, v20')
    A('v_add_u32 v22, 14336, v20')
    A('v_add_u32 v23, 21504, v20')
    srd(A, SW, 42, 43, 2 << 20)
    A(f's_lshl_b32 s29, s{sW}, 16')
    A('s_add_u32 s34, s34, s29')
    A(f's_and_b32 s35, s{sCB}, 7')
    A('s_lshl_b32 s35, s35, 8')
    A(f's_lshl_b32 s29, s{sW}, 15')
    A('s_add_u32 s35, s35, s29')
    A('H_LOOP:')
    A('s_cmp_ge_u32 s38, 5')
    A('s_cbranch_scc1 H_W16')
    A('s_cmp_lg_u32 s38, s62')
    A('s_cbranch_scc1 H_NX')
    A('s_waitcnt vmcnt(14)')
    A('s_barrier')
    A('s_waitcnt vmcnt(8)')
    A('s_barrier')
    A('H_NX:')
    A('s_bitcmp1_b32 19, s38')
    A('s_cbranch_scc1 H_ISSUE')
    A('s_waitcnt vmcnt(8)')
    A('H_W16:')
    A('s_waitcnt vmcnt(16)')
    lstamp(A, 30, 's38')
    A('s_barrier')
    A('H_ISSUE:')
    lstamp(A, 31, 's38')
    A(f's_lshl_b32 s29, s{sST}, 7')
    A('s_add_u32 s29, s29, s34')
    A('s_mov_b32 m0, s37')
    A(f's_lshl_b32 s30, s{sST}, 17')
    for i in range(4):
        A(f'buffer_load_dwordx4 v{16+i}, s[{SX}:{SX+3}], s29 offen offset:{i*1024} lds')
    A('s_add_u32 m0, s37, 16384')
    A('s_add_u32 s30, s30, s35')
    for i in range(4):
        A(f'buffer_load_dwordx4 v{20+i}, s[{SW}:{SW+3}], s30 offen offset:{i*1024} lds')
    A(f's_add_u32 s{sST}, s{sST}, 1')
    A(f's_and_b32 s{sST}, s{sST}, 15')
    A(f's_add_u32 s37, s37, {SLOT}')
    A(f's_and_b32 s37, s37, {4*SLOT-1:#x}')
    lstamp(A, 32, 's38')
    A('s_add_u32 s38, s38, 1')
    A('s_cmp_lt_u32 s38, 16')
    A('s_cbranch_scc1 H_LOOP')
    A('s_load_dwordx2 s[40:41], s[0:1], 32')
    A('s_load_dwordx2 s[42:43], s[0:1], 72')
    srd(A, SWS, 60, 61, WS_BYTES)
    A(f's_lshr_b32 s32, s{sCB}, 3')
    A('s_lshl_b32 s32, s32, 18')
    A('s_add_u32 s32, s32, s36')
    A('s_lshr_b32 s33, s2, 4')
    A('s_lshl_b32 s33, s33, 14')
    def kv_chunk(c):
        A(f's_add_u32 m0, s36, {L_KVR + ((c+2)&3)*16384}')
        A('s_add_u32 s31, s32, s33')
        for i in range(4):
            A(f'buffer_load_dwordx4 v2, {W}, s31 offen offset:{i*1024} sc1 lds')
        A('s_add_u32 s33, s33, 16384')
        A('s_and_b32 s33, s33, 0x3ffff')
    for n, i in ((16, 16), (8, 17), (8, 18)):
        A(f's_waitcnt vmcnt({n})')
        lstamp(A, 30, i)
        A('s_barrier')
        lstamp(A, 31, i)
        if i == 17:
            kv_chunk(0)
            kv_chunk(1)
    A('v_lshrrev_b32 v8, 3, v1')
    A('v_lshlrev_b32 v8, 11, v8')
    A('v_lshrrev_b32 v10, 2, v1')
    A('v_lshrrev_b32 v12, 4, v1')
    A('v_xor_b32 v10, v10, v12')
    A('v_and_b32 v10, 1, v10')
    A('v_lshl_add_u32 v8, v10, 6, v8')
    A('v_and_b32 v10, 3, v1')
    A('v_lshl_add_u32 v16, v10, 4, v8')
    A('v_add_u32 v17, 15360, v16')
    A('v_add_u32 v18, 30720, v16')
    A('v_add_u32 v19, 46080, v16')
    A(f's_lshl_b32 s34, s{sCB}, 7')
    A(f's_lshl_b32 s29, s{sW}, 17')
    A('s_add_u32 s34, s34, s29')
    A('s_bfe_u32 s29, s2, 0x20001')
    A(f's_lshr_b32 s{sST}, s{sCB}, 3')
    A(f's_lshl_b32 s{sST}, s{sST}, 2')
    A(f's_add_u32 s{sST}, s{sST}, s29')
    if 'g2' in VAR:
        A(f's_and_b32 s29, s{sCB}, 4')
        A(f's_xor_b32 s{sST}, s{sST}, s29')
    A('s_waitcnt lgkmcnt(0)')
    A('s_and_b32 s41, s41, 0xffff')
    A('s_and_b32 s43, s43, 0xffff')
    A(f's_mov_b32 s{SWO+2}, 0x200000')
    A(f's_mov_b32 s{SWO+3}, 0x20000')
    A('v_mov_b32 v9, 0')
    A('v_mov_b32 v11, 64')
    A('v_add_u32 v13, s36, v2')
    A('v_add_u32 v14, 0x10000, v13')
    A('v_add_u32 v15, 0x18000, v13')
    A(f's_lshl_b32 s44, s{sTB}, 8')
    A(f's_add_u32 s44, s44, {WS_FLAG}')
    A(f's_cmp_eq_u32 s{sW}, 0')
    A('s_cselect_b32 s45, s44, 0x40000000')
    A('v_lshlrev_b32 v12, 7, v1')
    A(f's_lshl_b32 s46, s{sTB}, 19')
    A(f's_and_b32 s29, s{sCB}, 7')
    A('s_lshl_b32 s29, s29, 13')
    A('s_add_u32 s46, s46, s29')
    A(f's_add_u32 s46, s46, {WS_OF}')
    A('s_waitcnt vmcnt(4)')
    lstamp(A, 30, 19)
    A('s_barrier')
    lstamp(A, 31, 19)
    def hold(j, i):
        return v(48+16*j+4*i, 4) if j < 8 else a(16*(j-8)+4*i, 4)
    def wo_stage(n):
        A(f's_cmp_ge_u32 s{sST}, 4')
        A(f's_cselect_b32 s{SWO}, s42, s40')
        A(f's_cselect_b32 s{SWO+1}, s43, s41')
        A(f's_and_b32 s29, s{sST}, 3')
        A('s_lshl_b32 s29, s29, 19')
        if n == 8: A('s_add_u32 s34, s34, 0x10000')
        if n < 6: A(f's_add_u32 m0, s36, {n*16384}')
        A('s_add_u32 s29, s29, s34')
        for i in range(4):
            if n < 6:
                A(f'buffer_load_dwordx4 v{16+i}, s[{SWO}:{SWO+3}], s29 offen offset:{i*1024} lds')
            else:
                A(f'buffer_load_dwordx4 {hold(n-6,i)}, v{16+i}, s[{SWO}:{SWO+3}], s29 offen offset:{i*1024}')
        A(f's_add_u32 s{sST}, s{sST}, 1')
        A(f's_and_b32 s{sST}, s{sST}, 7')
    V = Cnt(A, 'vmcnt', 63)
    def track(tag, n=4):
        V.q += [tag]*n
    track(('c', 1))
    kv_chunk(2); track(('c', 2))
    kv_chunk(3); track(('c', 3))
    if 'hpf' in VAR.split('_'):
        A('s_getpc_b64 s[62:63]')
        A('HPF_PC:')
        A(f's_lshl_b32 s29, s{sW}, 13')
        A('s_add_u32 s29, s29, AT_LOOP-HPF_PC')
        A('v_lshlrev_b32 v20, 7, v1')
        A('v_add_u32 v20, s29, v20')
        A('v_min_u32 v20, AT_SLOW-HPF_PC, v20')
        A('global_load_dword v21, v20, s[62:63]')
        track(('h', 0), 1)
    nwo = 0
    for i in range(13):
        V.need(('c', i+1) if i < 15-CT else ('c', i+3))
        A('s_barrier')
        lstamp(A, 30, 48+i); lstamp(A, 32, 48+i)
        if i + 4 < 16:
            kv_chunk(i+4); track(('c', i+4))
        for _ in range(2 if i < 4 else 1):
            if nwo < 16:
                wo_stage(nwo); track(('w', nwo)); nwo += 1
    assert nwo == 16
    A('s_waitcnt vmcnt(0)')
    A(f's_cmp_lg_u32 s{sW}, 0')
    A('s_cbranch_scc1 H_NOPOLL2')
    A('s_setprio 3')
    A(f's_sleep {64 if CT == 4 else 96}')
    poll(A, 'O', f'buffer_load_dword v10, v9, {W}, s44 offen sc1', 11, 8, 'lt')
    if 'noe' not in VAR: opf(A, 0)
    A('H_NOPOLL2:')
    A('s_barrier')
    lstamp(A, 31, 32)
    for j in range(4):
        for i in range(4):
            A(f'ds_write_b128 v15, {hold(j,i)} offset:{j*16384+i*1024}')
        if j == 2: A('s_waitcnt lgkmcnt(8)')
    for b in range(4):
        if b == 3:
            A(f's_cmp_lg_u32 s{sW}, 0')
            A('s_cbranch_scc1 H_NOPOLL3')
            poll(A, 'O2', f'buffer_load_dword v10, v9, {W}, s44 offen offset:128 sc1', 11, 2, 'lt')
            A('H_NOPOLL3:')
        if b: A('s_waitcnt lgkmcnt(0)')
        A('s_barrier')
        if b >= 1:
            for j in (2*b-2, 2*b-1):
                for i in range(4):
                    A(f'ds_write_b128 v{13 + j//4}, {hold(j+4,i)} offset:{(j%4)*16384+i*1024}')
                    A('s_waitcnt lgkmcnt(0)')
    ldump(A)
    A('s_endpgm')

def kv_adv():
    return ['s_add_u32 s33, s33, 4096', 's_and_b32 s33, s33, 0x3ffff', 's_add_u32 s34, s32, s33']
def kv_loads(b):
    return [f'buffer_load_dwordx4 {a(AK+8*b,4)}, v2, {W}, s34 offen sc1',
            f'buffer_load_dwordx4 {a(AK+8*b+4,4)}, v2, {W}, s34 offen offset:1024 sc1',
            f'buffer_load_dwordx4 {a(AV+8*b,4)}, v2, {W}, s34 offen offset:2048 sc1',
            f'buffer_load_dwordx4 {a(AV+8*b+4,4)}, v2, {W}, s34 offen offset:3072 sc1']
def kvr(st, b):
    return [f'ds_read_b128 {a(AK+8*b,4)}, v0 offset:{st*4096}',
            f'ds_read_b128 {a(AK+8*b+4,4)}, v0 offset:{st*4096+1024}',
            f'ds_read_b128 {a(AV+8*b,4)}, v0 offset:{st*4096+2048}',
            f'ds_read_b128 {a(AV+8*b+4,4)}, v0 offset:{st*4096+3072}']
sel_code = [f'v_mov_b32 v{SEL+3}, 0x3f803f80', f'v_and_b32 v{SEL+2}, 7, v1', f'v_cmp_eq_u32 vcc, 0, v{SEL+2}',
            f'v_cmp_eq_u32 s[46:47], 4, v{SEL+2}', f'v_mov_b32 v{IDX}, 0xdddddddd', 's_nop 0',
            f'v_cndmask_b32 v{SEL}, 0, v{SEL+3}, vcc', f'v_cndmask_b32 v{SEL+1}, 0, v{SEL+3}, vcc',
            f'v_cndmask_b32 v{SEL+2}, 0, v{SEL+3}, s[46:47]', f'v_cndmask_b32 v{SEL+3}, 0, v{SEL+3}, s[46:47]']

def p1_compute(A):
    XA, WA = 3, 7
    KXA, KWA, GA, GB, KST, KAC, VAC, GAC = 144, 146, 147, 148, 149, 152, 156, 160
    A('v_lshlrev_b32 v3, 7, v1')
    A('s_and_b32 s30, s2, 0xfe')
    A(f's_add_u32 s30, s30, s{sW}')
    A('s_lshl_b32 s30, s30, 13')
    A(f's_lshr_b32 s29, s{sW}, 1')
    A('s_andn2_b32 s29, s2, s29')
    A('s_bitcmp1_b32 s29, 0')
    A('s_cselect_b32 s30, s30, 0x40000000')
    if 'nopf' in VAR: A('s_mov_b32 s30, 0x40000000')
    A(f's_lshl_b32 s29, s{sW}, 10')
    A('s_and_b32 s29, s29, 1024')
    A(f's_add_u32 m0, s29, {L_GATE}')
    A('s_waitcnt lgkmcnt(0)')
    srd(A, SG, 54, 55, 2048)
    A(f'buffer_load_dwordx4 v2, s[{SG}:{SG+3}], s29 offen lds')
    if 'cpf' in VAR:
        A('s_getpc_b64 s[62:63]')
        A('CPF_PC:')
        A(f's_lshl_b32 s29, s{sW}, 13')
        A('v_add_u32 v4, s29, v3')
        A('v_min_u32 v4, END2-CPF_PC+3584, v4')
        A('global_load_dword v175, v4, s[62:63] offset:-3584')
    srd(A, SW, 42, 43, 2 << 20)
    srd(A, SWS, 60, 61, WS_BYTES)
    A(f's_lshl_b32 s55, s{sTB}, 8')
    A(f's_add_u32 s55, s55, {WS_FLAG}')
    A(f's_lshl_b32 s29, s{sCB}, 2')
    A(f's_add_u32 s29, s29, s{sW}')
    A('s_cmp_eq_u32 s29, 3')
    A('s_cselect_b32 s29, s55, 0x40000000')
    A('v_lshlrev_b32 v8, 2, v1')
    A('v_mov_b32 v9, 0')
    A(f'buffer_store_dword v9, v8, {W}, s29 offen sc1')
    A(f'buffer_load_dword v0, v3, s[{SW}:{SW+3}], s30 offen')
    A('v_and_b32 v8, 15, v1')
    A(f's_and_b32 s29, s{sW}, 1')
    A('s_lshl_b32 s29, s29, 4')
    A('v_add_u32 v8, s29, v8')
    A('v_lshrrev_b32 v9, 4, v1')
    A('v_bfe_u32 v10, v8, 1, 3')
    A('v_xor_b32 v10, v10, v9')
    A('v_lshlrev_b32 v8, 7, v8')
    A(f'v_lshl_add_u32 v{KXA}, v10, 4, v8')
    A('v_xor_b32 v10, 4, v10')
    A(f'v_lshl_add_u32 v{KXA+1}, v10, 4, v8')
    A('v_bfe_u32 v11, v1, 2, 2')
    A('v_and_b32 v14, 3, v1')
    A('v_lshl_add_u32 v12, v9, 3, v11')
    A('v_lshlrev_b32 v12, 6, v12')
    A('v_lshl_add_u32 v12, v14, 3, v12')
    A(f's_lshr_b32 s29, s{sW}, 1')
    A('s_lshl_b32 s29, s29, 5')
    A(f'v_add_u32 v{KWA}, s29, v12')
    A(f'v_lshlrev_b32 v{GB}, 4, v9')
    A(f'v_add_u32 v{GB}, {L_GATE}, v{GB}')
    A('s_lshl_b32 s29, s28, 8')
    A(f'v_add_u32 v{GA}, s29, v{GB}')
    for r in range(12):
        A(f'v_mov_b32 v{KAC+r}, 0')
    A('v_and_b32 v8, 15, v1')
    A('v_bfe_u32 v9, v1, 4, 1')
    A('v_lshrrev_b32 v10, 5, v1')
    A('v_lshl_add_u32 v12, v9, 5, v8')
    A('v_lshlrev_b32 v12, 4, v12')
    A('v_lshl_add_u32 v12, v10, 3, v12')
    A('v_lshl_add_u32 v13, v10, 5, v8')
    A('v_lshlrev_b32 v13, 4, v13')
    A('v_lshl_add_u32 v13, v9, 3, v13')
    A(f's_and_b32 s29, s{sW}, 1')
    A(f's_lshr_b32 s30, s{sW}, 1')
    A('s_lshl_b32 s31, s29, 8')
    A('s_lshl_b32 s32, s30, 10')
    A('s_add_u32 s31, s31, s32')
    A(f'v_add_u32 v{KST}, s31, v12')
    A('s_lshl_b32 s31, s29, 10')
    A('s_lshl_b32 s32, s30, 8')
    A('s_add_u32 s31, s31, s32')
    A(f'v_add_u32 v{KST+1}, s31, v13')
    A(f'v_lshlrev_b32 v{KST+2}, 2, v1')
    A('v_and_b32 v15, 31, v1')
    A('v_lshrrev_b32 v9, 5, v1')
    A('v_bfe_u32 v10, v1, 1, 3')
    A('v_xor_b32 v10, v10, v9')
    A('v_lshlrev_b32 v15, 7, v15')
    A(f's_and_b32 s29, s{sW}, 1')
    A('s_lshl_b32 s29, s29, 13')
    A('v_add_u32 v15, s29, v15')
    for st in range(4):
        A(f'v_xor_b32 v12, {2*st}, v10')
        A(f'v_lshl_add_u32 v{XA+st}, v12, 4, v15')
    A('v_lshl_add_u32 v12, v9, 3, v11')
    A('v_bfe_u32 v13, v1, 4, 1')
    A('v_lshlrev_b32 v13, 5, v13')
    A('v_lshl_add_u32 v13, v14, 3, v13')
    A(f's_and_b32 s30, s{sW}, 2')
    A('v_xor_b32 v14, s30, v11')
    A(f'v_lshl_add_u32 v{WA}, v14, 6, v13')
    A('v_xor_b32 v14, 1, v14')
    A(f'v_lshl_add_u32 v{WA+1}, v14, 6, v13')
    A('v_lshlrev_b32 v14, 8, v12')
    A(f'v_add_u32 v{WA}, v{WA}, v14')
    A(f'v_add_u32 v{WA+1}, v{WA+1}, v14')
    for r in range(SB, SB+64):
        A(f'v_mov_b32 v{r}, 0')
    for r in range(16):
        A(f'v_accvgpr_write_b32 a{AL+r}, 0')
    for r in range(4):
        A(f'v_accvgpr_write_b32 a{AV+12+r}, 0')
    for l in sel_code: A(l)
    A(f's_bfe_u32 s32, s{sCB}, 0x10002')
    A('s_lshl_b32 s37, s32, 31')
    A('s_lshl_b32 s31, s32, 13')
    A('s_lshl_b32 s32, s32, 18')
    A(f's_lshl_b32 s30, s{sTB}, 2')
    A(f's_and_b32 s29, s{sCB}, 3')
    A('s_add_u32 s30, s30, s29')
    A('s_lshl_b32 s35, s30, 12')
    A('s_add_u32 s35, s35, s32')
    A('s_lshl_b32 s36, s30, 7')
    A('s_add_u32 s36, s36, s31')
    A(f's_and_b32 s31, s{sW}, 1')
    A('s_lshl_b32 s31, s31, 6')
    A('s_add_u32 s36, s36, s31')
    A(f's_add_u32 s36, s36, {WS_G}')
    A(f's_cmp_lt_u32 s{sW}, 2')
    A('s_cselect_b32 s36, s36, 0x40000000')
    A(f's_xor_b32 s37, s37, {f32bits(-LOG2E):#x}')
    A(f's_lshr_b32 s32, s{sCB}, 3')
    A('s_lshl_b32 s32, s32, 18')
    A(f's_mov_b32 s39, {SLOT}')
    A(f's_cmp_eq_u32 s{sW}, 3')
    A(f's_cselect_b32 s45, {(1<<NSIG)|(1<<NPOLL)|(1<<NCHK):#x}, 0')
    A(f's_lshl_b32 s29, s{sTB}, 2')
    A(f's_and_b32 s30, s{sW}, 1')
    A('s_lshl_b32 s30, s30, 1')
    A('s_add_u32 s29, s29, s30')
    A('s_lshl_b32 s48, s29, 7')
    A('s_lshr_b32 s30, s32, 5')
    A('s_add_u32 s48, s48, s30')
    A(f's_add_u32 s48, s48, {WS_G}')
    A('s_lshl_b32 s50, s29, 17')
    A(f's_lshl_b32 s31, s{sCB}, 2')
    A(f's_and_b32 s29, s{sW}, 2')
    A('s_add_u32 s31, s31, s29')
    A('s_lshl_b32 s31, s31, 10')
    A('s_add_u32 s50, s50, s31')
    A(f's_add_u32 s50, s50, {WS_OF}')
    A('s_add_u32 s51, s50, 0x20000')
    A('s_add_u32 s52, s50, 0x10000')
    A('s_add_u32 s53, s51, 0x10000')
    A('s_mov_b32 s33, 32768')
    A(f's_lshl_b32 s84, s{sTB}, 2')
    A(f's_add_u32 s84, s84, s{sW}')
    A('s_lshl_b32 s85, s84, 17')
    A(f's_add_u32 s85, s85, {WS_OF}')
    A('s_bfe_u32 s29, s2, 0x20001')
    A(f's_lshr_b32 s86, s{sCB}, 3')
    A('s_lshl_b32 s86, s86, 2')
    A('s_add_u32 s86, s86, s29')
    if 'g2' in VAR:
        A(f's_and_b32 s29, s{sCB}, 4')
        A('s_xor_b32 s86, s86, s29')
    A('s_lshl_b32 s86, s86, 13')
    A('s_add_u32 s87, s85, s86')
    A('s_add_u32 s88, s87, 4096')
    stamp(A, 1)
    def rd_list(st):
        sb = OB + 16*st
        def ra(aa, rho): return (f'ds_read_b64_tr_b16 {v(sb+4*aa+2*rho,2)}, v{WA+aa} offset:{16384+st*4096+rho*1024}', (st, 'A', aa))
        def rb(b): return (f'ds_read_b128 {v(sb+8+4*b,4)}, v{XA+st} offset:{b*4096}', (st, 'B', b))
        return [ra(0,0), ra(0,1), rb(0), rb(1), ra(1,0), ra(1,1)]
    allr = [r for st in range(4) for r in rd_list(st)]
    L = Cnt(A, 'lgkmcnt', 15)
    A('s_mov_b32 s38, 0')
    A('s_waitcnt vmcnt(3)' if 'cpf' in VAR else 's_waitcnt vmcnt(2)')
    A('s_barrier')
    A('s_bitcmp1_b32 s2, 0')
    A('s_cbranch_scc1 P1_Q0')
    FB = 16
    def rd(st):
        fb = FB + 16*st
        for rho in range(2):
            L.issue(f'ds_read_b64_tr_b16 {a(fb+2*rho,2)}, v{KWA} offset:{8192+st*2048+rho*256}', ('k', st))
        L.issue(f'ds_read_b128 {a(fb+8,4)}, v{KXA+(st&1)} offset:{(st>>1)*4096}', ('k', st))
        for rho in range(2):
            L.issue(f'ds_read_b64_tr_b16 {a(fb+4+2*rho,2)}, v{KWA} offset:{16384+st*2048+rho*256}', ('k', st))
        L.issue(f'ds_read_b128 {a(fb+12,4)}, v{GA} offset:{st*64}', ('k', st))
    def mm(st):
        fb = FB + 16*st
        L.need(('k', st))
        A(f'v_mfma_f32_16x16x32_bf16 {v(KAC,4)}, {a(fb,4)}, {a(fb+8,4)}, {v(KAC,4)}')
        A(f'v_mfma_f32_16x16x32_bf16 {v(VAC,4)}, {a(fb+8,4)}, {a(fb+4,4)}, {v(VAC,4)}')
        A(f'v_mfma_f32_16x16x32_bf16 {v(GAC,4)}, {a(fb+12,4)}, {a(fb+8,4)}, {v(GAC,4)}')
    for st in range(2): rd(st)
    if 'al' in VAR.split('_'): A('.p2align 6')
    A('KV_LOOP:')
    q0 = list(L.q)
    for st in range(2):
        mm(st)
        rd(st + 2)
    A('s_and_b32 s29, s38, 3')
    A('s_cmp_eq_u32 s29, 3')
    A(f's_cselect_b32 s29, {(-3*SLOT) & 0xffffffff:#x}, s39')
    for r in (KXA, KXA+1, KWA):
        A(f'v_add_u32 v{r}, s29, v{r}')
    A('s_add_u32 s28, s28, 1')
    A('s_and_b32 s28, s28, 7')
    A('s_lshl_b32 s29, s28, 8')
    A(f'v_add_u32 v{GA}, s29, v{GB}')
    A('s_add_u32 s38, s38, 1')
    A('s_cmp_lt_u32 s38, 8')
    L.drain()
    A('s_cbranch_scc0 KV_TAIL')
    A('s_barrier')
    for st in range(2, 4):
        rd(st - 2)
        mm(st)
    assert L.q == q0
    A('s_branch KV_LOOP')
    A('KV_TAIL:')
    L.q = []
    mm(2)
    mm(3)
    for r in range(4):
        A(f'v_accvgpr_write_b32 a{AV+12+r}, 0')
    A('s_nop 1')
    A(f's_mov_b32 s31, {f32bits(QK_SCALE):#x}')
    for r in range(4):
        A(f'v_mul_f32 v{KAC+r}, s31, v{KAC+r}')
    A(f'v_mul_f32 v{GAC}, s37, v{GAC}')
    A(f'v_cvt_pk_bf16_f32 v{VAC}, v{VAC}, v{VAC+1}')
    A(f'v_exp_f32 v{GAC}, v{GAC}')
    A(f'v_cvt_pk_bf16_f32 v{VAC+1}, v{VAC+2}, v{VAC+3}')
    A(f'v_add_f32 v{GAC}, 1.0, v{GAC}')
    A(f'v_cvt_pk_bf16_f32 v{KAC}, v{KAC}, v{KAC+1}')
    A(f'v_rcp_f32 v{GAC}, v{GAC}')
    A(f'v_cvt_pk_bf16_f32 v{KAC+1}, v{KAC+2}, v{KAC+3}')
    A(f'buffer_store_dwordx2 {v(VAC,2)}, v{KST+1}, {W}, s35 offen offset:2048 sc1')
    A(f'buffer_store_dwordx2 {v(KAC,2)}, v{KST}, {W}, s35 offen sc1')
    A('s_mov_b64 exec, 0xffff')
    A(f'buffer_store_dword v{GAC}, v{KST+2}, {W}, s36 offen sc1')
    A('s_mov_b64 exec, -1')
    A('s_barrier')
    A('P1_Q0:')
    for r in allr[:15]: A(r[0])
    A('P1_Q:')
    stamp(A, 2)
    def group(st, rds, other=(), nother=2):
        rds = list(rds); other = list(other)
        sb = OB + 16*st
        for aa in range(2):
            for b in range(2):
                acc = SB + 16*(aa*2+b)
                L.need((st, 'A', aa), (st, 'B', b))
                if 'hack16' in VAR:
                    q = acc + 8*(st&1)
                    A(f'v_mfma_f32_16x16x32_bf16 {v(q,4)}, {v(sb+4*aa,4)}, {v(sb+8+4*b,4)}, {v(q,4)}')
                    if rds: L.issue(*rds.pop(0))
                    A(f'v_mfma_f32_16x16x32_bf16 {v(q+4,4)}, {v(sb+8+4*b,4)}, {v(sb+4*aa,4)}, {v(q+4,4)}')
                    if rds: L.issue(*rds.pop(0))
                else:
                  A(f'v_mfma_f32_32x32x16_bf16 {v(acc,16)}, {v(sb+4*aa,4)}, {v(sb+8+4*b,4)}, {v(acc,16)}')
                  for _ in range(2):
                    if rds: L.issue(*rds.pop(0))
                for _ in range(nother):
                    if other: A(other.pop(0))
        assert not rds
        for o in other: A(o)
    L.q = []
    A('s_mov_b32 s38, 0')
    L.q = [r[1] for r in allr[:15]]
    L.issue(*allr[15])
    adr = [f'v_add_u32 v{r}, s29, v{r}' for r in (XA, XA+1, XA+2, XA+3, WA, WA+1)]
    def stage(mode, extra=()):
        L.need(*[r[1] for r in allr[:8]])
        group(0, allr[16:24], ['s_and_b32 s29, s38, 3', 's_cmp_eq_u32 s29, 3', f's_cselect_b32 s29, {(-3*SLOT) & 0xffffffff:#x}, s39',
                               's_add_u32 s38, s38, 1', f's_cmp_eq_u32 s38, {NSIG}' if mode == 'loop' else ''])
        if mode == 'last':
            z = [f'v_mov_b32 v{OB+r}, 0' for r in range(64)]
            L.need(*[r[1] for r in allr[8:16]])
            group(1, [], list(extra) + z[:16], 5)
            L.drain()
            A('s_barrier')
            for r in kvr(0, 0): A(r)
            cv = [[f'v_cvt_pk_bf16_f32 v{QB+8*t+i}, v{SB+16*t+2*i}, v{SB+16*t+2*i+1}' for i in range(8)] for t in range(4)]
            fill = z[16:32] + ['', '', '', ''] + cv[0] + ['', ''] + cv[1] + ['', '']
            for t in range(4):
                aa, b = t >> 1, t & 1
                for st in (2, 3):
                    sb = OB + 16*st
                    A(f'v_mfma_f32_32x32x16_bf16 {v(SB+16*t,16)}, {v(sb+4*aa,4)}, {v(sb+8+4*b,4)}, {v(SB+16*t,16)}')
                    for _ in range(5):
                        if fill: A(fill.pop(0))
            assert not fill
            A('s_waitcnt lgkmcnt(0)')
            A(qk(0, 0, 0))
            for l in cv[2]: A(l)
            A(qk(0, 0, 1))
            for l in z[32:]: A(l)
            for l in cv[3]: A(l)
            for r in range(8):
                A(f'v_mov_b32 v{SB+48+8+r}, 0')
            return
        L.need(*[r[1] for r in allr[8:16]])
        group(1, [], list(extra) + adr, 3)
        if mode == 'loop':
            A('s_cbranch_scc1 Q_PRE')
            A('Q_PRE_RET:')
        L.drain()
        A('s_barrier')
        group(2, allr[0:8], ['', '', '', '', '', '', 's_bitcmp1_b32 s45, s38', 's_cbranch_scc1 Q_POST\nQ_POST_RET:'] if mode == 'loop' else [])
        group(3, allr[8:16])
    if 'al' in VAR.split('_'): A('.p2align 6')
    A('Q_LOOP:')
    q0 = list(L.q)
    stage('loop')
    assert L.q == q0, (L.q, q0)
    A('s_cmp_lt_u32 s38, 15')
    A('s_cbranch_scc1 Q_LOOP')
    T = A
    A('s_branch Q_LAST')
    T('Q_PRE:')
    T('s_waitcnt vmcnt(0)')
    T('s_branch Q_PRE_RET')
    T('Q_POST:')
    T(f's_cmp_eq_u32 s38, {NPOLL}')
    T('s_cbranch_scc1 Q_POLL')
    T(f's_cmp_eq_u32 s38, {NCHK}')
    T('s_cbranch_scc1 Q_CHECK')
    T('s_and_b32 s30, s2, 1')
    T('s_lshl_b32 s30, s30, 7')
    T('v_mov_b32 v0, s30')
    T('v_mov_b32 v11, 1')
    T('s_mov_b64 exec, 1')
    T(f'global_atomic_add v0, v11, s[{DBG}:{DBG+1}] sc1')
    T('s_mov_b64 exec, -1')
    T('s_branch Q_POST_RET')
    T('Q_POLL:')
    T('v_and_b32 v0, 1, v1')
    T('v_lshlrev_b32 v0, 7, v0')
    T('v_mov_b32 v11, 128')
    T(f'global_load_dword v10, v0, s[{DBG}:{DBG+1}] sc1')
    T('s_branch Q_POST_RET')
    T('Q_CHECK:')
    T('s_waitcnt vmcnt(0)')
    T('v_cmp_lt_u32 vcc, v10, v11')
    T('s_nop 1')
    T('s_cbranch_vccz Q_POST_RET')
    poll(T, 'KV', f'global_load_dword v10, v0, s[{DBG}:{DBG+1}] sc1', 11, 8, 'lt')
    T('s_branch Q_POST_RET')
    A('Q_LAST:')
    stage('last', [f'v_add_u32 v0, {L_KVR+32768}, v2', 'v_and_b32 v10, 31, v1', 'v_lshlrev_b32 v10, 2, v10',
                   f'buffer_load_dword v11, v10, {W}, s48 offen offset:128 sc1', f'buffer_load_dword v10, v10, {W}, s48 offen sc1'])
    stamp(A, 3)

def qk(t, kb, half, sb=None):
    sb = t if sb is None else sb
    c = '0' if half == 0 else v(SB+16*sb, 16)
    return f'v_mfma_f32_32x32x16_bf16 {v(SB+16*sb,16)}, {a(AK+8*kb+4*half,4)}, {v(QB+8*t+4*half,4)}, {c}'
def pv(t, vb, half, sb=None):
    sb = t if sb is None else sb
    return f'v_smfmac_f32_32x32x32_bf16 {v(OB+16*t,16)}, {a(AV+8*vb+4*half,4)}, {v(SB+16*sb+8*half,8)}, v{IDX}'
def sm(t, half, sb=None):
    sb = t if sb is None else sb
    if 'halfsum' in VAR and half == 1: return 's_nop 0'
    return f'v_smfmac_f32_16x16x64_bf16 {a(AL+4*t,4)}, {v(SEL,4)}, {v(SB+16*sb+8*half,8)}, v{IDX}'
def ex(t, i):
    return f'v_exp_f32 v{SB+16*t+i}, v{SB+16*t+i}'

def slot(A, cur, nxt, prv, x):
    t, kb, sb = cur
    A(qk(nxt[0], nxt[1], 0, nxt[2]) if nxt else '')
    A(x.get(0, ''))
    for e in (0, 1, 2): A(ex(sb, e))
    A(qk(nxt[0], nxt[1], 1, nxt[2]) if nxt else '')
    A(x.get(1, ''))
    for e in (3, 4, 5): A(ex(sb, e))
    A(pv(prv[0], prv[1], 1, prv[2]))
    A(x.get(2, ''))
    for e in (6, 7, 8): A(ex(sb, e))
    A(sm(prv[0], 1, prv[2]))
    A(x.get(3, ''))
    for e in (9, 10): A(ex(sb, e))
    A(pv(t, kb, 0, sb))
    A(x.get(4, ''))
    for e in (11, 12, 13): A(ex(sb, e))
    A(sm(t, 0, sb))
    A(x.get(5, ''))
    for e in (14, 15): A(ex(sb, e))

def tile_out(A, t, check):
    aa, b = t >> 1, t & 1
    o = OB + 16*t
    A(f'v_accvgpr_read_b32 v0, a{AL+4*t}')
    A('v_rcp_f32 v8, v0')
    if check:
        A('v_min_f32 v4, v4, v0')
        A('v_max_f32 v5, v5, v0')
        A('v_fma_f32 v6, v0, 0, v6')
    else:
        A('s_nop 0')
    A(f'v_mul_f32 v8, v8, v{10+b}')
    for h in range(2):
        for r in range(8*h, 8*h+8, 2):
            A(f'v_pk_mul_f32 {v(o+r,2)}, {v(o+r,2)}, v[8:9] op_sel_hi:[1,0]')
        if check:
            for r in range(8*h, 8*h+8, 2):
                A(f'v_pk_fma_f32 v[6:7], {v(o+r,2)}, 0, v[6:7]')
        for r in range(4):
            A(f'v_cvt_pk_bf16_f32 v{o+8*h+r}, v{o+8*h+2*r}, v{o+8*h+2*r+1}')
        A(f'buffer_store_dwordx4 {v(o+8*h,4)}, v2, {W}, s{50+t} offen offset:{h*1024} sc1')

def oreg(slot, st):
    return v((80, 144)[slot] + 4*st, 4)
def oload(slot, st):
    return (f'buffer_load_dwordx4 {oreg(slot,st)}, v2, {W}, s{87+st//4} offen offset:{(st%4)*1024} sc1', ('O', slot, st))

def check(A, which):
    A(f'v_cmp_gt_f32 vcc, {f32bits(2.0**-16):#x}, v4')
    A(f's_mov_b32 s29, {f32bits(2.0**64):#x}')
    A('v_cmp_lt_f32 s[46:47], s29, v5')
    A('v_cmp_u_f32 s[30:31], v6, v7')
    A('s_nop 1')
    A('s_or_b64 s[46:47], s[46:47], vcc')
    A('s_or_b64 s[46:47], s[46:47], s[30:31]')
    if 'forceslow' + which in VAR:
        A('s_cmp_eq_u32 0, 0')
def signal(A, off):
    A('v_mov_b32 v8, 0')
    A('v_mov_b32 v0, 1')
    A('s_mov_b64 exec, 1')
    A(f'buffer_atomic_add v0, v8, {W}, s55 offen offset:{off} sc1')
    A('s_mov_b64 exec, -1')

def attention(A):
    A(f's_mov_b32 s36, {16-CT}')
    A(f'v_add_u32 v3, {L_KVR}, v2')
    A('v_mov_b32 v4, 1.0')
    A('v_mov_b32 v5, 1.0')
    A('v_mov_b32 v6, 0')
    A('v_mov_b32 v7, 0')
    stamp(A, 4)
    A('.p2align 6')
    A('AT_LOOP:')
    for i in range(4):
        for t in range(4):
            nt, nb = (t+1) % 4, ((i if t < 3 else i+1) % 2)
            pt, pb = (t-1) % 4, ((i if t > 0 else i-1) % 2)
            x = {3: kvr((i+1) % 4, (i+1) % 2)[t]}
            if 'nokvr' in VAR and i > 1: x = {}
            if t == 0: x[0] = 's_waitcnt lgkmcnt(0)' + ('\ns_barrier' if i == 3 else '')
            if t == 2 and i == 3: x[1] = 's_sub_u32 s36, s36, 1'
            if t == 1 and i == 2: x[1] = 's_add_u32 s33, s33, 16384'
            if t == 2 and i == 2: x[1] = 's_and_b32 s33, s33, 0xffff'
            if t == 0 and i == 3: x[2] = 'v_add_u32 v0, s33, v3'
            if t == 2: x[5] = 's_waitcnt lgkmcnt(1)'
            if t == 3 and i == 3: x[5] = 's_cmp_lg_u32 s36, 0'
            slot(A, (t, i % 2, t), (nt, nb, nt), (pt, pb, pt), x)
    A('s_cbranch_scc1 AT_LOOP')
    NS = 4*CT
    def kvt(g):
        st = g % NS
        c = 16 - CT + st//4
        off = ((c+2) & 3)*16384 + (st % 4)*4096
        b = g % 4
        return [f'ds_read_b128 {a(AK+8*b,4)}, v3 offset:{off}', f'ds_read_b128 {a(AK+8*b+4,4)}, v3 offset:{off+1024}',
                f'ds_read_b128 {a(AV+8*b,4)}, v3 offset:{off+2048}', f'ds_read_b128 {a(AV+8*b+4,4)}, v3 offset:{off+3072}']
    seq = [(2*(g//NS) + j, g % 4) for g in range(2*NS) for j in range(2)]
    seq = [(t, b, n % 4) for n, (t, b) in enumerate(seq)]
    N = len(seq)
    for n in range(N):
        g, j = n//2, n % 2
        x = {}
        if n == 0:
            r1, r2 = kvt(1), kvt(2)
            x[0] = 's_waitcnt lgkmcnt(0)\n' + r1[0]
            x[1] = r1[1]
            x[3] = r1[2] + '\n' + r1[3]
            x[5] = r2[0] + '\n' + r2[1] + '\ns_waitcnt lgkmcnt(4)'
        elif n == 1:
            x[3] = r2[2]
            x[5] = r2[3]
        else:
            if g + 2 < 2*NS:
                r = kvt(g+2)
                x[3] = r[2*j]
                x[5] = r[2*j+1]
            if j == 0: x[0] = 's_waitcnt lgkmcnt(2)' if g + 1 < 2*NS else 's_waitcnt lgkmcnt(0)'
        if n == 2: x[1] = 's_waitcnt vmcnt(0)'
        if CT == 4 and n == 17: x[1] = 's_barrier'
        if n == N-3:
            x[0] = 's_waitcnt lgkmcnt(0)\ns_barrier'
            x[3] = oload(0, 0)[0]; x[5] = oload(0, 1)[0]
        if n == N-2:
            x[1] = oload(0, 2)[0]; x[3] = oload(0, 3)[0]; x[5] = oload(0, 4)[0]
        if n == N-1:
            x[2] = oload(0, 5)[0]; x[3] = oload(0, 6)[0]; x[5] = oload(0, 7)[0]
        slot(A, seq[n], seq[n+1] if n < N-1 else None, seq[n-1] if n else (3, 1, 3), x)
        if n == N//2 - 1: tile_out(A, 0, True)
        if n == N//2:
            tile_out(A, 1, True)
            check(A, 'e')
            A('s_cselect_b32 s54, 1, 0')
            A('s_cbranch_scc1 AT_SLOW')
        if n == N//2 + 5:
            A('s_waitcnt vmcnt(0)')
            signal(A, 0)
    stamp(A, 5)
    A('s_nop 1')
    A(sm(3, 1, 3))
    A(pv(3, 3, 1, 3))
    tile_out(A, 2, True)
    tile_out(A, 3, True)
    check(A, 'l')
    A('s_cbranch_scc1 AT_SLOW')
    A('AT_DONE:')
    S = Asm()
    S('AT_SLOW:')
    S('s_waitcnt vmcnt(0) lgkmcnt(0)')
    S('s_nop 15')
    for t in range(4):
        S(f'v_mov_b32 v{4+t}, 0xff800000')
    S('s_mov_b32 s34, s32')
    S('s_mov_b32 s36, 64')
    S('SL_MAX:')
    for l in kv_loads(0)[:2]: S(l)
    S('s_waitcnt vmcnt(0)')
    for t in range(4):
        S(qk(t, 0, 0)); S(qk(t, 0, 1))
    S('s_nop 15')
    for t in range(4):
        for r in range(0, 16, 2):
            S(f'v_max3_f32 v{4+t}, v{4+t}, v{SB+16*t+r}, v{SB+16*t+r+1}')
    S('s_add_u32 s34, s34, 4096')
    S('s_sub_u32 s36, s36, 1')
    S('s_cmp_lg_u32 s36, 0')
    S('s_cbranch_scc1 SL_MAX')
    for t in range(4):
        S(f'v_mov_b32 v8, v{4+t}')
        S('s_nop 1')
        S(f'v_permlane32_swap_b32 v8, v{4+t}')
        S('s_nop 1')
        S(f'v_max_f32 v{4+t}, v{4+t}, v8')
    for r in range(16):
        S(f'v_accvgpr_write_b32 a{AL+r}, 0')
    for r in range(64):
        S(f'v_mov_b32 v{OB+r}, 0')
    S('s_mov_b32 s34, s32')
    S('s_mov_b32 s36, 64')
    S('SL_ACC:')
    for l in kv_loads(0): S(l)
    S('s_waitcnt vmcnt(0)')
    for t in range(4):
        S(qk(t, 0, 0)); S(qk(t, 0, 1))
    S('s_nop 15')
    for t in range(4):
        for r in range(16):
            S(f'v_sub_f32 v{SB+16*t+r}, v{SB+16*t+r}, v{4+t}')
        for r in range(16):
            S(ex(t, r))
    S('s_nop 3')
    for t in range(4):
        for h in range(2):
            S(pv(t, 0, h)); S(sm(t, h))
    S('s_add_u32 s34, s34, 4096')
    S('s_sub_u32 s36, s36, 1')
    S('s_cmp_lg_u32 s36, 0')
    S('s_cbranch_scc1 SL_ACC')
    S('s_nop 15')
    for t in (2, 3):
        tile_out(S, t, False)
    S('s_cmp_eq_u32 s54, 0')
    S('s_cbranch_scc1 SL_END')
    for t in (0, 1):
        tile_out(S, t, False)
    S('s_waitcnt vmcnt(0)')
    signal(S, 0)
    S('s_barrier')
    S('SL_END:')
    S('s_waitcnt vmcnt(0)')
    for st in range(8): S(oload(0, st)[0])
    S('s_branch AT_DONE')
    tail.extend(S.lines)

def p3_compute(A):
    WB, ACC = 16, 48
    U = opt('u', 2)
    assert U == 2
    V = Cnt(A, 'vmcnt', 63)
    L = Cnt(A, 'lgkmcnt', 15)
    adv = ['s_add_u32 s86, s86, 8192', 's_and_b32 s86, s86, 0xffff', 's_add_u32 s87, s85, s86', 's_add_u32 s88, s87, 4096']
    def wr(slot, st):
        out = []
        for ct in range(2):
            for rho in range(2):
                out.append((f'ds_read_b64_tr_b16 {v(WB+8*(st%4)+4*ct+2*rho,2)}, v{5+ct} offset:{slot*16384+st*2048+rho*1024}', ('W', st%4, ct)))
        return out
    LA = 2
    stamp(A, 6)
    stamp(A, 7)
    V.q = [oload(0, st)[1] for st in range(8)]
    for x in adv: A(x)
    A('v_bfe_u32 v8, v1, 2, 2')
    A('v_lshrrev_b32 v9, 5, v1')
    A('v_lshl_add_u32 v9, v9, 2, v8')
    A('v_lshlrev_b32 v9, 7, v9')
    A('v_bfe_u32 v10, v1, 4, 1')
    A('v_lshl_add_u32 v9, v10, 5, v9')
    A('v_and_b32 v10, 3, v1')
    A('v_lshl_add_u32 v9, v10, 3, v9')
    A('v_lshrrev_b32 v8, 1, v8')
    A('v_lshl_add_u32 v5, v8, 6, v9')
    A('v_xor_b32 v8, 1, v8')
    A('v_lshl_add_u32 v6, v8, 6, v9')
    for st in range(LA):
        for r in wr(0, st): L.issue(*r)
    for sl in range(1, U):
        for st in range(8): V.issue(*oload(sl, st))
        for x in adv: A(x)
    for r in range(32):
        A(f'v_mov_b32 v{ACC+r}, 0')
    A('s_mov_b32 s38, 0')
    A('v_mov_b32 v8, 0')
    A('v_mov_b32 v0, 1')
    A(f's_mov_b32 s39, {U*16384}')
    srd(A, SOUT, 56, 57, 4 << 20)
    A('P3_LOOP:')
    q0, v0 = list(L.q), list(V.q)
    if 'p3t' in VAR:
        A('s_memrealtime s[90:91]')
        A('s_memtime s[92:93]')
    def both(ltags, vtags):
        T = Asm(); L.A = T; V.A = T
        L.need(*ltags); V.need(*vtags)
        L.A = A; V.A = A
        parts = [l.strip().replace('s_waitcnt ', '') for l in T.lines]
        if parts: A('s_waitcnt ' + ' '.join(parts))
    for slot in range(U):
        for st in range(8):
            nst = st + LA
            if nst == 8 and slot == U-1:
                A('v_add_u32 v5, s31, v5')
                A('v_add_u32 v6, s31, v6')
            rds = wr(slot, nst) if nst < 8 else wr((slot+1) % U, nst-8)
            both([('W', st%4, 0), ('W', st%4, 1)], [('O', slot, st)])
            for ct in range(2):
                A(f'v_mfma_f32_32x32x16_bf16 {v(ACC+16*ct,16)}, {v(WB+8*(st%4)+4*ct,4)}, {oreg(slot,st)}, {v(ACC+16*ct,16)}')
                if slot == 0 and st == 0 and ct == 0:
                    A('s_barrier')
                L.issue(*rds[2*ct]); L.issue(*rds[2*ct+1])
                if ct == 1:
                    V.issue(*oload(slot, st))
                    if st == 7:
                        if slot == U-1:
                            A(f's_cmp_eq_u32 s38, {8-2*U}')
                            A('s_cselect_b32 s29, 0x10000, 0')
                            A('s_add_u32 s85, s85, s29')
                        for x in adv: A(x)
                elif slot == 0 and st == 0:
                    A(f's_cmp_eq_u32 s38, {16-U}')
                    A(f's_cselect_b32 s{SWS+2}, 0, s{SWS+2}')
                elif slot == 0 and st == 1:
                    A('s_cmp_eq_u32 s38, 8')
                    A(f's_cselect_b32 s31, {(32768-163840) & 0xffffffff:#x}, s39')
                elif slot == U-1 and st == 3:
                    A('s_cmp_eq_u32 s38, 0')
                    A('s_cselect_b32 s29, s55, 0x40000000')
                    A('s_mov_b64 exec, 1')
                    A(f'buffer_atomic_add v0, v8, {W}, s29 offen offset:128 sc1')
                    A('s_mov_b64 exec, -1')
    if 'p3t' in VAR:
        A('s_mov_b32 m0, s38')
        A('v_writelane_b32 v11, s90, m0')
        A('v_writelane_b32 v10, s92, m0')
    A(f's_add_u32 s38, s38, {U}')
    A('s_cmp_lt_u32 s38, 16')
    assert L.q == q0, (L.q, q0)
    assert V.q == v0, (V.q, v0)
    A('s_cbranch_scc1 P3_LOOP')
    stamp(A, 8)
    A('v_and_b32 v8, 31, v1')
    A('v_lshlrev_b32 v8, 11, v8')
    A('v_lshrrev_b32 v9, 5, v1')
    A('v_lshl_add_u32 v8, v9, 4, v8')
    A('s_lshl_b32 s29, s84, 16')
    A(f's_lshl_b32 s30, s{sCB}, 7')
    A('s_add_u32 s29, s29, s30')
    A('s_nop 6')
    D = 112
    A('s_waitcnt vmcnt(0)')
    for ct in range(2):
        for g in range(4):
            b = ACC+16*ct+4*g
            d = D+8*ct+2*g
            A(f'v_cvt_pk_bf16_f32 v{d}, v{b}, v{b+1}')
            A(f'v_cvt_pk_bf16_f32 v{d+1}, v{b+2}, v{b+3}')
    A('s_nop 1')
    for j in range(4):
        d = D+4*j
        A(f'v_permlane32_swap_b32 v{d}, v{d+2}')
        A(f'v_permlane32_swap_b32 v{d+1}, v{d+3}')
        A(f'buffer_store_dwordx4 {v(d,4)}, v8, s[{SOUT}:{SOUT+3}], s29 offen offset:{j*32}' + (' sc1' if 'outsc1' in VAR else '') + (' nt' if 'outnt' in VAR else ''))

def build():
    ref = open(f'cdna_kernels/{NAME}.s.ref').read().split('\n')
    head = [l for l in ref if l.startswith(';') and '@launch' not in l and 'Override' not in l and 'grid=ceil' not in l]
    out = '\n'.join(head) + '\n'
    if 'aslist' in VAR:
        out += f'; @launch kernel={KNAME} grid=(256,1,1) block=(512,1,1) lds={LDS_BYTES}\n'
    else:
        out += f'; @launch grid=(256,1,1) block=(512,1,1) lds={LDS_BYTES}\n'
    out += '.amdgcn_target "amdgcn-amd-amdhsa--gfx950"\n.text\n'
    A = Asm()
    kernel(A)
    out += A.text()
    out += '.section .rodata,"a"\n' + kd(KNAME, 256, NARCH)
    return out

if __name__ == '__main__':
    args = [x for x in sys.argv[1:] if not x.startswith('--')]
    if '--instr' in sys.argv: INSTR = True
    if '--lst' in sys.argv: LST = True
    if '--ct4' in sys.argv: CT = 4
    if '--nsig3' in sys.argv: NSIG = 3
    if '--nsig1' in sys.argv: NSIG = 1
    for x in sys.argv:
        if x.startswith('--var='): VAR = x[6:]
    dst = args[0] if args else f'cdna_kernels/{NAME}.s'
    open(dst, 'w').write(build())
```

```python
import math, sys
from asmlib import *

NAME = 'gated_mix__grouped_kv_mqa__grouped_kv_mqa__prompt'
KNAME = NAME + '_kernel'
WS_KV = 0
WS_G = 512 << 10
WS_FLAG = 576 << 10
WS_OF = 1 << 20
CT = 4
WS_BYTES = 9 << 20
QK_SCALE = math.log2(math.e) / math.sqrt(32.0)
LOG2E = math.log2(math.e)
INSTR = False
LST = False
VAR = ''
WS_DBG = 32 << 20
WS_DBG2 = 40 << 20

SLOT = 32768
L_GATE = 4 * SLOT
LDS_BYTES = 163840
L_KVR = 98304

SX, SW, SKV, SWS, SG = 4, 8, 12, 16, 20
SWO, SOUT = 8, 12
sW, sTB, sCB, sST = 24, 25, 26, 27
W = f's[{SWS}:{SWS+3}]'
DBG = 58
NARCH = 176
SB, OB = 16, 80
AL, AK, AV = 0, 16, 48
QB = 144
IDX, SEL = 9, 12
NSIG, NPOLL, NCHK = 2, 11, 13

def opt(name, default):
    for tok in VAR.split('_'):
        if tok.startswith(name) and tok[len(name):].isdigit():
            return int(tok[len(name):])
    return default

def srd(A, d, lo, hi, nbytes):
    A(f's_mov_b32 s{d}, s{lo}')
    A(f's_and_b32 s{d+1}, s{hi}, 0xffff')
    A(f's_mov_b32 s{d+2}, {nbytes:#x}')
    A(f's_mov_b32 s{d+3}, 0x20000')

def stamp(A, i):
    if INSTR:
        A(f's_mem{"time" if "allcyc" in VAR else "realtime"} s[{64+2*i}:{65+2*i}]')
NST = 10
def stamp_end(A):
    if opt('echo', None) is not None:
        e = opt('echo', 0); i, j = e // 10, e % 10
        A('s_waitcnt vmcnt(0) lgkmcnt(0)')
        stamp(A, NST-1)
        A('s_waitcnt lgkmcnt(0)')
        A(f's_sub_u32 s29, s{64+2*j}, s{64+2*i}')
        A('ECHO:')
        A('s_memrealtime s[30:31]')
        A('s_waitcnt lgkmcnt(0)')
        A(f's_sub_u32 s30, s30, s{64+2*(NST-1)}')
        A('s_cmp_lt_u32 s30, s29')
        A('s_cbranch_scc1 ECHO')
        return
    if not INSTR: return
    A('s_waitcnt vmcnt(0) lgkmcnt(0)')
    stamp(A, NST-1)
    if 'p3t' in VAR:
        A('s_lshl_b32 s89, s2, 2')
        A(f's_add_u32 s89, s89, s{sW}')
        A('s_lshl_b32 s89, s89, 10')
        A(f's_add_u32 s89, s89, {WS_DBG2}')
        A('v_lshlrev_b32 v0, 2, v1')
        A('v_add_u32 v0, s89, v0')
        A('global_store_dword v0, v11, s[60:61]')
        A('global_store_dword v0, v10, s[60:61] offset:256')
    A('s_getreg_b32 s62, hwreg(HW_REG_XCC_ID)')
    A('s_waitcnt lgkmcnt(0)')
    A('s_mov_b64 exec, 1')
    A('s_lshl_b32 s63, s2, 2')
    A(f's_add_u32 s63, s63, s{sW}')
    A('s_lshl_b32 s63, s63, 6')
    A(f's_add_u32 s63, s63, {WS_DBG}')
    A('v_mov_b32 v0, s63')
    for i in range(NST):
        A(f'v_mov_b32 v1, s{64+2*i}')
        A(f'global_store_dword v0, v1, s[60:61] offset:{4*i}')
    A('v_mov_b32 v1, s62')
    A(f'global_store_dword v0, v1, s[60:61] offset:{4*NST}')
    A('s_waitcnt vmcnt(0)')
def lstamp(A, vreg, idx):
    if not LST: return
    A('s_memtime s[64:65]' if ('cyc' in VAR and vreg == 32) else 's_memrealtime s[64:65]')
    A('s_waitcnt lgkmcnt(0)')
    if isinstance(idx, str):
        A(f's_mov_b32 m0, {idx}')
        A(f'v_writelane_b32 v{vreg}, s64, m0')
    else:
        A(f'v_writelane_b32 v{vreg}, s64, {idx}')
def ldump(A):
    if not LST: return
    A('s_lshl_b32 s80, s2, 2')
    A(f's_add_u32 s80, s80, s{sW}')
    A('s_lshl_b32 s80, s80, 10')
    A(f's_add_u32 s80, s80, {WS_DBG2}')
    A('v_lshlrev_b32 v0, 2, v1')
    A('v_add_u32 v0, s80, v0')
    A('global_store_dword v0, v30, s[60:61]')
    A('global_store_dword v0, v31, s[60:61] offset:256')
    A('global_store_dword v0, v32, s[60:61] offset:512')
    A('s_waitcnt vmcnt(0)')

def poll(A, tag, load, vwant, sleep, cmp='ne'):
    A('s_mov_b32 s30, 0x40000')
    A(f'POLL_{tag}:')
    A(load)
    A('s_waitcnt vmcnt(0)')
    A(f'v_cmp_{cmp}_u32 vcc, v10, v{vwant}')
    A('s_sub_u32 s30, s30, 1')
    A(f's_cbranch_scc1 POLLD_{tag}')
    A(f's_cbranch_vccz POLLD_{tag}')
    A(f's_sleep {sleep}')
    A(f's_branch POLL_{tag}')
    A(f'POLLD_{tag}:')

tail = []

def kernel(A):
    A(f'.globl {KNAME}\n.p2align 8\n.type {KNAME},@function\n{KNAME}:')
    A('s_cmp_ge_u32 s2, 256')
    A('s_cbranch_scc1 END2')
    stamp(A, 0)
    if 'flip' in VAR: A('s_xor_b32 s2, s2, 1')
    A('s_load_dwordx4 s[40:43], s[0:1], 0')
    A('s_load_dwordx4 s[44:47], s[0:1], 16')
    A('s_load_dwordx4 s[48:51], s[0:1], 48')
    A('s_load_dwordx2 s[52:53], s[0:1], 64')
    A('s_load_dwordx2 s[54:55], s[0:1], 80')
    A('s_load_dwordx4 s[56:59], s[0:1], 88')
    A('s_load_dwordx2 s[60:61], s[0:1], 104')
    A('v_lshrrev_b32 v8, 6, v0')
    A('v_and_b32 v1, 63, v0')
    A(f'v_readfirstlane_b32 s{sW}, v8')
    A('s_and_b32 s29, s2, 1')
    A('s_lshl_b32 s29, s29, 3')
    A('s_bfe_u32 s30, s2, 0x30003')
    A(f's_add_u32 s{sCB}, s29, s30')
    A('s_bfe_u32 s28, s2, 0x20001')
    A('s_lshl_b32 s31, s28, 2')
    A('s_lshr_b32 s32, s2, 6')
    A(f's_add_u32 s{sTB}, s31, s32')
    A('s_lshl_b32 s29, s32, 1')
    A('s_add_u32 s28, s28, s29')
    A('s_and_b32 s29, s30, 4')
    A('s_add_u32 s28, s28, s29')
    A('s_and_b32 s28, s28, 7')
    A(f's_and_b32 s{sST}, s2, 7')
    A(f's_lshl_b32 s{sST}, s{sST}, 1')
    A('v_lshlrev_b32 v2, 4, v1')
    A(f's_cmp_lt_u32 s{sW}, 4')
    A('s_cbranch_scc1 COMPUTE')
    helper(A)
    A('COMPUTE:')
    p1_compute(A)
    attention(A)
    p3_compute(A)
    A('END:')
    stamp_end(A)
    A('END2:')
    A('s_endpgm')
    A.lines += tail


def opf(A, half):
    for i in range(4):
        A(f's_add_u32 s29, s46, {i*0x20000 + half*0x10000}')
        A(f'buffer_load_dword v{20+i}, v12, {W}, s29 offen sc1')

def helper(A):
    A(f's_sub_u32 s{sW}, s{sW}, 4')
    A('v_lshrrev_b32 v8, 3, v1')
    A('v_lshlrev_b32 v8, 11, v8')
    A('v_lshrrev_b32 v9, 4, v1')
    A('v_and_b32 v10, 7, v1')
    A('v_xor_b32 v10, v10, v9')
    A('v_lshl_add_u32 v16, v10, 4, v8')
    A('v_xor_b32 v10, 4, v10')
    A('v_lshl_add_u32 v17, v10, 4, v8')
    A('v_add_u32 v17, 15360, v17')
    A('v_add_u32 v18, 30720, v16')
    A('v_add_u32 v19, 30720, v17')
    A(f's_lshl_b32 s34, s{sTB}, 18')
    A(f's_lshl_b32 s36, s{sW}, 12')
    A('s_mov_b32 s38, 0')
    A('s_bitcmp1_b32 s2, 0')
    A('s_cbranch_scc1 H_ODD')
    A(f's_and_b32 s29, s{sCB}, 3')
    A('s_lshl_b32 s29, s29, 16')
    A('s_add_u32 s33, s34, s29')
    A(f's_and_b32 s29, s{sW}, 1')
    A('s_lshl_b32 s29, s29, 15')
    A('s_add_u32 s33, s33, s29')
    A(f's_lshr_b32 s29, s{sW}, 1')
    A('s_lshl_b32 s29, s29, 7')
    A('s_add_u32 s33, s33, s29')
    A(f's_lshl_b32 s35, s{sW}, 11')
    A('s_mov_b32 s37, s35')
    A('s_waitcnt lgkmcnt(0)')
    srd(A, SX, 40, 41, 4 << 20)
    A(f's_bitcmp1_b32 s{sCB}, 2')
    A('s_cselect_b32 s44, s50, s44')
    A('s_cselect_b32 s45, s51, s45')
    A('s_cselect_b32 s46, s52, s46')
    A('s_cselect_b32 s47, s53, s47')
    srd(A, SKV, 44, 45, 65536)
    srd(A, SG, 46, 47, 65536)
    lstamp(A, 30, 20)
    A('H_KV:')
    A('s_cmp_lt_u32 s38, 3')
    A('s_cbranch_scc1 H_KV2')
    A('s_waitcnt vmcnt(12)')
    A('s_barrier')
    A('H_KV2:')
    if LST: A('s_add_u32 s49, s38, 48')
    lstamp(A, 31, 's49')
    A('s_lshl_b32 s29, s28, 8')
    A('s_add_u32 s29, s29, s33')
    A('s_mov_b32 m0, s37')
    A('s_lshl_b32 s30, s28, 13')
    for i in range(2):
        A(f'buffer_load_dwordx4 v{16+i}, s[{SX}:{SX+3}], s29 offen offset:{i*1024} lds')
    A('s_add_u32 m0, s37, 8192')
    A('s_add_u32 s30, s30, s35')
    for i in range(2):
        A(f'buffer_load_dwordx4 v2, s[{SKV}:{SKV+3}], s30 offen offset:{i*1024} lds')
    A('s_add_u32 m0, s37, 16384')
    A('s_add_u32 s28, s28, 1')
    for i in range(2):
        A(f'buffer_load_dwordx4 v2, s[{SG}:{SG+3}], s30 offen offset:{i*1024} lds')
    lstamp(A, 30, 's49')
    A('s_and_b32 s28, s28, 7')
    A(f's_add_u32 s37, s37, {SLOT}')
    A(f's_and_b32 s37, s37, {4*SLOT-1:#x}')
    A('s_add_u32 s38, s38, 1')
    A('s_cmp_lt_u32 s38, 8')
    A('s_cbranch_scc1 H_KV')
    A('s_mov_b32 s38, 0')
    A('s_mov_b32 s62, 1')
    A('s_waitcnt vmcnt(12)')
    A('s_barrier')
    A('s_branch H_Q')
    A('H_ODD:')
    A('s_mov_b32 s62, 99')
    A('s_waitcnt lgkmcnt(0)')
    srd(A, SX, 40, 41, 4 << 20)
    A('s_mov_b32 s42, s48')
    A('s_mov_b32 s43, s49')
    A('H_Q:')
    A('s_mov_b32 s37, s36')
    A('v_bfe_u32 v10, v1, 2, 2')
    A('v_xor_b32 v10, v10, v9')
    A('v_lshlrev_b32 v10, 6, v10')
    A('v_lshl_add_u32 v10, v9, 11, v10')
    A('v_and_b32 v8, 3, v1')
    A('v_lshl_add_u32 v20, v8, 4, v10')
    A('v_add_u32 v21, 7168, v20')
    A('v_add_u32 v22, 14336, v20')
    A('v_add_u32 v23, 21504, v20')
    srd(A, SW, 42, 43, 2 << 20)
    A(f's_lshl_b32 s29, s{sW}, 16')
    A('s_add_u32 s34, s34, s29')
    A(f's_and_b32 s35, s{sCB}, 7')
    A('s_lshl_b32 s35, s35, 8')
    A(f's_lshl_b32 s29, s{sW}, 15')
    A('s_add_u32 s35, s35, s29')
    A('H_LOOP:')
    A('s_cmp_ge_u32 s38, 5')
    A('s_cbranch_scc1 H_W16')
    A('s_cmp_lg_u32 s38, s62')
    A('s_cbranch_scc1 H_NX')
    A('s_waitcnt vmcnt(14)')
    A('s_barrier')
    A('s_waitcnt vmcnt(8)')
    A('s_barrier')
    A('H_NX:')
    A('s_bitcmp1_b32 19, s38')
    A('s_cbranch_scc1 H_ISSUE')
    A('s_waitcnt vmcnt(8)')
    A('H_W16:')
    A('s_waitcnt vmcnt(16)')
    lstamp(A, 30, 's38')
    A('s_barrier')
    A('H_ISSUE:')
    lstamp(A, 31, 's38')
    A(f's_lshl_b32 s29, s{sST}, 7')
    A('s_add_u32 s29, s29, s34')
    A('s_mov_b32 m0, s37')
    A(f's_lshl_b32 s30, s{sST}, 17')
    for i in range(4):
        A(f'buffer_load_dwordx4 v{16+i}, s[{SX}:{SX+3}], s29 offen offset:{i*1024} lds')
    A('s_add_u32 m0, s37, 16384')
    A('s_add_u32 s30, s30, s35')
    for i in range(4):
        A(f'buffer_load_dwordx4 v{20+i}, s[{SW}:{SW+3}], s30 offen offset:{i*1024} lds')
    A(f's_add_u32 s{sST}, s{sST}, 1')
    A(f's_and_b32 s{sST}, s{sST}, 15')
    A(f's_add_u32 s37, s37, {SLOT}')
    A(f's_and_b32 s37, s37, {4*SLOT-1:#x}')
    lstamp(A, 32, 's38')
    A('s_add_u32 s38, s38, 1')
    A('s_cmp_lt_u32 s38, 16')
    A('s_cbranch_scc1 H_LOOP')
    A('s_load_dwordx2 s[40:41], s[0:1], 32')
    A('s_load_dwordx2 s[42:43], s[0:1], 72')
    srd(A, SWS, 60, 61, WS_BYTES)
    A(f's_lshr_b32 s32, s{sCB}, 3')
    A('s_lshl_b32 s32, s32, 18')
    A('s_add_u32 s32, s32, s36')
    A('s_lshr_b32 s33, s2, 4')
    A('s_lshl_b32 s33, s33, 14')
    def kv_chunk(c):
        A(f's_add_u32 m0, s36, {L_KVR + ((c+2)&3)*16384}')
        A('s_add_u32 s31, s32, s33')
        for i in range(4):
            A(f'buffer_load_dwordx4 v2, {W}, s31 offen offset:{i*1024} sc1 lds')
        A('s_add_u32 s33, s33, 16384')
        A('s_and_b32 s33, s33, 0x3ffff')
    for n, i in ((16, 16), (8, 17), (8, 18)):
        A(f's_waitcnt vmcnt({n})')
        lstamp(A, 30, i)
        A('s_barrier')
        lstamp(A, 31, i)
        if i == 17:
            kv_chunk(0)
            kv_chunk(1)
    A('v_lshrrev_b32 v8, 3, v1')
    A('v_lshlrev_b32 v8, 11, v8')
    A('v_lshrrev_b32 v10, 2, v1')
    A('v_lshrrev_b32 v12, 4, v1')
    A('v_xor_b32 v10, v10, v12')
    A('v_and_b32 v10, 1, v10')
    A('v_lshl_add_u32 v8, v10, 6, v8')
    A('v_and_b32 v10, 3, v1')
    A('v_lshl_add_u32 v16, v10, 4, v8')
    A('v_add_u32 v17, 15360, v16')
    A('v_add_u32 v18, 30720, v16')
    A('v_add_u32 v19, 46080, v16')
    A(f's_lshl_b32 s34, s{sCB}, 7')
    A(f's_lshl_b32 s29, s{sW}, 17')
    A('s_add_u32 s34, s34, s29')
    A('s_bfe_u32 s29, s2, 0x20001')
    A(f's_lshr_b32 s{sST}, s{sCB}, 3')
    A(f's_lshl_b32 s{sST}, s{sST}, 2')
    A(f's_add_u32 s{sST}, s{sST}, s29')
    if 'g2' in VAR:
        A(f's_and_b32 s29, s{sCB}, 4')
        A(f's_xor_b32 s{sST}, s{sST}, s29')
    A('s_waitcnt lgkmcnt(0)')
    A('s_and_b32 s41, s41, 0xffff')
    A('s_and_b32 s43, s43, 0xffff')
    A(f's_mov_b32 s{SWO+2}, 0x200000')
    A(f's_mov_b32 s{SWO+3}, 0x20000')
    A('v_mov_b32 v9, 0')
    A('v_mov_b32 v11, 64')
    A('v_add_u32 v13, s36, v2')
    A('v_add_u32 v14, 0x10000, v13')
    A('v_add_u32 v15, 0x18000, v13')
    A(f's_lshl_b32 s44, s{sTB}, 8')
    A(f's_add_u32 s44, s44, {WS_FLAG}')
    A(f's_cmp_eq_u32 s{sW}, 0')
    A('s_cselect_b32 s45, s44, 0x40000000')
    A('v_lshlrev_b32 v12, 7, v1')
    A(f's_lshl_b32 s46, s{sTB}, 19')
    A(f's_and_b32 s29, s{sCB}, 7')
    A('s_lshl_b32 s29, s29, 13')
    A('s_add_u32 s46, s46, s29')
    A(f's_add_u32 s46, s46, {WS_OF}')
    A('s_waitcnt vmcnt(4)')
    lstamp(A, 30, 19)
    A('s_barrier')
    lstamp(A, 31, 19)
    def hold(j, i):
        return v(48+16*j+4*i, 4) if j < 8 else a(16*(j-8)+4*i, 4)
    def wo_stage(n):
        A(f's_cmp_ge_u32 s{sST}, 4')
        A(f's_cselect_b32 s{SWO}, s42, s40')
        A(f's_cselect_b32 s{SWO+1}, s43, s41')
        A(f's_and_b32 s29, s{sST}, 3')
        A('s_lshl_b32 s29, s29, 19')
        if n == 8: A('s_add_u32 s34, s34, 0x10000')
        if n < 6: A(f's_add_u32 m0, s36, {n*16384}')
        A('s_add_u32 s29, s29, s34')
        for i in range(4):
            if n < 6:
                A(f'buffer_load_dwordx4 v{16+i}, s[{SWO}:{SWO+3}], s29 offen offset:{i*1024} lds')
            else:
                A(f'buffer_load_dwordx4 {hold(n-6,i)}, v{16+i}, s[{SWO}:{SWO+3}], s29 offen offset:{i*1024}')
        A(f's_add_u32 s{sST}, s{sST}, 1')
        A(f's_and_b32 s{sST}, s{sST}, 7')
    V = Cnt(A, 'vmcnt', 63)
    def track(tag, n=4):
        V.q += [tag]*n
    track(('c', 1))
    kv_chunk(2); track(('c', 2))
    kv_chunk(3); track(('c', 3))
    if 'hpf' in VAR.split('_'):
        A('s_getpc_b64 s[62:63]')
        A('HPF_PC:')
        A(f's_lshl_b32 s29, s{sW}, 13')
        A('s_add_u32 s29, s29, AT_LOOP-HPF_PC')
        A('v_lshlrev_b32 v20, 7, v1')
        A('v_add_u32 v20, s29, v20')
        A('v_min_u32 v20, AT_SLOW-HPF_PC, v20')
        A('global_load_dword v21, v20, s[62:63]')
        track(('h', 0), 1)
    nwo = 0
    for i in range(13):
        V.need(('c', i+1) if i < 15-CT else ('c', i+3))
        A('s_barrier')
        lstamp(A, 30, 48+i); lstamp(A, 32, 48+i)
        if i + 4 < 16:
            kv_chunk(i+4); track(('c', i+4))
        for _ in range(2 if i < 4 else 1):
            if nwo < 16:
                wo_stage(nwo); track(('w', nwo)); nwo += 1
    assert nwo == 16
    A('s_waitcnt vmcnt(0)')
    A(f's_cmp_lg_u32 s{sW}, 0')
    A('s_cbranch_scc1 H_NOPOLL2')
    A('s_setprio 3')
    A(f's_sleep {64 if CT == 4 else 96}')
    poll(A, 'O', f'buffer_load_dword v10, v9, {W}, s44 offen sc1', 11, 8, 'lt')
    if 'noe' not in VAR: opf(A, 0)
    A('H_NOPOLL2:')
    A('s_barrier')
    lstamp(A, 31, 32)
    for j in range(4):
        for i in range(4):
            A(f'ds_write_b128 v15, {hold(j,i)} offset:{j*16384+i*1024}')
        if j == 2: A('s_waitcnt lgkmcnt(8)')
    for b in range(4):
        if b == 3:
            A(f's_cmp_lg_u32 s{sW}, 0')
            A('s_cbranch_scc1 H_NOPOLL3')
            poll(A, 'O2', f'buffer_load_dword v10, v9, {W}, s44 offen offset:128 sc1', 11, 2, 'lt')
            A('H_NOPOLL3:')
        if b: A('s_waitcnt lgkmcnt(0)')
        A('s_barrier')
        if b >= 1:
            for j in (2*b-2, 2*b-1):
                for i in range(4):
                    A(f'ds_write_b128 v{13 + j//4}, {hold(j+4,i)} offset:{(j%4)*16384+i*1024}')
                    A('s_waitcnt lgkmcnt(0)')
    if 'dt' in VAR.split('_'):
        srd(A, SOUT, 56, 57, 4 << 20)
        A(f's_lshl_b32 s29, s{sTB}, 2')
        A(f's_add_u32 s29, s29, s{sW}')
        A('s_lshl_b32 s29, s29, 16')
        A('s_mov_b64 exec, 1')
        A(f'buffer_load_dword v22, v9, s[{SOUT}:{SOUT+3}], s29 offen')
    ldump(A)
    A('s_endpgm')

def kv_adv():
    return ['s_add_u32 s33, s33, 4096', 's_and_b32 s33, s33, 0x3ffff', 's_add_u32 s34, s32, s33']
def kv_loads(b):
    return [f'buffer_load_dwordx4 {a(AK+8*b,4)}, v2, {W}, s34 offen sc1',
            f'buffer_load_dwordx4 {a(AK+8*b+4,4)}, v2, {W}, s34 offen offset:1024 sc1',
            f'buffer_load_dwordx4 {a(AV+8*b,4)}, v2, {W}, s34 offen offset:2048 sc1',
            f'buffer_load_dwordx4 {a(AV+8*b+4,4)}, v2, {W}, s34 offen offset:3072 sc1']
def kvr(st, b):
    return [f'ds_read_b128 {a(AK+8*b,4)}, v0 offset:{st*4096}',
            f'ds_read_b128 {a(AK+8*b+4,4)}, v0 offset:{st*4096+1024}',
            f'ds_read_b128 {a(AV+8*b,4)}, v0 offset:{st*4096+2048}',
            f'ds_read_b128 {a(AV+8*b+4,4)}, v0 offset:{st*4096+3072}']
sel_code = [f'v_mov_b32 v{SEL+3}, 0x3f803f80', f'v_and_b32 v{SEL+2}, 7, v1', f'v_cmp_eq_u32 vcc, 0, v{SEL+2}',
            f'v_cmp_eq_u32 s[46:47], 4, v{SEL+2}', f'v_mov_b32 v{IDX}, 0xdddddddd', 's_nop 0',
            f'v_cndmask_b32 v{SEL}, 0, v{SEL+3}, vcc', f'v_cndmask_b32 v{SEL+1}, 0, v{SEL+3}, vcc',
            f'v_cndmask_b32 v{SEL+2}, 0, v{SEL+3}, s[46:47]', f'v_cndmask_b32 v{SEL+3}, 0, v{SEL+3}, s[46:47]']

def p1_compute(A):
    XA, WA = 3, 7
    KXA, KWA, GA, GB, KST, KAC, VAC, GAC = 144, 146, 147, 148, 149, 152, 156, 160
    A('v_lshlrev_b32 v3, 7, v1')
    A('s_and_b32 s30, s2, 0xfe')
    A(f's_add_u32 s30, s30, s{sW}')
    A('s_lshl_b32 s30, s30, 13')
    A(f's_lshr_b32 s29, s{sW}, 1')
    A('s_andn2_b32 s29, s2, s29')
    A('s_bitcmp1_b32 s29, 0')
    A('s_cselect_b32 s30, s30, 0x40000000')
    if 'nopf' in VAR: A('s_mov_b32 s30, 0x40000000')
    A(f's_lshl_b32 s29, s{sW}, 10')
    A('s_and_b32 s29, s29, 1024')
    A(f's_add_u32 m0, s29, {L_GATE}')
    A('s_waitcnt lgkmcnt(0)')
    srd(A, SG, 54, 55, 2048)
    A(f'buffer_load_dwordx4 v2, s[{SG}:{SG+3}], s29 offen lds')
    if 'cpf' in VAR:
        A('s_getpc_b64 s[62:63]')
        A('CPF_PC:')
        A(f's_lshl_b32 s29, s{sW}, 13')
        A('v_add_u32 v4, s29, v3')
        A('v_min_u32 v4, END2-CPF_PC+3584, v4')
        A('global_load_dword v175, v4, s[62:63] offset:-3584')
    srd(A, SW, 42, 43, 2 << 20)
    srd(A, SWS, 60, 61, WS_BYTES)
    A(f's_lshl_b32 s55, s{sTB}, 8')
    A(f's_add_u32 s55, s55, {WS_FLAG}')
    A(f's_lshl_b32 s29, s{sCB}, 2')
    A(f's_add_u32 s29, s29, s{sW}')
    A('s_cmp_eq_u32 s29, 3')
    A('s_cselect_b32 s29, s55, 0x40000000')
    A('v_lshlrev_b32 v8, 2, v1')
    A('v_mov_b32 v9, 0')
    A(f'buffer_store_dword v9, v8, {W}, s29 offen sc1')
    A(f'buffer_load_dword v0, v3, s[{SW}:{SW+3}], s30 offen')
    A('v_and_b32 v8, 15, v1')
    A(f's_and_b32 s29, s{sW}, 1')
    A('s_lshl_b32 s29, s29, 4')
    A('v_add_u32 v8, s29, v8')
    A('v_lshrrev_b32 v9, 4, v1')
    A('v_bfe_u32 v10, v8, 1, 3')
    A('v_xor_b32 v10, v10, v9')
    A('v_lshlrev_b32 v8, 7, v8')
    A(f'v_lshl_add_u32 v{KXA}, v10, 4, v8')
    A('v_xor_b32 v10, 4, v10')
    A(f'v_lshl_add_u32 v{KXA+1}, v10, 4, v8')
    A('v_bfe_u32 v11, v1, 2, 2')
    A('v_and_b32 v14, 3, v1')
    A('v_lshl_add_u32 v12, v9, 3, v11')
    A('v_lshlrev_b32 v12, 6, v12')
    A('v_lshl_add_u32 v12, v14, 3, v12')
    A(f's_lshr_b32 s29, s{sW}, 1')
    A('s_lshl_b32 s29, s29, 5')
    A(f'v_add_u32 v{KWA}, s29, v12')
    A(f'v_lshlrev_b32 v{GB}, 4, v9')
    A(f'v_add_u32 v{GB}, {L_GATE}, v{GB}')
    A('s_lshl_b32 s29, s28, 8')
    A(f'v_add_u32 v{GA}, s29, v{GB}')
    for r in range(12):
        A(f'v_mov_b32 v{KAC+r}, 0')
    A('v_and_b32 v8, 15, v1')
    A('v_bfe_u32 v9, v1, 4, 1')
    A('v_lshrrev_b32 v10, 5, v1')
    A('v_lshl_add_u32 v12, v9, 5, v8')
    A('v_lshlrev_b32 v12, 4, v12')
    A('v_lshl_add_u32 v12, v10, 3, v12')
    A('v_lshl_add_u32 v13, v10, 5, v8')
    A('v_lshlrev_b32 v13, 4, v13')
    A('v_lshl_add_u32 v13, v9, 3, v13')
    A(f's_and_b32 s29, s{sW}, 1')
    A(f's_lshr_b32 s30, s{sW}, 1')
    A('s_lshl_b32 s31, s29, 8')
    A('s_lshl_b32 s32, s30, 10')
    A('s_add_u32 s31, s31, s32')
    A(f'v_add_u32 v{KST}, s31, v12')
    A('s_lshl_b32 s31, s29, 10')
    A('s_lshl_b32 s32, s30, 8')
    A('s_add_u32 s31, s31, s32')
    A(f'v_add_u32 v{KST+1}, s31, v13')
    A(f'v_lshlrev_b32 v{KST+2}, 2, v1')
    A('v_and_b32 v15, 31, v1')
    A('v_lshrrev_b32 v9, 5, v1')
    A('v_bfe_u32 v10, v1, 1, 3')
    A('v_xor_b32 v10, v10, v9')
    A('v_lshlrev_b32 v15, 7, v15')
    A(f's_and_b32 s29, s{sW}, 1')
    A('s_lshl_b32 s29, s29, 13')
    A('v_add_u32 v15, s29, v15')
    for st in range(4):
        A(f'v_xor_b32 v12, {2*st}, v10')
        A(f'v_lshl_add_u32 v{XA+st}, v12, 4, v15')
    A('v_lshl_add_u32 v12, v9, 3, v11')
    A('v_bfe_u32 v13, v1, 4, 1')
    A('v_lshlrev_b32 v13, 5, v13')
    A('v_lshl_add_u32 v13, v14, 3, v13')
    A(f's_and_b32 s30, s{sW}, 2')
    A('v_xor_b32 v14, s30, v11')
    A(f'v_lshl_add_u32 v{WA}, v14, 6, v13')
    A('v_xor_b32 v14, 1, v14')
    A(f'v_lshl_add_u32 v{WA+1}, v14, 6, v13')
    A('v_lshlrev_b32 v14, 8, v12')
    A(f'v_add_u32 v{WA}, v{WA}, v14')
    A(f'v_add_u32 v{WA+1}, v{WA+1}, v14')
    for r in range(SB, SB+64):
        A(f'v_mov_b32 v{r}, 0')
    for r in range(16):
        A(f'v_accvgpr_write_b32 a{AL+r}, 0')
    for r in range(4):
        A(f'v_accvgpr_write_b32 a{AV+12+r}, 0')
    for l in sel_code: A(l)
    A(f's_bfe_u32 s32, s{sCB}, 0x10002')
    A('s_lshl_b32 s37, s32, 31')
    A('s_lshl_b32 s31, s32, 13')
    A('s_lshl_b32 s32, s32, 18')
    A(f's_lshl_b32 s30, s{sTB}, 2')
    A(f's_and_b32 s29, s{sCB}, 3')
    A('s_add_u32 s30, s30, s29')
    A('s_lshl_b32 s35, s30, 12')
    A('s_add_u32 s35, s35, s32')
    A('s_lshl_b32 s36, s30, 7')
    A('s_add_u32 s36, s36, s31')
    A(f's_and_b32 s31, s{sW}, 1')
    A('s_lshl_b32 s31, s31, 6')
    A('s_add_u32 s36, s36, s31')
    A(f's_add_u32 s36, s36, {WS_G}')
    A(f's_cmp_lt_u32 s{sW}, 2')
    A('s_cselect_b32 s36, s36, 0x40000000')
    A(f's_xor_b32 s37, s37, {f32bits(-LOG2E):#x}')
    A(f's_lshr_b32 s32, s{sCB}, 3')
    A('s_lshl_b32 s32, s32, 18')
    A(f's_mov_b32 s39, {SLOT}')
    A(f's_cmp_eq_u32 s{sW}, 3')
    A(f's_cselect_b32 s45, {(1<<NSIG)|(1<<NPOLL)|(1<<NCHK):#x}, 0')
    A(f's_lshl_b32 s29, s{sTB}, 2')
    A(f's_and_b32 s30, s{sW}, 1')
    A('s_lshl_b32 s30, s30, 1')
    A('s_add_u32 s29, s29, s30')
    A('s_lshl_b32 s48, s29, 7')
    A('s_lshr_b32 s30, s32, 5')
    A('s_add_u32 s48, s48, s30')
    A(f's_add_u32 s48, s48, {WS_G}')
    A('s_lshl_b32 s50, s29, 17')
    A(f's_lshl_b32 s31, s{sCB}, 2')
    A(f's_and_b32 s29, s{sW}, 2')
    A('s_add_u32 s31, s31, s29')
    A('s_lshl_b32 s31, s31, 10')
    A('s_add_u32 s50, s50, s31')
    A(f's_add_u32 s50, s50, {WS_OF}')
    A('s_add_u32 s51, s50, 0x20000')
    A('s_add_u32 s52, s50, 0x10000')
    A('s_add_u32 s53, s51, 0x10000')
    A('s_mov_b32 s33, 32768')
    A(f's_lshl_b32 s84, s{sTB}, 2')
    A(f's_add_u32 s84, s84, s{sW}')
    A('s_lshl_b32 s85, s84, 17')
    A(f's_add_u32 s85, s85, {WS_OF}')
    A('s_bfe_u32 s29, s2, 0x20001')
    A(f's_lshr_b32 s86, s{sCB}, 3')
    A('s_lshl_b32 s86, s86, 2')
    A('s_add_u32 s86, s86, s29')
    if 'g2' in VAR:
        A(f's_and_b32 s29, s{sCB}, 4')
        A('s_xor_b32 s86, s86, s29')
    A('s_lshl_b32 s86, s86, 13')
    A('s_add_u32 s87, s85, s86')
    A('s_add_u32 s88, s87, 4096')
    stamp(A, 1)
    def rd_list(st):
        sb = OB + 16*st
        def ra(aa, rho): return (f'ds_read_b64_tr_b16 {v(sb+4*aa+2*rho,2)}, v{WA+aa} offset:{16384+st*4096+rho*1024}', (st, 'A', aa))
        def rb(b): return (f'ds_read_b128 {v(sb+8+4*b,4)}, v{XA+st} offset:{b*4096}', (st, 'B', b))
        return [ra(0,0), ra(0,1), rb(0), rb(1), ra(1,0), ra(1,1)]
    allr = [r for st in range(4) for r in rd_list(st)]
    L = Cnt(A, 'lgkmcnt', 15)
    A('s_mov_b32 s38, 0')
    A('s_waitcnt vmcnt(3)' if 'cpf' in VAR else 's_waitcnt vmcnt(2)')
    A('s_barrier')
    A('s_bitcmp1_b32 s2, 0')
    A('s_cbranch_scc1 P1_Q0')
    FB = 16
    def rd(st):
        fb = FB + 16*st
        for rho in range(2):
            L.issue(f'ds_read_b64_tr_b16 {a(fb+2*rho,2)}, v{KWA} offset:{8192+st*2048+rho*256}', ('k', st))
        L.issue(f'ds_read_b128 {a(fb+8,4)}, v{KXA+(st&1)} offset:{(st>>1)*4096}', ('k', st))
        for rho in range(2):
            L.issue(f'ds_read_b64_tr_b16 {a(fb+4+2*rho,2)}, v{KWA} offset:{16384+st*2048+rho*256}', ('k', st))
        L.issue(f'ds_read_b128 {a(fb+12,4)}, v{GA} offset:{st*64}', ('k', st))
    def mm(st):
        fb = FB + 16*st
        L.need(('k', st))
        A(f'v_mfma_f32_16x16x32_bf16 {v(KAC,4)}, {a(fb,4)}, {a(fb+8,4)}, {v(KAC,4)}')
        A(f'v_mfma_f32_16x16x32_bf16 {v(VAC,4)}, {a(fb+8,4)}, {a(fb+4,4)}, {v(VAC,4)}')
        A(f'v_mfma_f32_16x16x32_bf16 {v(GAC,4)}, {a(fb+12,4)}, {a(fb+8,4)}, {v(GAC,4)}')
    for st in range(2): rd(st)
    if 'al' in VAR.split('_'): A('.p2align 6')
    A('KV_LOOP:')
    q0 = list(L.q)
    for st in range(2):
        mm(st)
        rd(st + 2)
    A('s_and_b32 s29, s38, 3')
    A('s_cmp_eq_u32 s29, 3')
    A(f's_cselect_b32 s29, {(-3*SLOT) & 0xffffffff:#x}, s39')
    for r in (KXA, KXA+1, KWA):
        A(f'v_add_u32 v{r}, s29, v{r}')
    A('s_add_u32 s28, s28, 1')
    A('s_and_b32 s28, s28, 7')
    A('s_lshl_b32 s29, s28, 8')
    A(f'v_add_u32 v{GA}, s29, v{GB}')
    A('s_add_u32 s38, s38, 1')
    A('s_cmp_lt_u32 s38, 8')
    L.drain()
    A('s_cbranch_scc0 KV_TAIL')
    A('s_barrier')
    for st in range(2, 4):
        rd(st - 2)
        mm(st)
    assert L.q == q0
    A('s_branch KV_LOOP')
    A('KV_TAIL:')
    L.q = []
    mm(2)
    mm(3)
    for r in range(4):
        A(f'v_accvgpr_write_b32 a{AV+12+r}, 0')
    A('s_nop 1')
    A(f's_mov_b32 s31, {f32bits(QK_SCALE):#x}')
    for r in range(4):
        A(f'v_mul_f32 v{KAC+r}, s31, v{KAC+r}')
    A(f'v_mul_f32 v{GAC}, s37, v{GAC}')
    A(f'v_cvt_pk_bf16_f32 v{VAC}, v{VAC}, v{VAC+1}')
    A(f'v_exp_f32 v{GAC}, v{GAC}')
    A(f'v_cvt_pk_bf16_f32 v{VAC+1}, v{VAC+2}, v{VAC+3}')
    A(f'v_add_f32 v{GAC}, 1.0, v{GAC}')
    A(f'v_cvt_pk_bf16_f32 v{KAC}, v{KAC}, v{KAC+1}')
    A(f'v_rcp_f32 v{GAC}, v{GAC}')
    A(f'v_cvt_pk_bf16_f32 v{KAC+1}, v{KAC+2}, v{KAC+3}')
    A(f'buffer_store_dwordx2 {v(VAC,2)}, v{KST+1}, {W}, s35 offen offset:2048 sc1')
    A(f'buffer_store_dwordx2 {v(KAC,2)}, v{KST}, {W}, s35 offen sc1')
    A('s_mov_b64 exec, 0xffff')
    A(f'buffer_store_dword v{GAC}, v{KST+2}, {W}, s36 offen sc1')
    A('s_mov_b64 exec, -1')
    A('s_barrier')
    A('P1_Q0:')
    for r in allr[:15]: A(r[0])
    A('P1_Q:')
    stamp(A, 2)
    def group(st, rds, other=(), nother=2):
        rds = list(rds); other = list(other)
        sb = OB + 16*st
        for aa in range(2):
            for b in range(2):
                acc = SB + 16*(aa*2+b)
                L.need((st, 'A', aa), (st, 'B', b))
                if 'hack16' in VAR:
                    q = acc + 8*(st&1)
                    A(f'v_mfma_f32_16x16x32_bf16 {v(q,4)}, {v(sb+4*aa,4)}, {v(sb+8+4*b,4)}, {v(q,4)}')
                    if rds: L.issue(*rds.pop(0))
                    A(f'v_mfma_f32_16x16x32_bf16 {v(q+4,4)}, {v(sb+8+4*b,4)}, {v(sb+4*aa,4)}, {v(q+4,4)}')
                    if rds: L.issue(*rds.pop(0))
                else:
                  A(f'v_mfma_f32_32x32x16_bf16 {v(acc,16)}, {v(sb+4*aa,4)}, {v(sb+8+4*b,4)}, {v(acc,16)}')
                  for _ in range(2):
                    if rds: L.issue(*rds.pop(0))
                for _ in range(nother):
                    if other: A(other.pop(0))
        assert not rds
        for o in other: A(o)
    L.q = []
    A('s_mov_b32 s38, 0')
    L.q = [r[1] for r in allr[:15]]
    L.issue(*allr[15])
    adr = [f'v_add_u32 v{r}, s29, v{r}' for r in (XA, XA+1, XA+2, XA+3, WA, WA+1)]
    def stage(mode, extra=()):
        L.need(*[r[1] for r in allr[:8]])
        group(0, allr[16:24], ['s_and_b32 s29, s38, 3', 's_cmp_eq_u32 s29, 3', f's_cselect_b32 s29, {(-3*SLOT) & 0xffffffff:#x}, s39',
                               's_add_u32 s38, s38, 1', f's_cmp_eq_u32 s38, {NSIG}' if mode == 'loop' else ''])
        if mode == 'last':
            z = [f'v_mov_b32 v{OB+r}, 0' for r in range(64)]
            L.need(*[r[1] for r in allr[8:16]])
            group(1, [], list(extra) + z[:16], 5)
            L.drain()
            A('s_barrier')
            for r in kvr(0, 0): A(r)
            cv = [[f'v_cvt_pk_bf16_f32 v{QB+8*t+i}, v{SB+16*t+2*i}, v{SB+16*t+2*i+1}' for i in range(8)] for t in range(4)]
            fill = z[16:32] + ['', '', '', ''] + cv[0] + ['', ''] + cv[1] + ['', '']
            for t in range(4):
                aa, b = t >> 1, t & 1
                for st in (2, 3):
                    sb = OB + 16*st
                    A(f'v_mfma_f32_32x32x16_bf16 {v(SB+16*t,16)}, {v(sb+4*aa,4)}, {v(sb+8+4*b,4)}, {v(SB+16*t,16)}')
                    for _ in range(5):
                        if fill: A(fill.pop(0))
            assert not fill
            A('s_waitcnt lgkmcnt(0)')
            A(qk(0, 0, 0))
            for l in cv[2]: A(l)
            A(qk(0, 0, 1))
            for l in z[32:]: A(l)
            for l in cv[3]: A(l)
            for r in range(8):
                A(f'v_mov_b32 v{SB+48+8+r}, 0')
            return
        L.need(*[r[1] for r in allr[8:16]])
        group(1, [], list(extra) + adr, 3)
        if mode == 'loop':
            A('s_cbranch_scc1 Q_PRE')
            A('Q_PRE_RET:')
        L.drain()
        A('s_barrier')
        group(2, allr[0:8], ['', '', '', '', '', '', 's_bitcmp1_b32 s45, s38', 's_cbranch_scc1 Q_POST\nQ_POST_RET:'] if mode == 'loop' else [])
        group(3, allr[8:16])
    if 'al' in VAR.split('_'): A('.p2align 6')
    A('Q_LOOP:')
    q0 = list(L.q)
    stage('loop')
    assert L.q == q0, (L.q, q0)
    A('s_cmp_lt_u32 s38, 15')
    A('s_cbranch_scc1 Q_LOOP')
    T = A
    A('s_branch Q_LAST')
    T('Q_PRE:')
    T('s_waitcnt vmcnt(0)')
    T('s_branch Q_PRE_RET')
    T('Q_POST:')
    T(f's_cmp_eq_u32 s38, {NPOLL}')
    T('s_cbranch_scc1 Q_POLL')
    T(f's_cmp_eq_u32 s38, {NCHK}')
    T('s_cbranch_scc1 Q_CHECK')
    T('s_and_b32 s30, s2, 1')
    T('s_lshl_b32 s30, s30, 7')
    T('v_mov_b32 v0, s30')
    T('v_mov_b32 v11, 1')
    T('s_mov_b64 exec, 1')
    T(f'global_atomic_add v0, v11, s[{DBG}:{DBG+1}] sc1')
    T('s_mov_b64 exec, -1')
    T('s_branch Q_POST_RET')
    T('Q_POLL:')
    T('v_and_b32 v0, 1, v1')
    T('v_lshlrev_b32 v0, 7, v0')
    T('v_mov_b32 v11, 128')
    T(f'global_load_dword v10, v0, s[{DBG}:{DBG+1}] sc1')
    T('s_branch Q_POST_RET')
    T('Q_CHECK:')
    T('s_waitcnt vmcnt(0)')
    T('v_cmp_lt_u32 vcc, v10, v11')
    T('s_nop 1')
    T('s_cbranch_vccz Q_POST_RET')
    poll(T, 'KV', f'global_load_dword v10, v0, s[{DBG}:{DBG+1}] sc1', 11, 8, 'lt')
    T('s_branch Q_POST_RET')
    A('Q_LAST:')
    stage('last', [f'v_add_u32 v0, {L_KVR+32768}, v2', 'v_and_b32 v10, 31, v1', 'v_lshlrev_b32 v10, 2, v10',
                   f'buffer_load_dword v11, v10, {W}, s48 offen offset:128 sc1', f'buffer_load_dword v10, v10, {W}, s48 offen sc1'])
    stamp(A, 3)

def qk(t, kb, half, sb=None):
    sb = t if sb is None else sb
    c = '0' if half == 0 else v(SB+16*sb, 16)
    return f'v_mfma_f32_32x32x16_bf16 {v(SB+16*sb,16)}, {a(AK+8*kb+4*half,4)}, {v(QB+8*t+4*half,4)}, {c}'
def pv(t, vb, half, sb=None):
    sb = t if sb is None else sb
    return f'v_smfmac_f32_32x32x32_bf16 {v(OB+16*t,16)}, {a(AV+8*vb+4*half,4)}, {v(SB+16*sb+8*half,8)}, v{IDX}'
def sm(t, half, sb=None):
    sb = t if sb is None else sb
    if 'halfsum' in VAR and half == 1: return 's_nop 0'
    return f'v_smfmac_f32_16x16x64_bf16 {a(AL+4*t,4)}, {v(SEL,4)}, {v(SB+16*sb+8*half,8)}, v{IDX}'
def ex(t, i):
    return f'v_exp_f32 v{SB+16*t+i}, v{SB+16*t+i}'

def slot(A, cur, nxt, prv, x):
    t, kb, sb = cur
    A(qk(nxt[0], nxt[1], 0, nxt[2]) if nxt else '')
    A(x.get(0, ''))
    for e in (0, 1, 2): A(ex(sb, e))
    A(qk(nxt[0], nxt[1], 1, nxt[2]) if nxt else '')
    A(x.get(1, ''))
    for e in (3, 4, 5): A(ex(sb, e))
    A(pv(prv[0], prv[1], 1, prv[2]))
    A(x.get(2, ''))
    for e in (6, 7, 8): A(ex(sb, e))
    A(sm(prv[0], 1, prv[2]))
    A(x.get(3, ''))
    for e in (9, 10): A(ex(sb, e))
    A(pv(t, kb, 0, sb))
    A(x.get(4, ''))
    for e in (11, 12, 13): A(ex(sb, e))
    A(sm(t, 0, sb))
    A(x.get(5, ''))
    for e in (14, 15): A(ex(sb, e))

def tile_out(A, t, check):
    aa, b = t >> 1, t & 1
    o = OB + 16*t
    A(f'v_accvgpr_read_b32 v0, a{AL+4*t}')
    A('v_rcp_f32 v8, v0')
    if check:
        A('v_min_f32 v4, v4, v0')
        A('v_max_f32 v5, v5, v0')
        A('v_fma_f32 v6, v0, 0, v6')
    else:
        A('s_nop 0')
    A(f'v_mul_f32 v8, v8, v{10+b}')
    for h in range(2):
        for r in range(8*h, 8*h+8, 2):
            A(f'v_pk_mul_f32 {v(o+r,2)}, {v(o+r,2)}, v[8:9] op_sel_hi:[1,0]')
        if check:
            for r in range(8*h, 8*h+8, 2):
                A(f'v_pk_fma_f32 v[6:7], {v(o+r,2)}, 0, v[6:7]')
        for r in range(4):
            A(f'v_cvt_pk_bf16_f32 v{o+8*h+r}, v{o+8*h+2*r}, v{o+8*h+2*r+1}')
        A(f'buffer_store_dwordx4 {v(o+8*h,4)}, v2, {W}, s{50+t} offen offset:{h*1024} sc1')

def oreg(slot, st):
    return v((80, 144)[slot] + 4*st, 4)
def oload(slot, st):
    return (f'buffer_load_dwordx4 {oreg(slot,st)}, v2, {W}, s{87+st//4} offen offset:{(st%4)*1024} sc1', ('O', slot, st))

def check(A, which):
    A(f'v_cmp_gt_f32 vcc, {f32bits(2.0**-16):#x}, v4')
    A(f's_mov_b32 s29, {f32bits(2.0**64):#x}')
    A('v_cmp_lt_f32 s[46:47], s29, v5')
    A('v_cmp_u_f32 s[30:31], v6, v7')
    A('s_nop 1')
    A('s_or_b64 s[46:47], s[46:47], vcc')
    A('s_or_b64 s[46:47], s[46:47], s[30:31]')
    if 'forceslow' + which in VAR:
        A('s_cmp_eq_u32 0, 0')
def signal(A, off):
    A('v_mov_b32 v8, 0')
    A('v_mov_b32 v0, 1')
    A('s_mov_b64 exec, 1')
    A(f'buffer_atomic_add v0, v8, {W}, s55 offen offset:{off} sc1')
    A('s_mov_b64 exec, -1')

def attention(A):
    A(f's_mov_b32 s36, {16-CT}')
    A(f'v_add_u32 v3, {L_KVR}, v2')
    A('v_mov_b32 v4, 1.0')
    A('v_mov_b32 v5, 1.0')
    A('v_mov_b32 v6, 0')
    A('v_mov_b32 v7, 0')
    stamp(A, 4)
    A('.p2align 6')
    A('AT_LOOP:')
    for i in range(4):
        for t in range(4):
            nt, nb = (t+1) % 4, ((i if t < 3 else i+1) % 2)
            pt, pb = (t-1) % 4, ((i if t > 0 else i-1) % 2)
            x = {3: kvr((i+1) % 4, (i+1) % 2)[t]}
            if 'nokvr' in VAR and i > 1: x = {}
            if t == 0: x[0] = 's_waitcnt lgkmcnt(0)' + ('\ns_barrier' if i == 3 else '')
            if t == 2 and i == 3: x[1] = 's_sub_u32 s36, s36, 1'
            if t == 1 and i == 2: x[1] = 's_add_u32 s33, s33, 16384'
            if t == 2 and i == 2: x[1] = 's_and_b32 s33, s33, 0xffff'
            if t == 0 and i == 3: x[2] = 'v_add_u32 v0, s33, v3'
            if t == 2: x[5] = 's_waitcnt lgkmcnt(1)'
            if t == 3 and i == 3: x[5] = 's_cmp_lg_u32 s36, 0'
            slot(A, (t, i % 2, t), (nt, nb, nt), (pt, pb, pt), x)
    A('s_cbranch_scc1 AT_LOOP')
    NS = 4*CT
    def kvt(g):
        st = g % NS
        c = 16 - CT + st//4
        off = ((c+2) & 3)*16384 + (st % 4)*4096
        b = g % 4
        return [f'ds_read_b128 {a(AK+8*b,4)}, v3 offset:{off}', f'ds_read_b128 {a(AK+8*b+4,4)}, v3 offset:{off+1024}',
                f'ds_read_b128 {a(AV+8*b,4)}, v3 offset:{off+2048}', f'ds_read_b128 {a(AV+8*b+4,4)}, v3 offset:{off+3072}']
    seq = [(2*(g//NS) + j, g % 4) for g in range(2*NS) for j in range(2)]
    seq = [(t, b, n % 4) for n, (t, b) in enumerate(seq)]
    N = len(seq)
    for n in range(N):
        g, j = n//2, n % 2
        x = {}
        if n == 0:
            r1, r2 = kvt(1), kvt(2)
            x[0] = 's_waitcnt lgkmcnt(0)\n' + r1[0]
            x[1] = r1[1]
            x[3] = r1[2] + '\n' + r1[3]
            x[5] = r2[0] + '\n' + r2[1] + '\ns_waitcnt lgkmcnt(4)'
        elif n == 1:
            x[3] = r2[2]
            x[5] = r2[3]
        else:
            if g + 2 < 2*NS:
                r = kvt(g+2)
                x[3] = r[2*j]
                x[5] = r[2*j+1]
            if j == 0: x[0] = 's_waitcnt lgkmcnt(2)' if g + 1 < 2*NS else 's_waitcnt lgkmcnt(0)'
        if n == 2: x[1] = 's_waitcnt vmcnt(0)'
        if CT == 4 and n == 17: x[1] = 's_barrier'
        if n == N-3:
            x[0] = 's_waitcnt lgkmcnt(0)\ns_barrier'
            x[3] = oload(0, 0)[0]; x[5] = oload(0, 1)[0]
        if n == N-2:
            x[1] = oload(0, 2)[0]; x[3] = oload(0, 3)[0]; x[5] = oload(0, 4)[0]
        if n == N-1:
            x[2] = oload(0, 5)[0]; x[3] = oload(0, 6)[0]; x[5] = oload(0, 7)[0]
        slot(A, seq[n], seq[n+1] if n < N-1 else None, seq[n-1] if n else (3, 1, 3), x)
        if n == N//2 - 1: tile_out(A, 0, True)
        if n == N//2:
            tile_out(A, 1, True)
            check(A, 'e')
            A('s_cselect_b32 s54, 1, 0')
            A('s_cbranch_scc1 AT_SLOW')
        if n == N//2 + 5:
            A('s_waitcnt vmcnt(0)')
            signal(A, 0)
    stamp(A, 5)
    A('s_nop 1')
    A(sm(3, 1, 3))
    A(pv(3, 3, 1, 3))
    tile_out(A, 2, True)
    tile_out(A, 3, True)
    check(A, 'l')
    A('s_cbranch_scc1 AT_SLOW')
    A('AT_DONE:')
    S = Asm()
    S('AT_SLOW:')
    S('s_waitcnt vmcnt(0) lgkmcnt(0)')
    S('s_nop 15')
    for t in range(4):
        S(f'v_mov_b32 v{4+t}, 0xff800000')
    S('s_mov_b32 s34, s32')
    S('s_mov_b32 s36, 64')
    S('SL_MAX:')
    for l in kv_loads(0)[:2]: S(l)
    S('s_waitcnt vmcnt(0)')
    for t in range(4):
        S(qk(t, 0, 0)); S(qk(t, 0, 1))
    S('s_nop 15')
    for t in range(4):
        for r in range(0, 16, 2):
            S(f'v_max3_f32 v{4+t}, v{4+t}, v{SB+16*t+r}, v{SB+16*t+r+1}')
    S('s_add_u32 s34, s34, 4096')
    S('s_sub_u32 s36, s36, 1')
    S('s_cmp_lg_u32 s36, 0')
    S('s_cbranch_scc1 SL_MAX')
    for t in range(4):
        S(f'v_mov_b32 v8, v{4+t}')
        S('s_nop 1')
        S(f'v_permlane32_swap_b32 v8, v{4+t}')
        S('s_nop 1')
        S(f'v_max_f32 v{4+t}, v{4+t}, v8')
    for r in range(16):
        S(f'v_accvgpr_write_b32 a{AL+r}, 0')
    for r in range(64):
        S(f'v_mov_b32 v{OB+r}, 0')
    S('s_mov_b32 s34, s32')
    S('s_mov_b32 s36, 64')
    S('SL_ACC:')
    for l in kv_loads(0): S(l)
    S('s_waitcnt vmcnt(0)')
    for t in range(4):
        S(qk(t, 0, 0)); S(qk(t, 0, 1))
    S('s_nop 15')
    for t in range(4):
        for r in range(16):
            S(f'v_sub_f32 v{SB+16*t+r}, v{SB+16*t+r}, v{4+t}')
        for r in range(16):
            S(ex(t, r))
    S('s_nop 3')
    for t in range(4):
        for h in range(2):
            S(pv(t, 0, h)); S(sm(t, h))
    S('s_add_u32 s34, s34, 4096')
    S('s_sub_u32 s36, s36, 1')
    S('s_cmp_lg_u32 s36, 0')
    S('s_cbranch_scc1 SL_ACC')
    S('s_nop 15')
    for t in (2, 3):
        tile_out(S, t, False)
    S('s_cmp_eq_u32 s54, 0')
    S('s_cbranch_scc1 SL_END')
    for t in (0, 1):
        tile_out(S, t, False)
    S('s_waitcnt vmcnt(0)')
    signal(S, 0)
    S('s_barrier')
    S('SL_END:')
    S('s_waitcnt vmcnt(0)')
    for st in range(8): S(oload(0, st)[0])
    S('s_branch AT_DONE')
    tail.extend(S.lines)

def p3_compute(A):
    WB, ACC = 16, 48
    U = opt('u', 2)
    assert U == 2
    V = Cnt(A, 'vmcnt', 63)
    L = Cnt(A, 'lgkmcnt', 15)
    adv = ['s_add_u32 s86, s86, 8192', 's_and_b32 s86, s86, 0xffff', 's_add_u32 s87, s85, s86', 's_add_u32 s88, s87, 4096']
    def wr(slot, st):
        out = []
        for ct in range(2):
            for rho in range(2):
                out.append((f'ds_read_b64_tr_b16 {v(WB+8*(st%4)+4*ct+2*rho,2)}, v{5+ct} offset:{slot*16384+st*2048+rho*1024}', ('W', st%4, ct)))
        return out
    LA = 2
    stamp(A, 6)
    stamp(A, 7)
    V.q = [oload(0, st)[1] for st in range(8)]
    for x in adv: A(x)
    A('v_bfe_u32 v8, v1, 2, 2')
    A('v_lshrrev_b32 v9, 5, v1')
    A('v_lshl_add_u32 v9, v9, 2, v8')
    A('v_lshlrev_b32 v9, 7, v9')
    A('v_bfe_u32 v10, v1, 4, 1')
    A('v_lshl_add_u32 v9, v10, 5, v9')
    A('v_and_b32 v10, 3, v1')
    A('v_lshl_add_u32 v9, v10, 3, v9')
    A('v_lshrrev_b32 v8, 1, v8')
    A('v_lshl_add_u32 v5, v8, 6, v9')
    A('v_xor_b32 v8, 1, v8')
    A('v_lshl_add_u32 v6, v8, 6, v9')
    for st in range(LA):
        for r in wr(0, st): L.issue(*r)
    for sl in range(1, U):
        for st in range(8): V.issue(*oload(sl, st))
        for x in adv: A(x)
    for r in range(32):
        A(f'v_mov_b32 v{ACC+r}, 0')
    A('s_mov_b32 s38, 0')
    A('v_mov_b32 v8, 0')
    A('v_mov_b32 v0, 1')
    A(f's_mov_b32 s39, {U*16384}')
    srd(A, SOUT, 56, 57, 4 << 20)
    A(f's_lshl_b32 s29, s{sW}, 12')
    A('s_add_u32 s29, s29, 0x18000')
    A('v_add_u32 v140, s29, v2')
    A('v_and_b32 v9, 31, v1')
    A('v_lshrrev_b32 v10, 5, v1')
    A('v_xor_b32 v10, v10, v1')
    A('v_and_b32 v10, 7, v10')
    A('v_lshlrev_b32 v10, 4, v10')
    A('v_lshl_add_u32 v10, v9, 7, v10')
    A('v_add_u32 v132, s29, v10')
    for j in range(1, 4):
        A(f'v_xor_b32 v{132+j}, {32*j}, v132')
    A('v_lshrrev_b32 v9, 3, v1')
    A('v_xor_b32 v10, v9, v1')
    A('v_and_b32 v10, 7, v10')
    A('v_lshlrev_b32 v10, 4, v10')
    A('v_lshl_add_u32 v141, v9, 11, v10')
    A('s_lshl_b32 s40, s84, 16')
    A(f's_lshl_b32 s30, s{sCB}, 7')
    A('s_add_u32 s40, s40, s30')
    for i in range(1, 4):
        A(f's_add_u32 s{40+i}, s40, {i*16384}')
    A('P3_LOOP:')
    q0, v0 = list(L.q), list(V.q)
    if 'p3t' in VAR:
        A('s_memrealtime s[90:91]')
        A('s_memtime s[92:93]')
    def both(ltags, vtags):
        T = Asm(); L.A = T; V.A = T
        L.need(*ltags); V.need(*vtags)
        L.A = A; V.A = A
        parts = [l.strip().replace('s_waitcnt ', '') for l in T.lines]
        if parts: A('s_waitcnt ' + ' '.join(parts))
    for slot in range(U):
        for st in range(8):
            nst = st + LA
            if nst == 8 and slot == U-1:
                A('v_add_u32 v5, s31, v5')
                A('v_add_u32 v6, s31, v6')
            rds = wr(slot, nst) if nst < 8 else wr((slot+1) % U, nst-8)
            both([('W', st%4, 0), ('W', st%4, 1)], [('O', slot, st)])
            for ct in range(2):
                A(f'v_mfma_f32_32x32x16_bf16 {v(ACC+16*ct,16)}, {v(WB+8*(st%4)+4*ct,4)}, {oreg(slot,st)}, {v(ACC+16*ct,16)}')
                if slot == 0 and st == 0 and ct == 0:
                    A('s_barrier')
                L.issue(*rds[2*ct]); L.issue(*rds[2*ct+1])
                if ct == 1:
                    V.issue(*oload(slot, st))
                    if st == 7:
                        if slot == U-1:
                            A(f's_cmp_eq_u32 s38, {8-2*U}')
                            A('s_cselect_b32 s29, 0x10000, 0')
                            A('s_add_u32 s85, s85, s29')
                        for x in adv: A(x)
                elif slot == 0 and st == 0:
                    A(f's_cmp_eq_u32 s38, {16-U}')
                    A(f's_cselect_b32 s{SWS+2}, 0, s{SWS+2}')
                elif slot == 0 and st == 1:
                    A('s_cmp_eq_u32 s38, 8')
                    A(f's_cselect_b32 s31, {(32768-163840) & 0xffffffff:#x}, s39')
                elif slot == U-1 and st == 3:
                    A('s_cmp_eq_u32 s38, 0')
                    A('s_cselect_b32 s29, s55, 0x40000000')
                    A('s_mov_b64 exec, 1')
                    A(f'buffer_atomic_add v0, v8, {W}, s29 offen offset:128 sc1')
                    A('s_mov_b64 exec, -1')
    if 'p3t' in VAR:
        A('s_mov_b32 m0, s38')
        A('v_writelane_b32 v11, s90, m0')
        A('v_writelane_b32 v10, s92, m0')
    A(f's_add_u32 s38, s38, {U}')
    A('s_cmp_lt_u32 s38, 16')
    assert L.q == q0, (L.q, q0)
    assert V.q == v0, (V.q, v0)
    A('s_cbranch_scc1 P3_LOOP')
    stamp(A, 8)
    D = 112
    for ct in range(2):
        for g in range(4):
            b = ACC+16*ct+4*g
            d = D+8*ct+2*g
            A(f'v_cvt_pk_bf16_f32 v{d}, v{b}, v{b+1}')
            A(f'v_cvt_pk_bf16_f32 v{d+1}, v{b+2}, v{b+3}')
    A('s_nop 1')
    for j in range(4):
        d = D+4*j
        A(f'v_permlane32_swap_b32 v{d}, v{d+2}')
        A(f'v_permlane32_swap_b32 v{d+1}, v{d+3}')
        A(f'ds_write_b128 v{132+j}, {v(d,4)}')
    A('s_waitcnt lgkmcnt(0)')
    for i in range(4):
        A(f'ds_read_b128 {v(D+4*i,4)}, v140 offset:{i*1024}')
    for i in range(4):
        A(f's_waitcnt lgkmcnt({3-i})')
        A(f'buffer_store_dwordx4 {v(D+4*i,4)}, v141, s[{SOUT}:{SOUT+3}], s{40+i} offen' + (' sc1' if 'outsc1' in VAR else '') + (' nt' if 'outnt' in VAR else '') + (' sc0 sc1' if 'out01' in VAR else ''))

DOC = """;
;  phase 2  attention.  S^T = K Q^T (log2(e)/sqrt(32) folded into K), P = exp2(S) in place, P V and the row sums
;           by sparse MFMAs that pick the upper (bf16) half of every f32 P register.  The softmax shift is 0;
;           tiles with the true row maximum (AT_SLOW).  O * gate / rowsum goes to d_ws in two halves.
; Generated by a script of the author (register allocation, scheduling and wait counts are the script's).
"""
def build():
    ref = open(f'cdna_kernels/{NAME}.s.ref').read().split('\n')
    head = [l for l in ref if l.startswith(';') and '@launch' not in l and 'Override' not in l and 'grid=ceil' not in l]
    out = '\n'.join(head) + '\n'
    if 'aslist' in VAR:
        out += f'; @launch kernel={KNAME} grid=(256,1,1) block=(512,1,1) lds={LDS_BYTES}\n'
    else:
        out += f'; @launch grid=(256,1,1) block=(512,1,1) lds={LDS_BYTES}\n'
    out += DOC
    out += '.amdgcn_target "amdgcn-amd-amdhsa--gfx950"\n.text\n'
    A = Asm()
    kernel(A)
    out += A.text()
    out += '.section .rodata,"a"\n' + kd(KNAME, 256, NARCH)
    return out

if __name__ == '__main__':
    args = [x for x in sys.argv[1:] if not x.startswith('--')]
    if '--instr' in sys.argv: INSTR = True
    if '--lst' in sys.argv: LST = True
    if '--ct4' in sys.argv: CT = 4
    if '--nsig3' in sys.argv: NSIG = 3
    if '--nsig1' in sys.argv: NSIG = 1
    for x in sys.argv:
        if x.startswith('--var='): VAR = x[6:]
    dst = args[0] if args else f'cdna_kernels/{NAME}.s'
    open(dst, 'w').write(build())
```

```python
import math, sys
from asmlib import *

NAME = 'gated_mix__grouped_kv_mqa__grouped_kv_mqa__prompt'
KNAME = NAME + '_kernel'
WS_KV = 0
WS_G = 512 << 10
WS_FLAG = 576 << 10
WS_OF = 1 << 20
CT = 4
WS_BYTES = 9 << 20
QK_SCALE = math.log2(math.e) / math.sqrt(32.0)
LOG2E = math.log2(math.e)
INSTR = False
LST = False
VAR = ''
WS_DBG = 32 << 20
WS_DBG2 = 40 << 20

SLOT = 32768
L_GATE = 4 * SLOT
LDS_BYTES = 163840
L_KVR = 98304

SX, SW, SKV, SWS, SG = 4, 8, 12, 16, 20
SWO, SOUT = 8, 12
sW, sTB, sCB, sST = 24, 25, 26, 27
W = f's[{SWS}:{SWS+3}]'
DBG = 58
NARCH = 176
SB, OB = 16, 80
AL, AK, AV = 0, 16, 48
QB = 144
IDX, SEL = 9, 12
NSIG, NPOLL, NCHK = 2, 11, 13

def opt(name, default):
    for tok in VAR.split('_'):
        if tok.startswith(name) and tok[len(name):].isdigit():
            return int(tok[len(name):])
    return default

def srd(A, d, lo, hi, nbytes):
    A(f's_mov_b32 s{d}, s{lo}')
    A(f's_and_b32 s{d+1}, s{hi}, 0xffff')
    A(f's_mov_b32 s{d+2}, {nbytes:#x}')
    A(f's_mov_b32 s{d+3}, 0x20000')

def stamp(A, i):
    if INSTR:
        A(f's_mem{"time" if "allcyc" in VAR else "realtime"} s[{64+2*i}:{65+2*i}]')
NST = 10
def stamp_end(A):
    if opt('echo', None) is not None:
        e = opt('echo', 0); i, j = e // 10, e % 10
        A('s_waitcnt vmcnt(0) lgkmcnt(0)')
        stamp(A, NST-1)
        A('s_waitcnt lgkmcnt(0)')
        A(f's_sub_u32 s29, s{64+2*j}, s{64+2*i}')
        A('ECHO:')
        A('s_memrealtime s[30:31]')
        A('s_waitcnt lgkmcnt(0)')
        A(f's_sub_u32 s30, s30, s{64+2*(NST-1)}')
        A('s_cmp_lt_u32 s30, s29')
        A('s_cbranch_scc1 ECHO')
        return
    if not INSTR: return
    A('s_waitcnt vmcnt(0) lgkmcnt(0)')
    stamp(A, NST-1)
    if 'p3t' in VAR:
        A('s_lshl_b32 s89, s2, 2')
        A(f's_add_u32 s89, s89, s{sW}')
        A('s_lshl_b32 s89, s89, 10')
        A(f's_add_u32 s89, s89, {WS_DBG2}')
        A('v_lshlrev_b32 v0, 2, v1')
        A('v_add_u32 v0, s89, v0')
        A('global_store_dword v0, v11, s[60:61]')
        A('global_store_dword v0, v12, s[60:61] offset:256')
    A('s_getreg_b32 s62, hwreg(HW_REG_XCC_ID)')
    A('s_waitcnt lgkmcnt(0)')
    A('s_mov_b64 exec, 1')
    A('s_lshl_b32 s63, s2, 2')
    A(f's_add_u32 s63, s63, s{sW}')
    A('s_lshl_b32 s63, s63, 6')
    A(f's_add_u32 s63, s63, {WS_DBG}')
    A('v_mov_b32 v0, s63')
    for i in range(NST):
        A(f'v_mov_b32 v1, s{64+2*i}')
        A(f'global_store_dword v0, v1, s[60:61] offset:{4*i}')
    A('v_mov_b32 v1, s62')
    A(f'global_store_dword v0, v1, s[60:61] offset:{4*NST}')
    A('s_waitcnt vmcnt(0)')
def lstamp(A, vreg, idx):
    if not LST: return
    A('s_memtime s[64:65]' if ('cyc' in VAR and vreg == 32) else 's_memrealtime s[64:65]')
    A('s_waitcnt lgkmcnt(0)')
    if isinstance(idx, str):
        A(f's_mov_b32 m0, {idx}')
        A(f'v_writelane_b32 v{vreg}, s64, m0')
    else:
        A(f'v_writelane_b32 v{vreg}, s64, {idx}')
def ldump(A):
    if not LST: return
    A('s_lshl_b32 s80, s2, 2')
    A(f's_add_u32 s80, s80, s{sW}')
    A('s_lshl_b32 s80, s80, 10')
    A(f's_add_u32 s80, s80, {WS_DBG2}')
    A('v_lshlrev_b32 v0, 2, v1')
    A('v_add_u32 v0, s80, v0')
    A('global_store_dword v0, v30, s[60:61]')
    A('global_store_dword v0, v31, s[60:61] offset:256')
    A('global_store_dword v0, v32, s[60:61] offset:512')
    A('s_waitcnt vmcnt(0)')

def poll(A, tag, load, vwant, sleep, cmp='ne'):
    A('s_mov_b32 s30, 0x40000')
    A(f'POLL_{tag}:')
    A(load)
    A('s_waitcnt vmcnt(0)')
    A(f'v_cmp_{cmp}_u32 vcc, v10, v{vwant}')
    A('s_sub_u32 s30, s30, 1')
    A(f's_cbranch_scc1 POLLD_{tag}')
    A(f's_cbranch_vccz POLLD_{tag}')
    A(f's_sleep {sleep}')
    A(f's_branch POLL_{tag}')
    A(f'POLLD_{tag}:')

tail = []

def kernel(A):
    A(f'.globl {KNAME}\n.p2align 8\n.type {KNAME},@function\n{KNAME}:')
    A('s_cmp_ge_u32 s2, 256')
    A('s_cbranch_scc1 END2')
    stamp(A, 0)
    if 'flip' in VAR: A('s_xor_b32 s2, s2, 1')
    A('s_load_dwordx4 s[40:43], s[0:1], 0')
    A('s_load_dwordx4 s[44:47], s[0:1], 16')
    A('s_load_dwordx4 s[48:51], s[0:1], 48')
    A('s_load_dwordx2 s[52:53], s[0:1], 64')
    A('s_load_dwordx2 s[54:55], s[0:1], 80')
    A('s_load_dwordx4 s[56:59], s[0:1], 88')
    A('s_load_dwordx2 s[60:61], s[0:1], 104')
    A('v_lshrrev_b32 v8, 6, v0')
    A('v_and_b32 v1, 63, v0')
    A(f'v_readfirstlane_b32 s{sW}, v8')
    A('s_and_b32 s29, s2, 1')
    A('s_lshl_b32 s29, s29, 3')
    A('s_bfe_u32 s30, s2, 0x30003')
    A(f's_add_u32 s{sCB}, s29, s30')
    A('s_bfe_u32 s28, s2, 0x20001')
    A('s_lshl_b32 s31, s28, 2')
    A('s_lshr_b32 s32, s2, 6')
    A(f's_add_u32 s{sTB}, s31, s32')
    A('s_lshl_b32 s29, s32, 1')
    A('s_add_u32 s28, s28, s29')
    A('s_and_b32 s29, s30, 4')
    A('s_add_u32 s28, s28, s29')
    A('s_and_b32 s28, s28, 7')
    A(f's_and_b32 s{sST}, s2, 7')
    A(f's_lshl_b32 s{sST}, s{sST}, 1')
    A('v_lshlrev_b32 v2, 4, v1')
    A(f's_cmp_lt_u32 s{sW}, 4')
    A('s_cbranch_scc1 COMPUTE')
    helper(A)
    A('COMPUTE:')
    p1_compute(A)
    attention(A)
    p3_compute(A)
    A('END:')
    stamp_end(A)
    A('END2:')
    A('s_endpgm')
    A.lines += tail


def opf(A, half):
    for i in range(4):
        A(f's_add_u32 s29, s46, {i*0x20000 + half*0x10000}')
        A(f'buffer_load_dword v{20+i}, v12, {W}, s29 offen sc1')

def helper(A):
    A(f's_sub_u32 s{sW}, s{sW}, 4')
    A('v_lshrrev_b32 v8, 3, v1')
    A('v_lshlrev_b32 v8, 11, v8')
    A('v_lshrrev_b32 v9, 4, v1')
    A('v_and_b32 v10, 7, v1')
    A('v_xor_b32 v10, v10, v9')
    A('v_lshl_add_u32 v16, v10, 4, v8')
    A('v_xor_b32 v10, 4, v10')
    A('v_lshl_add_u32 v17, v10, 4, v8')
    A('v_add_u32 v17, 15360, v17')
    A('v_add_u32 v18, 30720, v16')
    A('v_add_u32 v19, 30720, v17')
    A(f's_lshl_b32 s34, s{sTB}, 18')
    A(f's_lshl_b32 s36, s{sW}, 12')
    A('s_mov_b32 s38, 0')
    A('s_bitcmp1_b32 s2, 0')
    A('s_cbranch_scc1 H_ODD')
    A(f's_and_b32 s29, s{sCB}, 3')
    A('s_lshl_b32 s29, s29, 16')
    A('s_add_u32 s33, s34, s29')
    A(f's_and_b32 s29, s{sW}, 1')
    A('s_lshl_b32 s29, s29, 15')
    A('s_add_u32 s33, s33, s29')
    A(f's_lshr_b32 s29, s{sW}, 1')
    A('s_lshl_b32 s29, s29, 7')
    A('s_add_u32 s33, s33, s29')
    A(f's_lshl_b32 s35, s{sW}, 11')
    A('s_mov_b32 s37, s35')
    A('s_waitcnt lgkmcnt(0)')
    srd(A, SX, 40, 41, 4 << 20)
    A(f's_bitcmp1_b32 s{sCB}, 2')
    A('s_cselect_b32 s44, s50, s44')
    A('s_cselect_b32 s45, s51, s45')
    A('s_cselect_b32 s46, s52, s46')
    A('s_cselect_b32 s47, s53, s47')
    srd(A, SKV, 44, 45, 65536)
    srd(A, SG, 46, 47, 65536)
    lstamp(A, 30, 20)
    A('H_KV:')
    A('s_cmp_lt_u32 s38, 3')
    A('s_cbranch_scc1 H_KV2')
    A('s_waitcnt vmcnt(12)')
    A('s_barrier')
    A('H_KV2:')
    if LST: A('s_add_u32 s49, s38, 48')
    lstamp(A, 31, 's49')
    A('s_lshl_b32 s29, s28, 8')
    A('s_add_u32 s29, s29, s33')
    A('s_mov_b32 m0, s37')
    A('s_lshl_b32 s30, s28, 13')
    for i in range(2):
        A(f'buffer_load_dwordx4 v{16+i}, s[{SX}:{SX+3}], s29 offen offset:{i*1024} lds')
    A('s_add_u32 m0, s37, 8192')
    A('s_add_u32 s30, s30, s35')
    for i in range(2):
        A(f'buffer_load_dwordx4 v2, s[{SKV}:{SKV+3}], s30 offen offset:{i*1024} lds')
    A('s_add_u32 m0, s37, 16384')
    A('s_add_u32 s28, s28, 1')
    for i in range(2):
        A(f'buffer_load_dwordx4 v2, s[{SG}:{SG+3}], s30 offen offset:{i*1024} lds')
    lstamp(A, 30, 's49')
    A('s_and_b32 s28, s28, 7')
    A(f's_add_u32 s37, s37, {SLOT}')
    A(f's_and_b32 s37, s37, {4*SLOT-1:#x}')
    A('s_add_u32 s38, s38, 1')
    A('s_cmp_lt_u32 s38, 8')
    A('s_cbranch_scc1 H_KV')
    A('s_mov_b32 s38, 0')
    A('s_mov_b32 s62, 1')
    A('s_waitcnt vmcnt(12)')
    A('s_barrier')
    A('s_branch H_Q')
    A('H_ODD:')
    A('s_mov_b32 s62, 99')
    A('s_waitcnt lgkmcnt(0)')
    srd(A, SX, 40, 41, 4 << 20)
    A('s_mov_b32 s42, s48')
    A('s_mov_b32 s43, s49')
    A('H_Q:')
    A('s_mov_b32 s37, s36')
    A('v_bfe_u32 v10, v1, 1, 3')
    A('v_lshlrev_b32 v8, 1, v9')
    A('v_xor_b32 v10, v10, v8')
    A('v_lshlrev_b32 v10, 5, v10')
    A('v_lshl_add_u32 v10, v9, 11, v10')
    A('v_and_b32 v8, 1, v1')
    A('v_lshl_add_u32 v20, v8, 4, v10')
    A('v_add_u32 v21, 7168, v20')
    A('v_xor_b32 v10, 32, v20')
    A('v_add_u32 v22, 14336, v10')
    A('v_add_u32 v23, 21504, v10')
    srd(A, SW, 42, 43, 2 << 20)
    A(f's_lshl_b32 s29, s{sW}, 16')
    A('s_add_u32 s34, s34, s29')
    A(f's_and_b32 s35, s{sCB}, 7')
    A('s_lshl_b32 s35, s35, 8')
    A(f's_lshl_b32 s29, s{sW}, 15')
    A('s_add_u32 s35, s35, s29')
    A('H_LOOP:')
    A('s_cmp_ge_u32 s38, 5')
    A('s_cbranch_scc1 H_W16')
    A('s_cmp_lg_u32 s38, s62')
    A('s_cbranch_scc1 H_NX')
    A('s_waitcnt vmcnt(14)')
    A('s_barrier')
    A('s_waitcnt vmcnt(8)')
    A('s_barrier')
    A('H_NX:')
    A('s_bitcmp1_b32 19, s38')
    A('s_cbranch_scc1 H_ISSUE')
    A('s_waitcnt vmcnt(8)')
    A('H_W16:')
    A('s_waitcnt vmcnt(16)')
    lstamp(A, 30, 's38')
    A('s_barrier')
    A('H_ISSUE:')
    lstamp(A, 31, 's38')
    A(f's_lshl_b32 s29, s{sST}, 7')
    A('s_add_u32 s29, s29, s34')
    A('s_mov_b32 m0, s37')
    A(f's_lshl_b32 s30, s{sST}, 17')
    for i in range(4):
        A(f'buffer_load_dwordx4 v{16+i}, s[{SX}:{SX+3}], s29 offen offset:{i*1024} lds')
    A('s_add_u32 m0, s37, 16384')
    A('s_add_u32 s30, s30, s35')
    for i in range(4):
        A(f'buffer_load_dwordx4 v{20+i}, s[{SW}:{SW+3}], s30 offen offset:{i*1024} lds')
    A(f's_add_u32 s{sST}, s{sST}, 1')
    A(f's_and_b32 s{sST}, s{sST}, 15')
    A(f's_add_u32 s37, s37, {SLOT}')
    A(f's_and_b32 s37, s37, {4*SLOT-1:#x}')
    lstamp(A, 32, 's38')
    A('s_add_u32 s38, s38, 1')
    A('s_cmp_lt_u32 s38, 16')
    A('s_cbranch_scc1 H_LOOP')
    A('s_load_dwordx2 s[40:41], s[0:1], 32')
    A('s_load_dwordx2 s[42:43], s[0:1], 72')
    srd(A, SWS, 60, 61, WS_BYTES)
    A(f's_lshr_b32 s32, s{sCB}, 3')
    A('s_lshl_b32 s32, s32, 18')
    A('s_add_u32 s32, s32, s36')
    A('s_lshr_b32 s33, s2, 4')
    A('s_lshl_b32 s33, s33, 14')
    def kv_chunk(c):
        A(f's_add_u32 m0, s36, {L_KVR + ((c+2)&3)*16384}')
        A('s_add_u32 s31, s32, s33')
        for i in range(4):
            A(f'buffer_load_dwordx4 v2, {W}, s31 offen offset:{i*1024} sc1 lds')
        A('s_add_u32 s33, s33, 16384')
        A('s_and_b32 s33, s33, 0x3ffff')
    for n, i in ((16, 16), (8, 17), (8, 18)):
        A(f's_waitcnt vmcnt({n})')
        lstamp(A, 30, i)
        A('s_barrier')
        lstamp(A, 31, i)
        if i == 17:
            kv_chunk(0)
            kv_chunk(1)
    A('v_lshrrev_b32 v8, 3, v1')
    A('v_lshlrev_b32 v8, 11, v8')
    A('v_lshrrev_b32 v10, 1, v1')
    A('v_lshrrev_b32 v12, 4, v1')
    A('v_xor_b32 v10, v10, v12')
    A('v_and_b32 v10, 3, v10')
    A('v_lshl_add_u32 v8, v10, 5, v8')
    A('v_and_b32 v10, 1, v1')
    A('v_lshl_add_u32 v16, v10, 4, v8')
    A('v_bfe_u32 v8, v1, 2, 3')
    A('v_lshrrev_b32 v10, 5, v1')
    A('v_lshl_add_u32 v10, v10, 4, v8')
    A('v_lshlrev_b32 v10, 7, v10')
    A('v_lshrrev_b32 v8, 1, v8')
    A('v_lshl_add_u32 v10, v8, 5, v10')
    A('v_and_b32 v8, 3, v1')
    A('v_lshl_add_u32 v10, v8, 3, v10')
    A('v_add_u32 v24, s36, v10')
    for c in range(1, 4):
        A(f'v_xor_b32 v{24+c}, {32*c}, v24')
    A('v_add_u32 v17, 15360, v16')
    A('v_add_u32 v18, 30720, v16')
    A('v_add_u32 v19, 46080, v16')
    A(f's_lshl_b32 s34, s{sCB}, 7')
    A(f's_lshl_b32 s29, s{sW}, 17')
    A('s_add_u32 s34, s34, s29')
    A('s_bfe_u32 s29, s2, 0x20001')
    A(f's_lshr_b32 s{sST}, s{sCB}, 3')
    A(f's_lshl_b32 s{sST}, s{sST}, 2')
    A(f's_add_u32 s{sST}, s{sST}, s29')
    if 'g2' in VAR:
        A(f's_and_b32 s29, s{sCB}, 4')
        A(f's_xor_b32 s{sST}, s{sST}, s29')
    A('s_waitcnt lgkmcnt(0)')
    A('s_and_b32 s41, s41, 0xffff')
    A('s_and_b32 s43, s43, 0xffff')
    A(f's_mov_b32 s{SWO+2}, 0x200000')
    A(f's_mov_b32 s{SWO+3}, 0x20000')
    A('v_mov_b32 v9, 0')
    A('v_mov_b32 v11, 64')
    A('v_add_u32 v13, s36, v2')
    A('v_add_u32 v14, 0x10000, v13')
    A('v_add_u32 v15, 0x18000, v13')
    A(f's_lshl_b32 s44, s{sTB}, 8')
    A(f's_add_u32 s44, s44, {WS_FLAG}')
    A(f's_cmp_eq_u32 s{sW}, 0')
    A('s_cselect_b32 s45, s44, 0x40000000')
    A('v_lshlrev_b32 v12, 7, v1')
    A(f's_lshl_b32 s46, s{sTB}, 19')
    A(f's_and_b32 s29, s{sCB}, 7')
    A('s_lshl_b32 s29, s29, 13')
    A('s_add_u32 s46, s46, s29')
    A(f's_add_u32 s46, s46, {WS_OF}')
    A('s_waitcnt vmcnt(4)')
    lstamp(A, 30, 19)
    A('s_barrier')
    lstamp(A, 31, 19)
    def hold(j, i):
        return v(48+16*j+4*i, 4) if j < 8 else a(16*(j-8)+4*i, 4)
    ORD = list(range(6, 16)) + [4, 5, 0, 1, 2, 3]
    def wo_issue(k):
        n = ORD[k]
        A(f's_add_u32 s30, s{sST}, {n & 7}')
        A('s_bitcmp1_b32 s30, 2')
        A(f's_cselect_b32 s{SWO}, s42, s40')
        A(f's_cselect_b32 s{SWO+1}, s43, s41')
        A('s_and_b32 s29, s30, 3')
        A('s_lshl_b32 s29, s29, 19')
        if n >= 8: A('s_add_u32 s29, s29, 0x10000')
        A(f's_add_u32 m0, s36, {(k % 4)*16384}')
        A('s_add_u32 s29, s29, s34')
        for i in range(4):
            A(f'buffer_load_dwordx4 v{16+i}, s[{SWO}:{SWO+3}], s29 offen offset:{i*1024} lds')
    def half(reg, rho):
        p, lo = reg[0], int(reg[2:reg.index(':')])
        return f'{p}[{lo+2*rho}:{lo+2*rho+1}]'
    def wo_turn(k):
        n = ORD[k]
        dst = [hold(n-6, c) if n >= 6 else a(32+16*(k & 1)+4*c, 4) for c in range(4)]
        for c in range(4):
            for rho in range(2):
                A(f'ds_read_b64_tr_b16 {half(dst[c], rho)}, v{24+c} offset:{(k % 4)*16384+rho*1024}')
                A('s_waitcnt lgkmcnt(0)')
        A('s_waitcnt lgkmcnt(0)')
        if n < 6:
            for c in range(4):
                A(f'ds_write_b128 v{13 + n//4}, {dst[c]} offset:{(n % 4)*16384+c*1024}')
                A('s_waitcnt lgkmcnt(0)')
    V = Cnt(A, 'vmcnt', 63)
    def track(tag, n=4):
        V.q += [tag]*n
    track(('c', 1))
    kv_chunk(2); track(('c', 2))
    kv_chunk(3); track(('c', 3))
    if 'hpf' in VAR.split('_'):
        A('s_getpc_b64 s[62:63]')
        A('HPF_PC:')
        A(f's_lshl_b32 s29, s{sW}, 13')
        A('s_add_u32 s29, s29, AT_LOOP-HPF_PC')
        A('v_lshlrev_b32 v20, 7, v1')
        A('v_add_u32 v20, s29, v20')
        A('v_min_u32 v20, AT_SLOW-HPF_PC, v20')
        A('global_load_dword v21, v20, s[62:63]')
        track(('h', 0), 1)
    nwo = 0
    for i in range(13):
        V.need(('c', i+1) if i < 15-CT else ('c', i+3))
        A('s_barrier')
        lstamp(A, 30, 48+i); lstamp(A, 32, 48+i)
        if i + 4 < 16:
            kv_chunk(i+4); track(('c', i+4))
        if i < 8:
            for k in (2*i, 2*i+1):
                wo_issue(k); track(('w', k))
        if 1 <= i <= 8:
            V.need(('w', 2*i-2), ('w', 2*i-1))
            for k in (2*i-2, 2*i-1):
                if 'noturn' not in VAR: wo_turn(k)
    A('s_waitcnt vmcnt(0) lgkmcnt(0)')
    A(f's_cmp_lg_u32 s{sW}, 0')
    A('s_cbranch_scc1 H_NOPOLL2')
    A('s_setprio 3')
    A(f's_sleep {64 if CT == 4 else 96}')
    poll(A, 'O', f'buffer_load_dword v10, v9, {W}, s44 offen sc1', 11, 8, 'lt')
    if 'noe' not in VAR: opf(A, 0)
    A('H_NOPOLL2:')
    A('s_barrier')
    lstamp(A, 31, 32)
    NB = opt('nb', 4)
    def ringw(j, pace):
        for i in range(4):
            A(f'ds_write_b128 v15, {hold(j,i)} offset:{j*16384+i*1024}')
            if pace: A('s_waitcnt lgkmcnt(0)')
        if j == 2: A('s_waitcnt lgkmcnt(8)')
    for j in range(NB): ringw(j, 'pc' in VAR)
    for b in range(4):
        if b == 3:
            A(f's_cmp_lg_u32 s{sW}, 0')
            A('s_cbranch_scc1 H_NOPOLL3')
            poll(A, 'O2', f'buffer_load_dword v10, v9, {W}, s44 offen offset:128 sc1', 11, 2, 'lt')
            A('H_NOPOLL3:')
        if b: A('s_waitcnt lgkmcnt(0)')
        A('s_barrier')
        if b == 0:
            for j in range(NB, 4): ringw(j, True)
        if b >= 1:
            for j in (2*b-2, 2*b-1):
                for i in range(4):
                    A(f'ds_write_b128 v{13 + j//4}, {hold(j+4,i)} offset:{(j%4)*16384+i*1024}')
                    A('s_waitcnt lgkmcnt(0)')
    if 'dt' in VAR.split('_'):
        srd(A, SOUT, 56, 57, 4 << 20)
        A(f's_lshl_b32 s29, s{sTB}, 2')
        A(f's_add_u32 s29, s29, s{sW}')
        A('s_lshl_b32 s29, s29, 16')
        A('s_mov_b64 exec, 1')
        A(f'buffer_load_dword v22, v9, s[{SOUT}:{SOUT+3}], s29 offen')
    ldump(A)
    A('s_endpgm')

def kv_adv():
    return ['s_add_u32 s33, s33, 4096', 's_and_b32 s33, s33, 0x3ffff', 's_add_u32 s34, s32, s33']
def kv_loads(b):
    return [f'buffer_load_dwordx4 {a(AK+8*b,4)}, v2, {W}, s34 offen sc1',
            f'buffer_load_dwordx4 {a(AK+8*b+4,4)}, v2, {W}, s34 offen offset:1024 sc1',
            f'buffer_load_dwordx4 {a(AV+8*b,4)}, v2, {W}, s34 offen offset:2048 sc1',
            f'buffer_load_dwordx4 {a(AV+8*b+4,4)}, v2, {W}, s34 offen offset:3072 sc1']
def kvr(st, b):
    return [f'ds_read_b128 {a(AK+8*b,4)}, v0 offset:{st*4096}',
            f'ds_read_b128 {a(AK+8*b+4,4)}, v0 offset:{st*4096+1024}',
            f'ds_read_b128 {a(AV+8*b,4)}, v0 offset:{st*4096+2048}',
            f'ds_read_b128 {a(AV+8*b+4,4)}, v0 offset:{st*4096+3072}']
sel_code = [f'v_mov_b32 v{SEL+3}, 0x3f803f80', f'v_and_b32 v{SEL+2}, 7, v1', f'v_cmp_eq_u32 vcc, 0, v{SEL+2}',
            f'v_cmp_eq_u32 s[46:47], 4, v{SEL+2}', f'v_mov_b32 v{IDX}, 0xdddddddd', 's_nop 0',
            f'v_cndmask_b32 v{SEL}, 0, v{SEL+3}, vcc', f'v_cndmask_b32 v{SEL+1}, 0, v{SEL+3}, vcc',
            f'v_cndmask_b32 v{SEL+2}, 0, v{SEL+3}, s[46:47]', f'v_cndmask_b32 v{SEL+3}, 0, v{SEL+3}, s[46:47]']

def p1_compute(A):
    WA, XA = 3, 7
    KXA, KWA, GA, GB, KST, KAC, VAC, GAC = 144, 146, 147, 148, 149, 152, 156, 160
    A('v_lshlrev_b32 v3, 7, v1')
    A('s_and_b32 s30, s2, 0xfe')
    A(f's_add_u32 s30, s30, s{sW}')
    A('s_lshl_b32 s30, s30, 13')
    A(f's_lshr_b32 s29, s{sW}, 1')
    A('s_andn2_b32 s29, s2, s29')
    A('s_bitcmp1_b32 s29, 0')
    A('s_cselect_b32 s30, s30, 0x40000000')
    if 'nopf' in VAR: A('s_mov_b32 s30, 0x40000000')
    A(f's_lshl_b32 s29, s{sW}, 10')
    A('s_and_b32 s29, s29, 1024')
    A(f's_add_u32 m0, s29, {L_GATE}')
    A('s_waitcnt lgkmcnt(0)')
    srd(A, SG, 54, 55, 2048)
    A(f'buffer_load_dwordx4 v2, s[{SG}:{SG+3}], s29 offen lds')
    if 'cpf' in VAR:
        A('s_getpc_b64 s[62:63]')
        A('CPF_PC:')
        A(f's_lshl_b32 s29, s{sW}, 13')
        A('v_add_u32 v4, s29, v3')
        A('v_min_u32 v4, END2-CPF_PC+3584, v4')
        A('global_load_dword v175, v4, s[62:63] offset:-3584')
    srd(A, SW, 42, 43, 2 << 20)
    srd(A, SWS, 60, 61, WS_BYTES)
    A(f's_lshl_b32 s55, s{sTB}, 8')
    A(f's_add_u32 s55, s55, {WS_FLAG}')
    A(f's_lshl_b32 s29, s{sCB}, 2')
    A(f's_add_u32 s29, s29, s{sW}')
    A('s_cmp_eq_u32 s29, 3')
    A('s_cselect_b32 s29, s55, 0x40000000')
    A('v_lshlrev_b32 v8, 2, v1')
    A('v_mov_b32 v9, 0')
    A(f'buffer_store_dword v9, v8, {W}, s29 offen sc1')
    A(f'buffer_load_dword v0, v3, s[{SW}:{SW+3}], s30 offen')
    A('v_and_b32 v8, 15, v1')
    A(f's_and_b32 s29, s{sW}, 1')
    A('s_lshl_b32 s29, s29, 4')
    A('v_add_u32 v8, s29, v8')
    A('v_lshrrev_b32 v9, 4, v1')
    A('v_bfe_u32 v10, v8, 1, 3')
    A('v_xor_b32 v10, v10, v9')
    A('v_lshlrev_b32 v8, 7, v8')
    A(f'v_lshl_add_u32 v{KXA}, v10, 4, v8')
    A('v_xor_b32 v10, 4, v10')
    A(f'v_lshl_add_u32 v{KXA+1}, v10, 4, v8')
    A('v_bfe_u32 v11, v1, 2, 2')
    A('v_and_b32 v14, 3, v1')
    A('v_lshl_add_u32 v12, v9, 3, v11')
    A('v_lshlrev_b32 v12, 6, v12')
    A('v_lshl_add_u32 v12, v14, 3, v12')
    A(f's_lshr_b32 s29, s{sW}, 1')
    A('s_lshl_b32 s29, s29, 5')
    A(f'v_add_u32 v{KWA}, s29, v12')
    A(f'v_lshlrev_b32 v{GB}, 4, v9')
    A(f'v_add_u32 v{GB}, {L_GATE}, v{GB}')
    A('s_lshl_b32 s29, s28, 8')
    A(f'v_add_u32 v{GA}, s29, v{GB}')
    for r in range(12):
        A(f'v_mov_b32 v{KAC+r}, 0')
    A('v_and_b32 v8, 15, v1')
    A('v_bfe_u32 v9, v1, 4, 1')
    A('v_lshrrev_b32 v10, 5, v1')
    A('v_lshl_add_u32 v13, v10, 5, v8')
    A('v_lshlrev_b32 v13, 4, v13')
    A('v_lshl_add_u32 v12, v9, 10, v13')
    A('v_lshl_add_u32 v13, v9, 3, v13')
    A(f's_and_b32 s29, s{sW}, 1')
    A(f's_lshr_b32 s30, s{sW}, 1')
    A('s_lshl_b32 s31, s29, 8')
    A('s_lshl_b32 s32, s30, 3')
    A('s_add_u32 s31, s31, s32')
    A(f'v_add_u32 v{KST}, s31, v12')
    A('s_lshl_b32 s31, s29, 10')
    A('s_lshl_b32 s32, s30, 8')
    A('s_add_u32 s31, s31, s32')
    A(f'v_add_u32 v{KST+1}, s31, v13')
    A(f'v_lshlrev_b32 v{KST+2}, 2, v1')
    A('v_and_b32 v15, 15, v1')
    A('v_lshrrev_b32 v9, 4, v1')
    A('v_bfe_u32 v10, v1, 1, 3')
    A('v_xor_b32 v10, v10, v9')
    A('v_lshlrev_b32 v15, 7, v15')
    A(f's_and_b32 s29, s{sW}, 1')
    A('s_lshl_b32 s29, s29, 13')
    A('v_add_u32 v15, s29, v15')
    A(f'v_lshl_add_u32 v{XA}, v10, 4, v15')
    A(f'v_xor_b32 v{XA+1}, 64, v{XA}')
    A('v_lshl_add_u32 v12, v9, 3, v11')
    A('v_and_b32 v13, 1, v9')
    A('v_lshl_add_u32 v13, v11, 1, v13')
    A(f's_and_b32 s30, s{sW}, 2')
    A('s_lshl_b32 s30, s30, 1')
    A('v_xor_b32 v13, s30, v13')
    A('v_lshlrev_b32 v13, 5, v13')
    A('v_lshl_add_u32 v13, v14, 3, v13')
    A(f'v_lshl_add_u32 v{WA}, v12, 8, v13')
    for c in range(1, 4):
        A(f'v_xor_b32 v{WA+c}, {32*c}, v{WA}')
    for r in range(SB, SB+64):
        A(f'v_mov_b32 v{r}, 0')
    for r in range(16):
        A(f'v_accvgpr_write_b32 a{AL+r}, 0')
    for r in range(4):
        A(f'v_accvgpr_write_b32 a{AV+12+r}, 0')
    for l in sel_code: A(l)
    A(f's_bfe_u32 s32, s{sCB}, 0x10002')
    A('s_lshl_b32 s37, s32, 31')
    A('s_lshl_b32 s31, s32, 13')
    A('s_lshl_b32 s32, s32, 18')
    A(f's_lshl_b32 s30, s{sTB}, 2')
    A(f's_and_b32 s29, s{sCB}, 3')
    A('s_add_u32 s30, s30, s29')
    A('s_lshl_b32 s35, s30, 12')
    A('s_add_u32 s35, s35, s32')
    A('s_lshl_b32 s36, s30, 7')
    A('s_add_u32 s36, s36, s31')
    A(f's_and_b32 s31, s{sW}, 1')
    A('s_lshl_b32 s31, s31, 6')
    A('s_add_u32 s36, s36, s31')
    A(f's_add_u32 s36, s36, {WS_G}')
    A(f's_cmp_lt_u32 s{sW}, 2')
    A('s_cselect_b32 s36, s36, 0x40000000')
    A(f's_xor_b32 s37, s37, {f32bits(-LOG2E):#x}')
    A(f's_lshr_b32 s32, s{sCB}, 3')
    A('s_lshl_b32 s32, s32, 18')
    A(f's_mov_b32 s39, {SLOT}')
    A(f's_cmp_eq_u32 s{sW}, 3')
    A(f's_cselect_b32 s45, {(1<<NSIG)|(1<<NPOLL)|(1<<NCHK):#x}, 0')
    A(f's_lshl_b32 s29, s{sTB}, 2')
    A(f's_and_b32 s30, s{sW}, 1')
    A('s_lshl_b32 s30, s30, 1')
    A('s_add_u32 s29, s29, s30')
    A('s_lshl_b32 s48, s29, 7')
    A('s_lshr_b32 s30, s32, 5')
    A('s_add_u32 s48, s48, s30')
    A(f's_add_u32 s48, s48, {WS_G}')
    A('s_lshl_b32 s50, s29, 17')
    A(f's_lshl_b32 s31, s{sCB}, 2')
    A(f's_and_b32 s29, s{sW}, 2')
    A('s_add_u32 s31, s31, s29')
    A('s_lshl_b32 s31, s31, 10')
    A('s_add_u32 s50, s50, s31')
    A(f's_add_u32 s50, s50, {WS_OF}')
    A('s_add_u32 s51, s50, 0x20000')
    A('s_add_u32 s52, s50, 0x10000')
    A('s_add_u32 s53, s51, 0x10000')
    A('s_mov_b32 s33, 32768')
    A(f's_lshl_b32 s84, s{sTB}, 2')
    A(f's_add_u32 s84, s84, s{sW}')
    A('s_lshl_b32 s85, s84, 17')
    A(f's_add_u32 s85, s85, {WS_OF}')
    A('s_bfe_u32 s29, s2, 0x20001')
    A(f's_lshr_b32 s86, s{sCB}, 3')
    A('s_lshl_b32 s86, s86, 2')
    A('s_add_u32 s86, s86, s29')
    if 'g2' in VAR:
        A(f's_and_b32 s29, s{sCB}, 4')
        A('s_xor_b32 s86, s86, s29')
    A('s_lshl_b32 s86, s86, 13')
    A('s_add_u32 s87, s85, s86')
    A('s_add_u32 s88, s87, 4096')
    stamp(A, 1)
    def rd_list(st):
        sb = OB + 32*st
        def ra(c, rho): return (f'ds_read_b64_tr_b16 {v(sb+4*c+2*rho,2)}, v{WA+c} offset:{16384+st*8192+rho*1024}', (st, 'A', c))
        def rb(t): return (f'ds_read_b128 {v(sb+16+4*t,4)}, v{XA+st} offset:{t*2048}', (st, 'B', t))
        return [ra(0,0), ra(0,1), rb(0), rb(1), rb(2), rb(3), ra(1,0), ra(1,1), ra(2,0), ra(2,1), ra(3,0), ra(3,1)]
    L = Cnt(A, 'lgkmcnt', 15)
    A('s_mov_b32 s38, 0')
    A('s_waitcnt vmcnt(3)' if 'cpf' in VAR else 's_waitcnt vmcnt(2)')
    A('s_barrier')
    A('s_bitcmp1_b32 s2, 0')
    A('s_cbranch_scc1 P1_Q0')
    FB = 16
    def rd(st):
        fb = FB + 16*st
        for rho in range(2):
            L.issue(f'ds_read_b64_tr_b16 {a(fb+2*rho,2)}, v{KWA} offset:{8192+st*2048+rho*256}', ('k', st))
        L.issue(f'ds_read_b128 {a(fb+8,4)}, v{KXA+(st&1)} offset:{(st>>1)*4096}', ('k', st))
        for rho in range(2):
            L.issue(f'ds_read_b64_tr_b16 {a(fb+4+2*rho,2)}, v{KWA} offset:{16384+st*2048+rho*256}', ('k', st))
        L.issue(f'ds_read_b128 {a(fb+12,4)}, v{GA} offset:{st*64}', ('k', st))
    def mm(st):
        fb = FB + 16*st
        L.need(('k', st))
        A(f'v_mfma_f32_16x16x32_bf16 {v(KAC,4)}, {a(fb,4)}, {a(fb+8,4)}, {v(KAC,4)}')
        A(f'v_mfma_f32_16x16x32_bf16 {v(VAC,4)}, {a(fb+8,4)}, {a(fb+4,4)}, {v(VAC,4)}')
        A(f'v_mfma_f32_16x16x32_bf16 {v(GAC,4)}, {a(fb+12,4)}, {a(fb+8,4)}, {v(GAC,4)}')
    for st in range(2): rd(st)
    if 'al' in VAR.split('_'): A('.p2align 6')
    A('KV_LOOP:')
    q0 = list(L.q)
    for st in range(2):
        mm(st)
        rd(st + 2)
    A('s_and_b32 s29, s38, 3')
    A('s_cmp_eq_u32 s29, 3')
    A(f's_cselect_b32 s29, {(-3*SLOT) & 0xffffffff:#x}, s39')
    for r in (KXA, KXA+1, KWA):
        A(f'v_add_u32 v{r}, s29, v{r}')
    A('s_add_u32 s28, s28, 1')
    A('s_and_b32 s28, s28, 7')
    A('s_lshl_b32 s29, s28, 8')
    A(f'v_add_u32 v{GA}, s29, v{GB}')
    A('s_add_u32 s38, s38, 1')
    A('s_cmp_lt_u32 s38, 8')
    L.drain()
    A('s_cbranch_scc0 KV_TAIL')
    A('s_barrier')
    for st in range(2, 4):
        rd(st - 2)
        mm(st)
    assert L.q == q0
    A('s_branch KV_LOOP')
    A('KV_TAIL:')
    L.q = []
    mm(2)
    mm(3)
    for r in range(4):
        A(f'v_accvgpr_write_b32 a{AV+12+r}, 0')
    A('s_nop 1')
    A(f's_mov_b32 s31, {f32bits(QK_SCALE):#x}')
    for r in range(4):
        A(f'v_mul_f32 v{KAC+r}, s31, v{KAC+r}')
    A(f'v_mul_f32 v{GAC}, s37, v{GAC}')
    A(f'v_cvt_pk_bf16_f32 v{VAC}, v{VAC}, v{VAC+1}')
    A(f'v_exp_f32 v{GAC}, v{GAC}')
    A(f'v_cvt_pk_bf16_f32 v{VAC+1}, v{VAC+2}, v{VAC+3}')
    A(f'v_add_f32 v{GAC}, 1.0, v{GAC}')
    A(f'v_cvt_pk_bf16_f32 v{KAC}, v{KAC}, v{KAC+1}')
    A(f'v_rcp_f32 v{GAC}, v{GAC}')
    A(f'v_cvt_pk_bf16_f32 v{KAC+1}, v{KAC+2}, v{KAC+3}')
    A(f'buffer_store_dwordx2 {v(VAC,2)}, v{KST+1}, {W}, s35 offen offset:2048 sc1')
    A(f'buffer_store_dwordx2 {v(KAC,2)}, v{KST}, {W}, s35 offen sc1')
    A('s_mov_b64 exec, 0xffff')
    A(f'buffer_store_dword v{GAC}, v{KST+2}, {W}, s36 offen sc1')
    A('s_mov_b64 exec, -1')
    A('s_barrier')
    A('P1_Q0:')
    for r in rd_list(0): A(r[0])
    A('P1_Q:')
    stamp(A, 2)
    def acc(c, t):
        return SB + 16*(2*(c >> 1) + (t >> 1)) + 8*(t & 1) + 4*(c & 1)
    def mf(st, c, t):
        sb = OB + 32*st
        return f'v_mfma_f32_16x16x32_bf16 {v(acc(c,t),4)}, {v(sb+4*c,4)}, {v(sb+16+4*t,4)}, {v(acc(c,t),4)}'
    def group(st, rds, other=(), order=None):
        rds = list(rds); other = list(other)
        L.need(*[r[1] for r in rd_list(st)[:8]])
        for c, t in (order or [(c, t) for c in range(4) for t in range(4)]):
            L.need((st, 'A', c), (st, 'B', t))
            A(mf(st, c, t))
            if rds: L.issue(*rds.pop(0))
            elif other: A(other.pop(0))
            if other and not isinstance(other[0], tuple) and other[0].startswith('s_'): A(other.pop(0))
        assert not rds
        for o in other: A(o)
    L.q = [r[1] for r in rd_list(0)]
    A('s_mov_b32 s38, 0')
    adr = [f'v_add_u32 v{r}, s29, v{r}' for r in (XA, XA+1, WA, WA+1, WA+2, WA+3)]
    def stage(mode, extra=()):
        sal = ['s_and_b32 s29, s38, 3', 's_cmp_eq_u32 s29, 3', f's_cselect_b32 s29, {(-3*SLOT) & 0xffffffff:#x}, s39',
               's_add_u32 s38, s38, 1', f's_cmp_eq_u32 s38, {NSIG}']
        if mode == 'last':
            z = [f'v_mov_b32 v{OB+r}, 0' for r in range(64)]
            group(0, rd_list(1), list(extra))
            L.drain()
            A('s_barrier')
            for r in kvr(0, 0): A(r)
            def fin(q):
                a_, b_ = q >> 1, q & 1
                o = []
                for th in range(2):
                    for ch in range(2):
                        x = acc(2*a_+ch, 2*b_+th)
                        for i in range(2):
                            o.append(f'v_cvt_pk_bf16_f32 v{QB+8*q+4*th+2*ch+i}, v{x+2*i}, v{x+2*i+1}')
                return o
            def swp(q): return [f'v_permlane16_swap_b32 v{QB+8*q+i}, v{QB+8*q+4+i}' for i in range(4)]
            order = [(2*(q >> 1)+ch, 2*(q & 1)+th) for q in range(4) for ch in range(2) for th in range(2)]
            fill = z[:32]
            for n, (c, t) in enumerate(order):
                A(mf(1, c, t))
                for _ in range(2): A(fill.pop(0))
            for l in fin(0) + fin(1) + swp(0): A(l)
            A('s_waitcnt lgkmcnt(0)')
            for l in fin(2)[:2]: A(l)
            A(qk(0, 0, 0))
            for l in fin(2)[2:] + swp(1): A(l)
            A(qk(0, 0, 1))
            for l in fin(3) + swp(2) + z[32:] + swp(3): A(l)
            for r in range(8):
                A(f'v_mov_b32 v{SB+48+8+r}, 0')
            return
        group(0, rd_list(1), sal + [x + '\n' + y for x, y in zip(adr[::2], adr[1::2])])
        A('s_cbranch_scc1 Q_PRE')
        A('Q_PRE_RET:')
        L.drain()
        A('s_barrier')
        group(1, rd_list(0), ['', '', 's_bitcmp1_b32 s45, s38\ns_cbranch_scc1 Q_POST\nQ_POST_RET:'])
    if 'al' in VAR.split('_'): A('.p2align 6')
    A('Q_LOOP:')
    q0 = list(L.q)
    stage('loop')
    assert L.q == q0, (L.q, q0)
    A('s_cmp_lt_u32 s38, 15')
    A('s_cbranch_scc1 Q_LOOP')
    T = A
    A('s_branch Q_LAST')
    T('Q_PRE:')
    T('s_waitcnt vmcnt(0)')
    T('s_branch Q_PRE_RET')
    T('Q_POST:')
    T(f's_cmp_eq_u32 s38, {NPOLL}')
    T('s_cbranch_scc1 Q_POLL')
    T(f's_cmp_eq_u32 s38, {NCHK}')
    T('s_cbranch_scc1 Q_CHECK')
    T('s_and_b32 s30, s2, 1')
    T('s_lshl_b32 s30, s30, 7')
    T('v_mov_b32 v0, s30')
    T('v_mov_b32 v11, 1')
    T('s_mov_b64 exec, 1')
    T(f'global_atomic_add v0, v11, s[{DBG}:{DBG+1}] sc1')
    T('s_mov_b64 exec, -1')
    T('s_branch Q_POST_RET')
    T('Q_POLL:')
    T('v_and_b32 v0, 1, v1')
    T('v_lshlrev_b32 v0, 7, v0')
    T('v_mov_b32 v11, 128')
    T(f'global_load_dword v10, v0, s[{DBG}:{DBG+1}] sc1')
    T('s_branch Q_POST_RET')
    T('Q_CHECK:')
    T('s_waitcnt vmcnt(0)')
    T('v_cmp_lt_u32 vcc, v10, v11')
    T('s_nop 1')
    T('s_cbranch_vccz Q_POST_RET')
    poll(T, 'KV', f'global_load_dword v10, v0, s[{DBG}:{DBG+1}] sc1', 11, 8, 'lt')
    T('s_branch Q_POST_RET')
    A('Q_LAST:')
    stage('last', [f'v_add_u32 v0, {L_KVR+32768}, v2', 'v_and_b32 v10, 31, v1', 'v_lshlrev_b32 v10, 2, v10',
                   f'buffer_load_dword v11, v10, {W}, s48 offen offset:128 sc1', f'buffer_load_dword v10, v10, {W}, s48 offen sc1'])
    stamp(A, 3)

def qk(t, kb, half, sb=None):
    sb = t if sb is None else sb
    c = '0' if half == 0 else v(SB+16*sb, 16)
    return f'v_mfma_f32_32x32x16_bf16 {v(SB+16*sb,16)}, {a(AK+8*kb+4*half,4)}, {v(QB+8*t+4*half,4)}, {c}'
def pv(t, vb, half, sb=None):
    sb = t if sb is None else sb
    return f'v_smfmac_f32_32x32x32_bf16 {v(OB+16*t,16)}, {a(AV+8*vb+4*half,4)}, {v(SB+16*sb+8*half,8)}, v{IDX}'
def sm(t, half, sb=None):
    sb = t if sb is None else sb
    if 'halfsum' in VAR and half == 1: return 's_nop 0'
    return f'v_smfmac_f32_16x16x64_bf16 {a(AL+4*t,4)}, {v(SEL,4)}, {v(SB+16*sb+8*half,8)}, v{IDX}'
def ex(t, i):
    return f'v_exp_f32 v{SB+16*t+i}, v{SB+16*t+i}'

def slot(A, cur, nxt, prv, x):
    t, kb, sb = cur
    A(qk(nxt[0], nxt[1], 0, nxt[2]) if nxt else '')
    A(x.get(0, ''))
    for e in (0, 1, 2): A(ex(sb, e))
    A(qk(nxt[0], nxt[1], 1, nxt[2]) if nxt else '')
    A(x.get(1, ''))
    for e in (3, 4, 5): A(ex(sb, e))
    A(pv(prv[0], prv[1], 1, prv[2]))
    A(x.get(2, ''))
    for e in (6, 7, 8): A(ex(sb, e))
    A(sm(prv[0], 1, prv[2]))
    A(x.get(3, ''))
    for e in (9, 10): A(ex(sb, e))
    A(pv(t, kb, 0, sb))
    A(x.get(4, ''))
    for e in (11, 12, 13): A(ex(sb, e))
    A(sm(t, 0, sb))
    A(x.get(5, ''))
    for e in (14, 15): A(ex(sb, e))

def tile_out(A, t, check):
    aa, b = t >> 1, t & 1
    o = OB + 16*t
    A(f'v_accvgpr_read_b32 v0, a{AL+4*t}')
    A('v_rcp_f32 v8, v0')
    if check:
        A('v_min_f32 v4, v4, v0')
        A('v_max_f32 v5, v5, v0')
        A('v_fma_f32 v6, v0, 0, v6')
    else:
        A('s_nop 0')
    A(f'v_mul_f32 v8, v8, v{10+b}')
    for h in range(2):
        for r in range(8*h, 8*h+8, 2):
            A(f'v_pk_mul_f32 {v(o+r,2)}, {v(o+r,2)}, v[8:9] op_sel_hi:[1,0]')
        if check:
            for r in range(8*h, 8*h+8, 2):
                A(f'v_pk_fma_f32 v[6:7], {v(o+r,2)}, 0, v[6:7]')
        for r in range(4):
            A(f'v_cvt_pk_bf16_f32 v{o+8*h+r}, v{o+8*h+2*r}, v{o+8*h+2*r+1}')
        A(f'buffer_store_dwordx4 {v(o+8*h,4)}, v1, {W}, s{50+t} offen offset:{h*512} sc1')

def oreg(slot, st):
    return v((80, 144)[slot] + 4*st, 4)
def oload(slot, st):
    return (f'buffer_load_dwordx4 {oreg(slot,st)}, v2, {W}, s{87+st//4} offen offset:{(st%4)*1024} sc1', ('O', slot, st))

def check(A, which):
    A(f'v_cmp_gt_f32 vcc, {f32bits(2.0**-16):#x}, v4')
    A(f's_mov_b32 s29, {f32bits(2.0**64):#x}')
    A('v_cmp_lt_f32 s[46:47], s29, v5')
    A('v_cmp_u_f32 s[30:31], v6, v7')
    A('s_nop 1')
    A('s_or_b64 s[46:47], s[46:47], vcc')
    A('s_or_b64 s[46:47], s[46:47], s[30:31]')
    if 'forceslow' + which in VAR:
        A('s_cmp_eq_u32 0, 0')
def signal(A, off):
    A('v_mov_b32 v8, 0')
    A('v_mov_b32 v0, 1')
    A('s_mov_b64 exec, 1')
    A(f'buffer_atomic_add v0, v8, {W}, s55 offen offset:{off} sc1')
    A('s_mov_b64 exec, -1')

def attention(A):
    A(f's_mov_b32 s36, {16-CT}')
    A(f'v_add_u32 v3, {L_KVR}, v2')
    A('v_and_b32 v8, 15, v1')
    A('v_bfe_u32 v4, v1, 4, 1')
    A('v_lshl_add_u32 v8, v4, 6, v8')
    A('v_lshrrev_b32 v4, 5, v1')
    A('v_lshl_add_u32 v8, v4, 4, v8')
    A('v_lshlrev_b32 v1, 4, v8')
    A('v_mov_b32 v4, 1.0')
    A('v_mov_b32 v5, 1.0')
    A('v_mov_b32 v6, 0')
    A('v_mov_b32 v7, 0')
    stamp(A, 4)
    A('.p2align 6')
    A('AT_LOOP:')
    for i in range(4):
        for t in range(4):
            nt, nb = (t+1) % 4, ((i if t < 3 else i+1) % 2)
            pt, pb = (t-1) % 4, ((i if t > 0 else i-1) % 2)
            x = {3: kvr((i+1) % 4, (i+1) % 2)[t]}
            if 'nokvr' in VAR and i > 1: x = {}
            if t == 0: x[0] = 's_waitcnt lgkmcnt(0)' + ('\ns_barrier' if i == 3 else '')
            if t == 2 and i == 3: x[1] = 's_sub_u32 s36, s36, 1'
            if t == 1 and i == 2: x[1] = 's_add_u32 s33, s33, 16384'
            if t == 2 and i == 2: x[1] = 's_and_b32 s33, s33, 0xffff'
            if t == 0 and i == 3: x[2] = 'v_add_u32 v0, s33, v3'
            if t == 2: x[5] = 's_waitcnt lgkmcnt(1)'
            if t == 3 and i == 3: x[5] = 's_cmp_lg_u32 s36, 0'
            slot(A, (t, i % 2, t), (nt, nb, nt), (pt, pb, pt), x)
    A('s_cbranch_scc1 AT_LOOP')
    NS = 4*CT
    def kvt(g):
        st = g % NS
        c = 16 - CT + st//4
        off = ((c+2) & 3)*16384 + (st % 4)*4096
        b = g % 4
        return [f'ds_read_b128 {a(AK+8*b,4)}, v3 offset:{off}', f'ds_read_b128 {a(AK+8*b+4,4)}, v3 offset:{off+1024}',
                f'ds_read_b128 {a(AV+8*b,4)}, v3 offset:{off+2048}', f'ds_read_b128 {a(AV+8*b+4,4)}, v3 offset:{off+3072}']
    seq = [(2*(g//NS) + j, g % 4) for g in range(2*NS) for j in range(2)]
    seq = [(t, b, n % 4) for n, (t, b) in enumerate(seq)]
    N = len(seq)
    for n in range(N):
        g, j = n//2, n % 2
        x = {}
        if n == 0:
            r1, r2 = kvt(1), kvt(2)
            x[0] = 's_waitcnt lgkmcnt(0)\n' + r1[0]
            x[1] = r1[1]
            x[3] = r1[2] + '\n' + r1[3]
            x[5] = r2[0] + '\n' + r2[1] + '\ns_waitcnt lgkmcnt(4)'
        elif n == 1:
            x[3] = r2[2]
            x[5] = r2[3]
        else:
            if g + 2 < 2*NS:
                r = kvt(g+2)
                x[3] = r[2*j]
                x[5] = r[2*j+1]
            if j == 0: x[0] = 's_waitcnt lgkmcnt(2)' if g + 1 < 2*NS else 's_waitcnt lgkmcnt(0)'
        if n == 2: x[1] = 's_waitcnt vmcnt(0)'
        if CT == 4 and n == 17: x[1] = 's_barrier'
        if n == N-3:
            x[0] = 's_waitcnt lgkmcnt(0)\ns_barrier'
            x[3] = oload(0, 0)[0]; x[5] = oload(0, 1)[0]
        if n == N-2:
            x[1] = oload(0, 2)[0]; x[3] = oload(0, 3)[0]; x[5] = oload(0, 4)[0]
        if n == N-1:
            x[2] = oload(0, 5)[0]; x[3] = oload(0, 6)[0]; x[5] = oload(0, 7)[0]
        slot(A, seq[n], seq[n+1] if n < N-1 else None, seq[n-1] if n else (3, 1, 3), x)
        if n == N//2 - 1: tile_out(A, 0, True)
        if n == N//2:
            tile_out(A, 1, True)
            check(A, 'e')
            A('s_cselect_b32 s54, 1, 0')
            A('s_cbranch_scc1 AT_SLOW')
        if n == N//2 + 5:
            A('s_waitcnt vmcnt(0)')
            signal(A, 0)
    stamp(A, 5)
    A('s_nop 1')
    A(sm(3, 1, 3))
    A(pv(3, 3, 1, 3))
    tile_out(A, 2, True)
    tile_out(A, 3, True)
    check(A, 'l')
    A('s_cbranch_scc1 AT_SLOW')
    A('AT_DONE:')
    S = Asm()
    S('AT_SLOW:')
    S('s_waitcnt vmcnt(0) lgkmcnt(0)')
    S('s_nop 15')
    for t in range(4):
        S(f'v_mov_b32 v{4+t}, 0xff800000')
    S('s_mov_b32 s34, s32')
    S('s_mov_b32 s36, 64')
    S('SL_MAX:')
    for l in kv_loads(0)[:2]: S(l)
    S('s_waitcnt vmcnt(0)')
    for t in range(4):
        S(qk(t, 0, 0)); S(qk(t, 0, 1))
    S('s_nop 15')
    for t in range(4):
        for r in range(0, 16, 2):
            S(f'v_max3_f32 v{4+t}, v{4+t}, v{SB+16*t+r}, v{SB+16*t+r+1}')
    S('s_add_u32 s34, s34, 4096')
    S('s_sub_u32 s36, s36, 1')
    S('s_cmp_lg_u32 s36, 0')
    S('s_cbranch_scc1 SL_MAX')
    for t in range(4):
        S(f'v_mov_b32 v8, v{4+t}')
        S('s_nop 1')
        S(f'v_permlane32_swap_b32 v8, v{4+t}')
        S('s_nop 1')
        S(f'v_max_f32 v{4+t}, v{4+t}, v8')
    for r in range(16):
        S(f'v_accvgpr_write_b32 a{AL+r}, 0')
    for r in range(64):
        S(f'v_mov_b32 v{OB+r}, 0')
    S('s_mov_b32 s34, s32')
    S('s_mov_b32 s36, 64')
    S('SL_ACC:')
    for l in kv_loads(0): S(l)
    S('s_waitcnt vmcnt(0)')
    for t in range(4):
        S(qk(t, 0, 0)); S(qk(t, 0, 1))
    S('s_nop 15')
    for t in range(4):
        for r in range(16):
            S(f'v_sub_f32 v{SB+16*t+r}, v{SB+16*t+r}, v{4+t}')
        for r in range(16):
            S(ex(t, r))
    S('s_nop 3')
    for t in range(4):
        for h in range(2):
            S(pv(t, 0, h)); S(sm(t, h))
    S('s_add_u32 s34, s34, 4096')
    S('s_sub_u32 s36, s36, 1')
    S('s_cmp_lg_u32 s36, 0')
    S('s_cbranch_scc1 SL_ACC')
    S('s_nop 15')
    for t in (2, 3):
        tile_out(S, t, False)
    S('s_cmp_eq_u32 s54, 0')
    S('s_cbranch_scc1 SL_END')
    for t in (0, 1):
        tile_out(S, t, False)
    S('s_waitcnt vmcnt(0)')
    signal(S, 0)
    S('s_barrier')
    S('SL_END:')
    S('s_waitcnt vmcnt(0)')
    for st in range(8): S(oload(0, st)[0])
    S('s_branch AT_DONE')
    tail.extend(S.lines)

def p3_compute(A):
    ACC = 16
    U = 2
    V = Cnt(A, 'vmcnt', 63)
    L = Cnt(A, 'lgkmcnt', 15)
    adv = ['s_add_u32 s86, s86, 8192', 's_and_b32 s86, s86, 0xffff', 's_add_u32 s87, s85, s86', 's_add_u32 s88, s87, 4096']
    def wr(slot, sp):
        return [(f'ds_read_b128 {a(16*sp+4*c,4)}, v5 offset:{slot*16384+sp*4096+c*1024}', ('W', sp)) for c in range(4)]
    LA = 2
    stamp(A, 6)
    stamp(A, 7)
    V.q = [oload(0, st)[1] for st in range(8)]
    A('v_mov_b32 v5, v2')
    for x in adv: A(x)
    for sp in range(LA):
        for r in wr(0, sp): L.issue(*r)
    for st in range(8): V.issue(*oload(1, st))
    for x in adv: A(x)
    for r in range(32):
        A(f'v_mov_b32 v{ACC+r}, 0')
    A('s_mov_b32 s38, 0')
    A('v_mov_b32 v8, 0')
    A('v_mov_b32 v0, 1')
    A(f's_mov_b32 s39, {U*16384}')
    srd(A, SOUT, 56, 57, 4 << 20)
    ep = ['v_lshrrev_b32 v1, 4, v2', f's_lshl_b32 s44, s{sW}, 12', 's_add_u32 s44, s44, 0x18000', 'v_add_u32 v52, s44, v2',
          'v_and_b32 v9, 15, v1', 'v_lshrrev_b32 v10, 5, v1', 'v_xor_b32 v10, v10, v1', 'v_and_b32 v10, 7, v10',
          'v_lshlrev_b32 v10, 4, v10', 'v_lshl_add_u32 v10, v9, 7, v10', 'v_bfe_u32 v9, v1, 4, 1', 'v_lshl_add_u32 v10, v9, 3, v10',
          'v_add_u32 v48, s44, v10', 'v_xor_b32 v49, 32, v48', 'v_xor_b32 v50, 64, v48', 'v_xor_b32 v51, 96, v48',
          'v_lshrrev_b32 v9, 3, v1', 'v_xor_b32 v10, v9, v1', 'v_and_b32 v10, 7, v10', 'v_lshlrev_b32 v10, 4, v10',
          'v_lshl_add_u32 v53, v9, 11, v10', 's_lshl_b32 s40, s84, 16', f's_lshl_b32 s41, s{sCB}, 7', 's_add_u32 s40, s40, s41',
          's_add_u32 s41, s40, 16384', 's_add_u32 s42, s40, 32768', 's_add_u32 s43, s40, 49152']
    for e in ep: A(e)
    A('P3_LOOP:')
    q0, v0 = list(L.q), list(V.q)
    if 'p3t' in VAR:
        A('s_memrealtime s[90:91]')
        A('s_memtime s[92:93]')
    def both(ltags, vtags):
        T = Asm(); L.A = T; V.A = T
        L.need(*ltags); V.need(*vtags)
        L.A = A; V.A = A
        parts = [l.strip().replace('s_waitcnt ', '') for l in T.lines]
        if parts: A('s_waitcnt ' + ' '.join(parts))
    for slot in range(U):
        for sp in range(4):
            nsp = sp + LA
            if nsp == 4 and slot == U-1:
                A('v_add_u32 v5, s31, v5')
            rds = wr(slot, nsp) if nsp < 4 else wr((slot+1) % U, nsp-4)
            for t in range(2):
                both([('W', sp)], [('O', slot, 2*sp+t)])
                for c in range(4):
                    A(f'v_mfma_f32_16x16x32_bf16 {v(ACC+8*c+4*t,4)}, {a(16*sp+4*c,4)}, {oreg(slot,2*sp+t)}, {v(ACC+8*c+4*t,4)}')
                    n = 4*t + c
                    if slot == 0 and sp == 0 and n == 0:
                        A('s_barrier')
                        A(f's_cmp_eq_u32 s38, {16-U}')
                        A(f's_cselect_b32 s{SWS+2}, 0, s{SWS+2}')
                    if n in (0, 2, 4, 6): L.issue(*rds[n//2])
                    if c == 3: V.issue(*oload(slot, 2*sp+t))
                    if slot == 0 and sp == 1 and n == 1:
                        A('s_cmp_eq_u32 s38, 8')
                        A(f's_cselect_b32 s31, {(32768-163840) & 0xffffffff:#x}, s39')
                    if slot == U-1 and sp == 1 and n == 5:
                        A('s_cmp_eq_u32 s38, 0')
                        A('s_cselect_b32 s29, s55, 0x40000000')
                        A('s_mov_b64 exec, 1')
                        A(f'buffer_atomic_add v0, v8, {W}, s29 offen offset:128 sc1')
                        A('s_mov_b64 exec, -1')
                    if slot == U-1 and sp == 3 and n == 1:
                        A(f's_cmp_eq_u32 s38, {8-2*U}')
                        A('s_cselect_b32 s29, 0x10000, 0')
                    if slot == U-1 and sp == 3 and n == 5:
                        A('s_add_u32 s85, s85, s29')
                    if sp == 3 and n == 1: A(adv[0])
                    if sp == 3 and n == 5: A(adv[1]); A(adv[2])
                    if sp == 3 and n == 7: A(adv[3])
    if 'p3t' in VAR:
        A('s_mov_b32 m0, s38')
        A('v_writelane_b32 v11, s90, m0')
        A('v_writelane_b32 v12, s92, m0')
    A(f's_add_u32 s38, s38, {U}')
    A('s_cmp_lt_u32 s38, 16')
    assert L.q == q0, (L.q, q0)
    assert V.q == v0, (V.q, v0)
    A('s_cbranch_scc1 P3_LOOP')
    stamp(A, 8)
    D = 56
    A('s_nop 1')
    for t in range(2):
        for c in range(4):
            b = ACC+8*c+4*t
            d = D+8*t+2*c
            A(f'v_cvt_pk_bf16_f32 v{d}, v{b}, v{b+1}')
            A(f'v_cvt_pk_bf16_f32 v{d+1}, v{b+2}, v{b+3}')
            A(f'ds_write_b64 v{48+c}, {v(d,2)} offset:{t*2048}')
    A('s_waitcnt lgkmcnt(0)')
    for i in range(4):
        A(f'ds_read_b128 {v(D+4*i,4)}, v52 offset:{i*1024}')
    for i in range(4):
        A(f's_waitcnt lgkmcnt({3-i})')
        A(f'buffer_store_dwordx4 {v(D+4*i,4)}, v53, s[{SOUT}:{SOUT+3}], s{40+i} offen sc1')

DOC = """;
;  phase 2  attention.  S^T = K Q^T (log2(e)/sqrt(32) folded into K), P = exp2(S) in place, P V and the row sums
;           by sparse MFMAs that pick the upper (bf16) half of every f32 P register.  The softmax shift is 0;
;           tiles with the true row maximum (AT_SLOW).  O * gate / rowsum goes to d_ws in two halves.
; Generated by a script of the author (register allocation, scheduling and wait counts are the script's).
"""
def build():
    ref = open(f'cdna_kernels/{NAME}.s.ref').read().split('\n')
    head = [l for l in ref if l.startswith(';') and '@launch' not in l and 'Override' not in l and 'grid=ceil' not in l]
    out = '\n'.join(head) + '\n'
    if 'aslist' in VAR:
        out += f'; @launch kernel={KNAME} grid=(256,1,1) block=(512,1,1) lds={LDS_BYTES}\n'
    else:
        out += f'; @launch grid=(256,1,1) block=(512,1,1) lds={LDS_BYTES}\n'
    out += DOC
    out += '.amdgcn_target "amdgcn-amd-amdhsa--gfx950"\n.text\n'
    A = Asm()
    kernel(A)
    out += A.text()
    out += '.section .rodata,"a"\n' + kd(KNAME, 256, NARCH)
    return out

if __name__ == '__main__':
    args = [x for x in sys.argv[1:] if not x.startswith('--')]
    if '--instr' in sys.argv: INSTR = True
    if '--lst' in sys.argv: LST = True
    if '--ct4' in sys.argv: CT = 4
    if '--nsig3' in sys.argv: NSIG = 3
    if '--nsig1' in sys.argv: NSIG = 1
    for x in sys.argv:
        if x.startswith('--var='): VAR = x[6:]
    dst = args[0] if args else f'cdna_kernels/{NAME}.s'
    open(dst, 'w').write(build())
```
